```python
import torch

def _softmax(x, axis=-1):
    return torch.softmax(x, dim=axis)
def _gelu(x):
    return torch.nn.functional.gelu(x, approximate="tanh")
def _silu(x):
    return torch.nn.functional.silu(x)
def _sigmoid(x):
    return torch.sigmoid(x)
def _layernorm(x, axis=-1, eps=1e-5):
    m = x.mean(dim=axis, keepdim=True)
    v = x.var(dim=axis, keepdim=True, unbiased=False)
    return (x - m) / torch.sqrt(v + eps)
def _scatter_add(tgt, idx, src, axis=0):
    return tgt.clone().index_add_(axis, idx, src)
def _segment_sum(src, seg, n):
    out = torch.zeros((n,) + src.shape[1:], dtype=src.dtype)
    return out.index_add_(0, seg, src)
def _pad(x, pw):
    flat = tuple(v for pair in reversed(pw) for v in pair)
    return torch.nn.functional.pad(x, flat)

kernel_name = 'sequential_preLN__linear_kernel_hedgehog__glu_gated_glu__prompt'

def setup_inputs():

    _w = (lambda a: (lambda t: t.to(torch.bfloat16) if t.is_floating_point() else t)(torch.as_tensor(a)))
    def _A_setup():
        B, S, D, H = 1, 2048, 512, 32
        Dh = D // H
        return {
            "x": _w((lambda *s: torch.randn(*s, dtype=torch.bfloat16) * 0.05)(B, S, D)),
            "wqkv": _w((lambda *s: torch.randn(*s, dtype=torch.bfloat16) * 0.2)(D, 3 * D)),
            "w_phi": _w((lambda *s: torch.randn(*s, dtype=torch.bfloat16) * 0.2)(H, Dh, Dh) * (Dh ** -0.5)),
            "wo": _w((lambda *s: torch.randn(*s, dtype=torch.bfloat16) * 0.05)(D, D)),
        }
    _A_in = _A_setup()

    def _B_setup():
        B, S, D, F = 1, 2048, 512, 1792
        return {
            "x": _w((lambda *s: torch.randn(*s, dtype=torch.bfloat16) * 0.05)(B, S, D)),
            "w_gate": _w((lambda *s: torch.randn(*s, dtype=torch.bfloat16) * 0.05)(D, F)),
            "w_up": _w((lambda *s: torch.randn(*s, dtype=torch.bfloat16) * 0.05)(D, F)),
            "w_down": _w((lambda *s: torch.randn(*s, dtype=torch.bfloat16) * 0.05)(F, D)),
        }
    _B_in = _B_setup()

    return {
        "A_x": _A_in["x"],
        "A_wqkv": _A_in["wqkv"],
        "A_w_phi": _A_in["w_phi"],
        "A_wo": _A_in["wo"],
        "B_x": _B_in["x"],
        "B_w_gate": _B_in["w_gate"],
        "B_w_up": _B_in["w_up"],
        "B_w_down": _B_in["w_down"],
    }

def reference(A_x, A_wqkv, A_w_phi, A_wo, B_x, B_w_gate, B_w_up, B_w_down):
    def _A_ref(x, wqkv, w_phi, wo):
        B, S, D = x.shape
        H = 32; Dh = D // H
        qkv = (lambda x, *d: x.permute(*d))((x @ wqkv).reshape(B, S, 3, H, Dh), 2, 0, 3, 1, 4)
        q, k, v = qkv[0], qkv[1], qkv[2]
        pq = torch.einsum("bhsd,hdf->bhsf", q, w_phi)
        pk = torch.einsum("bhsd,hdf->bhsf", k, w_phi)
        phi_q = torch.concatenate([_softmax(pq, axis=-1), _softmax(-pq, axis=-1)], axis=-1)
        phi_k = torch.concatenate([_softmax(pk, axis=-1), _softmax(-pk, axis=-1)], axis=-1)
        kv = torch.einsum("bhsf,bhsd->bhfd", phi_k, v)
        z  = torch.einsum("bhsf->bhf", phi_k)
        num = torch.einsum("bhqf,bhfd->bhqd", phi_q, kv)
        den = torch.einsum("bhqf,bhf->bhq", phi_q, z)[..., None] + 1e-6
        o = num / den
        return (lambda x, *d: x.permute(*d))(o, 0, 2, 1, 3).reshape(B, S, D) @ wo

    def _B_ref(x, w_gate, w_up, w_down):
        g = torch.einsum("bsd,df->bsf", x, w_gate)
        u = torch.einsum("bsd,df->bsf", x, w_up)
        h = _sigmoid(g) * u
        return torch.einsum("bsf,fd->bsd", h, w_down)

    x = A_x
    h = x + _A_ref(_layernorm(x, axis=-1), A_wqkv, A_w_phi, A_wo)
    h2 = h + _B_ref(_layernorm(h, axis=-1), B_w_gate, B_w_up, B_w_down)
    return h2
```

```python
import re

REG_RE = re.compile(r'^(-?)(abs\()?([vas])(\d+)\)?$')
RNG_RE = re.compile(r'^([vas])\[(\d+):(\d+)\]$')

def regs_of(op):
    op = op.strip()
    if op.startswith('-'): op = op[1:]
    if op.startswith('abs(') and op.endswith(')'): op = op[4:-1]
    if op.startswith('|') and op.endswith('|'): op = op[1:-1]
    m = RNG_RE.match(op)
    if m: return [(m.group(1), i) for i in range(int(m.group(2)), int(m.group(3)) + 1)]
    m = re.match(r'^([vas])(\d+)$', op)
    if m: return [(m.group(1), int(m.group(2)))]
    if op in ('vcc', 'vcc_lo', 'vcc_hi'): return [('x', 'vcc')]
    if op in ('exec', 'exec_lo', 'exec_hi'): return [('x', 'exec')]
    if op == 'm0': return [('x', 'm0')]
    return []

TRANS = ('v_exp_f32', 'v_log_f32', 'v_rcp_f32', 'v_rsq_f32', 'v_sqrt_f32', 'v_sin_f32', 'v_cos_f32', 'v_rcp_iflag_f32')
def mfma_passes(mn):
    if '32x32x16' in mn or '32x32x8' in mn: return 8
    if '16x16x32' in mn or '16x16x16' in mn: return 4
    if '4x4x4' in mn: return 2
    raise ValueError(mn)

class Ins:
    __slots__ = ('text', 'mn', 'ops', 'cls', 'wr', 'rd', 'A', 'B', 'C', 'D', 'passes', 'trans', 'dpp', 'perm', 'lane', 'wide_store', 'lds_dma', 'states', 'mask_rd')
    def __init__(self, text):
        self.text = text
        t = text.split(';')[0].strip()
        parts = t.split(None, 1)
        mn = parts[0]; self.mn = mn
        rest = parts[1] if len(parts) > 1 else ''
        ops = []; depth = 0; cur = ''
        for ch in rest:
            if ch == '[': depth += 1
            if ch == ']': depth -= 1
            if ch == ',' and depth == 0: ops.append(cur.strip()); cur = ''
            else: cur += ch
        if cur.strip(): ops.append(cur.strip())
        mods = ''
        if ops:
            last = ops[-1].split(None, 1)
            ops[-1] = last[0]
            if len(last) > 1: mods = last[1]
        self.ops = ops
        self.wr = set(); self.rd = set(); self.A = self.B = self.C = self.D = None
        self.passes = 0; self.trans = False; self.dpp = False; self.perm = False; self.lane = False
        self.wide_store = set(); self.lds_dma = False; self.states = 1; self.mask_rd = set()
        R = lambda i: regs_of(ops[i]) if i < len(ops) else []
        if mn == 's_nop':
            self.cls = 'nop'; self.states = int(ops[0], 0) + 1
        elif mn.startswith('v_mfma'):
            self.cls = 'mfma'; self.passes = mfma_passes(mn)
            self.D = R(0); self.A = R(1); self.B = R(2); self.C = R(3)
            self.wr = set(self.D); self.rd = set(self.A) | set(self.B) | set(self.C)
        elif mn.startswith('v_'):
            self.cls = 'valu'
            base = mn.replace('_e32', '').replace('_e64', '').replace('_dpp', '').replace('_sdwa', '')
            self.trans = base in TRANS
            self.dpp = '_dpp' in mn or 'quad_perm' in mods or 'row_' in mods
            if base.startswith('v_cmp'):
                self.wr = set(R(0)); self.rd = set(R(1)) | set(R(2))
                if base.startswith('v_cmpx'): self.wr.add(('x', 'exec'))
            elif base.startswith('v_permlane'):
                self.perm = True
                self.wr = set(R(0)) | set(R(1)); self.rd = set(self.wr)
            elif base in ('v_readfirstlane_b32', 'v_readlane_b32'):
                self.lane = True
                self.wr = set(R(0)); self.rd = set(R(1)) | set(R(2))
            elif base in ('v_add_co_u32', 'v_sub_co_u32', 'v_subrev_co_u32'):
                self.wr = set(R(0)) | set(R(1)); self.rd = set(R(2)) | set(R(3))
            elif base in ('v_addc_co_u32', 'v_subb_co_u32'):
                self.wr = set(R(0)) | set(R(1)); self.rd = set(R(2)) | set(R(3)) | set(R(4))
            elif base == 'v_cndmask_b32':
                self.wr = set(R(0)); self.rd = set(R(1)) | set(R(2))
                self.mask_rd = set(R(3)) if len(ops) > 3 else {('x', 'vcc')}
                self.rd |= self.mask_rd
            else:
                self.wr = set(R(0))
                for i in range(1, len(ops)): self.rd |= set(R(i))
                if base in ('v_fmac_f32', 'v_dot2c_f32_bf16', 'v_pk_fmac_f16', 'v_writelane_b32') or self.dpp or 'UNUSED_PRESERVE' in mods:
                    self.rd |= self.wr
        elif mn.startswith('buffer_') or mn.startswith('global_'):
            self.cls = 'vmem'
            lds = bool(re.search(r'\blds\b', mods)) or '_lds_' in mn
            self.lds_dma = lds
            if mn in ('buffer_inv', 'buffer_wbl2'):
                pass
            elif mn.startswith('buffer_load'):
                if lds:
                    for i in range(len(ops)): self.rd |= set(R(i))
                    self.rd.add(('x', 'm0'))
                else:
                    self.wr = set(R(0))
                    for i in range(1, len(ops)): self.rd |= set(R(i))
            elif mn.startswith('buffer_store') or mn.startswith('buffer_atomic'):
                for i in range(len(ops)): self.rd |= set(R(i))
                if 'sc0' in mods and mn.startswith('buffer_atomic'): self.wr = set(R(0))
                if 'x4' in mn or 'x3' in mn: self.wide_store = set(R(0))
            elif mn.startswith('global_load'):
                self.wr = set(R(0))
                for i in range(1, len(ops)): self.rd |= set(R(i))
            elif mn.startswith('global_store') or mn.startswith('global_atomic'):
                for i in range(len(ops)): self.rd |= set(R(i))
                if 'x4' in mn or 'x3' in mn: self.wide_store = set(R(1))
            else: raise ValueError(text)
        elif mn.startswith('ds_'):
            self.cls = 'ds'
            if mn.startswith('ds_read') or mn.startswith('ds_bpermute') or mn.startswith('ds_swizzle'):
                self.wr = set(R(0))
                for i in range(1, len(ops)): self.rd |= set(R(i))
            else:
                for i in range(len(ops)): self.rd |= set(R(i))
        elif mn.startswith('s_'):
            self.cls = 'salu'
            nodst = ('s_cmp', 's_cbranch', 's_branch', 's_waitcnt', 's_barrier', 's_endpgm', 's_setprio', 's_sleep', 's_bitcmp')
            if mn.startswith(nodst):
                for i in range(len(ops)): self.rd |= set(R(i))
            else:
                self.wr = set(R(0))
                for i in range(1, len(ops)): self.rd |= set(R(i))
                if 'saveexec' in mn: self.wr.add(('x', 'exec'))
        else:
            raise ValueError("unknown instruction: " + text)

XDL_RAW = {2: 5, 4: 8, 8: 12, 16: 20}
XDL_COVL = {2: 4, 4: 6, 8: 10, 16: 18}
XDL_WAR = {2: 1, 4: 3, 8: 7, 16: 15}

def need(p, c):
    n = 0
    vg = lambda s: {r for r in s if r[0] in 'va'}
    sg = lambda s: {r for r in s if r[0] == 's' or r == ('x', 'vcc')}
    if p.cls == 'valu':
        w = vg(p.wr)
        if c.cls == 'mfma' and w & c.rd: n = max(n, 2)
        if c.cls == 'valu':
            if p.trans and not c.trans and (w & c.rd): n = max(n, 1)
            if p.trans and c.trans and (w & c.rd): n = max(n, 1)
            if (c.perm or c.dpp) and (w & c.rd): n = max(n, 2)
            if c.lane and (w & c.rd): n = max(n, 1)
            if sg(p.wr) & c.rd: n = max(n, 4 if c.lane else 2)
            if ('x', 'exec') in p.wr and (c.dpp or c.lane or c.perm): n = max(n, 5)
        if c.cls == 'vmem' and (sg(p.wr) & c.rd): n = max(n, 5)
        if c.cls == 'salu' and (sg(p.wr) & c.rd): n = max(n, 2)
        if c.cls == 'mfma' and ('x', 'exec') in p.wr: n = max(n, 4)
    if p.cls == 'mfma':
        D = set(p.D)
        if c.cls == 'mfma':
            if D & (set(c.A) | set(c.B)): n = max(n, XDL_RAW[p.passes])
            if D & set(c.C):
                if list(p.D) == list(c.C) and p.passes == c.passes: n = max(n, 2 if p.passes == 2 else 0)
                else: n = max(n, XDL_COVL[p.passes])
            elif D & set(c.D):
                n = max(n, XDL_COVL[p.passes])
        elif c.cls in ('valu', 'vmem', 'ds'):
            if D & (c.rd | c.wr): n = max(n, XDL_RAW[p.passes])
            if c.cls == 'valu' and (set(p.C) & c.wr): n = max(n, XDL_WAR[p.passes])
    if p.cls == 'salu':
        if ('x', 'm0') in p.wr and c.lds_dma: n = max(n, 1)
    if p.cls == 'vmem' and p.wide_store:
        if p.wide_store & c.wr: n = max(n, 2 if c.cls == 'valu' else 1)
    return n

class Prog:
    def __init__(self):
        self.items = []
        self.vmq = []
        self.dsq = []
        self.uid = 0
    def __call__(self, text):
        for t in text.split('\n'):
            t = t.strip()
            if t: self.items.append(Ins(t))
    def label(self, name): self.items.append(('label', name))
    def newlabel(self, p='L'):
        self.uid += 1; return f"{p}{self.uid}"
    def vm(self, text, tag=None):
        self(text); self.vmq.append(tag)
    def ds(self, text, tag=None):
        self(text); self.dsq.append(tag)
    def _cnt(self, q, tags):
        if not isinstance(tags, (list, tuple, set)): tags = [tags]
        last = -1
        for i, t in enumerate(q):
            if t in tags: last = i
        return last
    def wait(self, vm=None, ds=None):
        parts = []
        if vm is not None:
            last = self._cnt(self.vmq, vm)
            if last >= 0:
                n = len(self.vmq) - 1 - last
                parts.append(f"vmcnt({min(n, 63)})")
                self.vmq = self.vmq[len(self.vmq) - min(n, 63):] if min(n, 63) > 0 else []
        if ds is not None:
            last = self._cnt(self.dsq, ds)
            if last >= 0:
                n = len(self.dsq) - 1 - last
                parts.append(f"lgkmcnt({min(n, 15)})")
                self.dsq = self.dsq[len(self.dsq) - min(n, 15):] if min(n, 15) > 0 else []
        if parts: self("s_waitcnt " + " ".join(parts))
    def wait_all(self, vm=True, ds=True):
        parts = []
        if vm: parts.append("vmcnt(0)"); self.vmq = []
        if ds: parts.append("lgkmcnt(0)"); self.dsq = []
        self("s_waitcnt " + " ".join(parts))
    def finalize(self):
        out = []; hist = []
        nops = 0
        for it in self.items:
            if isinstance(it, tuple):
                out.append(it); continue
            req = 0; dist = 0
            for p in reversed(hist):
                if dist >= 20: break
                n = need(p, it)
                if n - dist > req: req = n - dist
                dist += p.states
            while req > 0:
                k = min(req, 16)
                nop = Ins(f"s_nop {k-1}")
                out.append(nop); hist.append(nop); req -= k; nops += k
            out.append(it); hist.append(it)
            if len(hist) > 40: hist = hist[-30:]
        self.nops = nops
        return out
    def text(self):
        lines = []
        for it in self.finalize():
            if isinstance(it, tuple): lines.append(it[1] + ":")
            else: lines.append(" " + it.text)
        return "\n".join(lines) + "\n"
    def count(self):
        return sum(1 for it in self.items if not isinstance(it, tuple))

def kernel_text(name, prog, vgpr, agpr=0, sgpr=96):
    accum = (vgpr + 3) // 4 * 4
    nfv = accum + agpr if agpr else vgpr
    return f""".text
.globl {name}
.p2align 8
.type {name},@function
{name}:
{prog.text()}""", f""".amdhsa_kernel {name}
  .amdhsa_next_free_vgpr {nfv}
  .amdhsa_next_free_sgpr {sgpr}
  .amdhsa_accum_offset {accum}
  .amdhsa_group_segment_fixed_size 0
  .amdhsa_kernarg_size 88
  .amdhsa_user_sgpr_count 2
  .amdhsa_user_sgpr_kernarg_segment_ptr 1
  .amdhsa_system_sgpr_workgroup_id_x 1
  .amdhsa_float_denorm_mode_32 3
.end_amdhsa_kernel
"""
```

```python
import sys
from dsl import Prog, kernel_text

NAME = "sequential_preLN__linear_kernel_hedgehog__glu_gated_glu__prompt"
WS_XN   = 0x000000
WS_PHIQ = 0x200000
WS_KV   = 0x600000
WS_HF   = 0x700000
WS_ST   = 0x900000
WS_HH   = 0xA00000
WS_SIZE = 0x1200000
LOG2E = 0x3fb8aa3b

def srd(p, d, lo, hi, size):
    p(f"s_mov_b32 s{d}, s{lo}")
    p(f"s_and_b32 s{d+1}, s{hi}, 0xffff")
    p(f"s_mov_b32 s{d+2}, {size:#x}")
    p(f"s_mov_b32 s{d+3}, 0x20000")

STAMPS = False
WS_DBG = 0x1100000
def stamp(p, i):
    if STAMPS:
        p(f"s_memtime s[{64+2*i}:{65+2*i}]")
def stamp_rt(p, i):
    if STAMPS:
        p(f"s_memrealtime s[{64+2*i}:{65+2*i}]")
def stamp_flush(p, kidx, n, srdreg):
    if not STAMPS: return
    p("s_waitcnt lgkmcnt(0)")
    p(f"s_lshl_b32 s60, s2, 2\ns_add_u32 s60, s60, s20\ns_lshl_b32 s60, s60, 6\ns_add_u32 s60, s60, {WS_DBG + kidx*65536:#x}")
    p("s_mov_b64 exec, 1")
    p("v_mov_b32 v3, 0")
    for i in range(n):
        p(f"v_mov_b32 v2, s{64+2*i}")
        p(f"buffer_store_dword v2, v3, s[{srdreg}:{srdreg+3}], s60 offen offset:{4*i}")
    p("s_mov_b64 exec, -1")

def wave_sum(p, regs, tmp):
    for ctl in ("quad_perm:[1,0,3,2]", "quad_perm:[2,3,0,1]", "row_half_mirror", "row_mirror"):
        for r in regs:
            p(f"v_add_f32_dpp v{r}, v{r}, v{r} {ctl} row_mask:0xf bank_mask:0xf")
    for sw in ("v_permlane16_swap_b32", "v_permlane32_swap_b32"):
        for r, t in zip(regs, tmp): p(f"v_mov_b32 v{t}, v{r}")
        for r, t in zip(regs, tmp): p(f"{sw} v{r}, v{t}")
        for r, t in zip(regs, tmp): p(f"v_add_f32 v{r}, v{r}, v{t}")

def k0():
    p = Prog()
    p("s_cmp_ge_u32 s2, 256")
    p("s_cbranch_scc1 K0_end")
    p("s_load_dwordx2 s[4:5], s[0:1], 0")
    p("s_load_dwordx2 s[6:7], s[0:1], 80")
    p("v_and_b32 v1, 63, v0")
    p("v_lshrrev_b32 v2, 6, v0")
    p("v_readfirstlane_b32 s20, v2")
    p("v_lshlrev_b32 v3, 4, v1")
    p("s_lshl_b32 s21, s2, 3")
    p("s_lshl_b32 s22, s20, 1")
    p("s_add_u32 s21, s21, s22")
    p("s_lshl_b32 s22, s21, 10")
    p("s_waitcnt lgkmcnt(0)")
    srd(p, 8, 4, 5, 2048*512*2)
    srd(p, 12, 6, 7, WS_SIZE)
    p.vm("buffer_load_dwordx4 v[10:13], v3, s[8:11], s22 offen", "x0")
    p.vm("buffer_load_dwordx4 v[14:17], v3, s[8:11], s22 offen offset:1024", "x1")
    p("s_cmp_ge_u32 s2, 17")
    p("s_cbranch_scc1 K0_nozero")
    p("v_mov_b32 v4, 0\nv_mov_b32 v5, 0\nv_mov_b32 v6, 0\nv_mov_b32 v7, 0")
    p("s_lshl_b32 s23, s2, 2\ns_add_u32 s23, s23, s20\ns_lshl_b32 s23, s23, 10")
    p(f"s_add_u32 s23, s23, {WS_KV:#x}")
    p("buffer_store_dwordx4 v[4:7], v3, s[12:15], s23 offen")
    p.label("K0_nozero")
    p("v_lshrrev_b32 v8, 1, v1\nv_lshlrev_b32 v8, 10, v8")
    p("v_and_b32 v9, 1, v1\nv_lshlrev_b32 v9, 9, v9\nv_add_u32 v8, v8, v9")
    p("s_lshr_b32 s24, s21, 5\ns_lshl_b32 s24, s24, 15")
    p("s_and_b32 s25, s21, 31\ns_lshl_b32 s25, s25, 4\ns_add_u32 s24, s24, s25")
    p(f"s_add_u32 s24, s24, {WS_XN:#x}")
    p("s_waitcnt vmcnt(0)")
    p.vmq = []
    for base, src in ((20, 10), (30, 14)):
        for i in range(4):
            p(f"v_lshlrev_b32 v{base+2*i}, 16, v{src+i}")
            p(f"v_and_b32 v{base+2*i+1}, 0xffff0000, v{src+i}")
    for base, s in ((20, 40), (30, 41)):
        p(f"v_add_f32 v{s}, v{base}, v{base+1}")
        for i in range(2, 8): p(f"v_add_f32 v{s}, v{s}, v{base+i}")
    wave_sum(p, [40, 41], [42, 43])
    p("v_mul_f32 v40, 0x3b000000, v40\nv_mul_f32 v41, 0x3b000000, v41")
    for base, s in ((20, 40), (30, 41)):
        for i in range(8): p(f"v_sub_f32 v{base+i}, v{base+i}, v{s}")
    for base, s in ((20, 44), (30, 45)):
        p(f"v_mul_f32 v{s}, v{base}, v{base}")
        for i in range(1, 8): p(f"v_fmac_f32 v{s}, v{base+i}, v{base+i}")
    wave_sum(p, [44, 45], [42, 43])
    p("v_mov_b32 v46, 0x3727c5ac")
    p("v_fmac_f32 v46, 0x3b000000, v44")
    p("v_mov_b32 v47, 0x3727c5ac")
    p("v_fmac_f32 v47, 0x3b000000, v45")
    p("v_rsq_f32 v46, v46\nv_rsq_f32 v47, v47")
    for base, s, dst in ((20, 46, 10), (30, 47, 14)):
        for i in range(8): p(f"v_mul_f32 v{base+i}, v{base+i}, v{s}")
        for i in range(4): p(f"v_cvt_pk_bf16_f32 v{dst+i}, v{base+2*i}, v{base+2*i+1}")
    p("buffer_store_dwordx4 v[10:13], v8, s[12:15], s24 offen")
    p("buffer_store_dwordx4 v[14:17], v8, s[12:15], s24 offen offset:16")
    p.label("K0_end")
    p("s_endpgm")
    return p, 48, 0


def prologue(p, endlabel, ptrs, nwg=256):
    p(f"s_cmp_ge_u32 s2, {nwg}")
    p(f"s_cbranch_scc1 {endlabel}")
    for off, s in ptrs: p(f"s_load_dwordx2 s[{s}:{s+1}], s[0:1], {off}")
    p("v_and_b32 v1, 63, v0")
    p("v_lshrrev_b32 v2, 6, v0")
    p("v_readfirstlane_b32 s20, v2")

def tr_addr(p, dst, tmp, pitch, hrows):
    p(f"v_lshrrev_b32 v{dst}, 5, v1")
    p(f"v_mul_u32_u24 v{dst}, {hrows}, v{dst}")
    p(f"v_bfe_u32 v{tmp}, v1, 2, 2")
    p(f"v_add_u32 v{dst}, v{dst}, v{tmp}")
    p(f"v_mul_u32_u24 v{dst}, {pitch}, v{dst}")
    p(f"v_bfe_u32 v{tmp}, v1, 4, 1")
    p(f"v_lshlrev_b32 v{tmp}, 5, v{tmp}")
    p(f"v_add_u32 v{dst}, v{dst}, v{tmp}")
    p(f"v_and_b32 v{tmp}, 3, v1")
    p(f"v_lshlrev_b32 v{tmp}, 3, v{tmp}")
    p(f"v_add_u32 v{dst}, v{dst}, v{tmp}")

def softmax_blocks(p, blocks, sL, tmp):
    n = len(blocks)
    M = [tmp + 4*i for i in range(n)]; T = [tmp + 4*i + 1 for i in range(n)]; S = [tmp + 4*i + 2 for i in range(n)]
    for (b, o), m in zip(blocks, M): p(f"v_max3_f32 v{m}, v{b}, v{b+1}, v{b+2}")
    for (b, o), m in zip(blocks, M): p(f"v_max3_f32 v{m}, v{m}, v{b+3}, v{b+4}")
    for (b, o), m in zip(blocks, M): p(f"v_max3_f32 v{m}, v{m}, v{b+5}, v{b+6}")
    for (b, o), m in zip(blocks, M): p(f"v_max_f32 v{m}, v{m}, v{b+7}")
    for m, t in zip(M, T): p(f"v_mov_b32 v{t}, v{m}")
    for m, t in zip(M, T): p(f"v_permlane32_swap_b32 v{m}, v{t}")
    for m, t in zip(M, T): p(f"v_max_f32 v{m}, v{m}, v{t}")
    for m in M: p(f"v_mul_f32 v{m}, s{sL}, v{m}")
    for (b, o), m in zip(blocks, M):
        for i in range(4):
            p(f"v_pk_fma_f32 v[{b+2*i}:{b+2*i+1}], v[{b+2*i}:{b+2*i+1}], s[{sL}:{sL+1}], v[{m}:{m+1}] op_sel_hi:[1,1,0] neg_lo:[0,0,1] neg_hi:[0,0,1]")
    for (b, o), m in zip(blocks, M):
        for i in range(8): p(f"v_exp_f32 v{b+i}, v{b+i}")
    for (b, o), s_ in zip(blocks, S): p(f"v_pk_add_f32 v[{s_}:{s_+1}], v[{b}:{b+1}], v[{b+2}:{b+3}]")
    for (b, o), m in zip(blocks, M): p(f"v_pk_add_f32 v[{m}:{m+1}], v[{b+4}:{b+5}], v[{b+6}:{b+7}]")
    for m, s_ in zip(M, S): p(f"v_pk_add_f32 v[{m}:{m+1}], v[{m}:{m+1}], v[{s_}:{s_+1}]")
    for m, t in zip(M, T): p(f"v_add_f32 v{m}, v{m}, v{t}")
    for m, t in zip(M, T): p(f"v_mov_b32 v{t}, v{m}")
    for m, t in zip(M, T): p(f"v_permlane32_swap_b32 v{m}, v{t}")
    for m, t in zip(M, T): p(f"v_add_f32 v{m}, v{m}, v{t}")
    for m in M: p(f"v_rcp_f32 v{m}, v{m}")
    for (b, o), m in zip(blocks, M):
        for i in range(4):
            p(f"v_pk_mul_f32 v[{b+2*i}:{b+2*i+1}], v[{b+2*i}:{b+2*i+1}], v[{m}:{m+1}] op_sel_hi:[1,0]")
    for (b, o), m in zip(blocks, M):
        for i in range(4): p(f"v_cvt_pk_bf16_f32 v{o+i}, v{b+2*i}, v{b+2*i+1}")

K1_W, K1_WPHI, K1_SCR, K1_KVP, K1_LDS = 0, 98304, 102400, 139264, 156672
def k1():
    p = Prog()
    stamp_rt(p, 0); stamp(p, 1)
    prologue(p, "K1_end", [(8, 4), (16, 6), (80, 16)])
    p("s_and_b32 s21, s2, 7\ns_lshr_b32 s22, s2, 3")
    p("s_lshr_b32 s23, s21, 1\ns_lshl_b32 s23, s23, 2\ns_lshr_b32 s24, s22, 3\ns_add_u32 s23, s23, s24")
    p("s_and_b32 s24, s21, 1\ns_lshl_b32 s24, s24, 3\ns_and_b32 s25, s22, 7\ns_add_u32 s24, s24, s25")
    p("s_lshl_b32 s25, s23, 2\ns_add_u32 s25, s25, s20")
    ACC, X, WF = 16, 64, 192
    vW, vX, vT, vT2, vP, vS = 4, 5, 6, 7, 8, 9
    p(f"v_lshrrev_b32 v{vW}, 2, v1\nv_mul_u32_u24 v{vW}, 3072, v{vW}\nv_and_b32 v10, 3, v1\nv_lshlrev_b32 v10, 4, v10\nv_add_u32 v{vW}, v{vW}, v10")
    p(f"v_lshlrev_b32 v{vX}, 4, v1")
    p("s_mul_i32 s28, s20, 49152\ns_lshl_b32 s29, s24, 6\ns_add_u32 s28, s28, s29")
    p("s_lshl_b32 s29, s20, 10")
    p(f"s_lshl_b32 s30, s25, 15\ns_add_u32 s30, s30, {WS_XN:#x}")
    p(f"s_lshl_b32 s26, s24, 10\ns_lshl_b32 s27, s20, 10")
    p("s_waitcnt lgkmcnt(0)")
    if STAMPS: stamp(p, 10)
    srd(p, 8, 4, 5, 512*1536*2)
    srd(p, 12, 6, 7, 32*16*16*2)
    srd(p, 16, 16, 17, WS_SIZE)
    def chunk_loads(c):
        L = []
        for part in range(3):
            def f(part=part):
                p(f"s_add_u32 s31, s28, {c*64*3072 + part*1024}")
                p(f"s_add_u32 m0, s29, {K1_W + part*32768 + c*4096}")
                p.vm(f"buffer_load_dwordx4 v{vW}, s[8:11], s31 offen lds", f"c{c}")
            L.append(f)
        for q in range(4):
            def f(ks=4*c+q):
                p(f"s_add_u32 s31, s30, {ks*1024}")
                p.vm(f"buffer_load_dwordx4 v[{X+4*ks}:{X+4*ks+3}], v{vX}, s[16:19], s31 offen", f"c{c}")
            L.append(f)
        return L
    AHEAD = 3
    for c in range(AHEAD):
        for f in chunk_loads(c): f()
    if STAMPS: stamp(p, 11)
    p(f"s_add_u32 m0, s27, {K1_WPHI}")
    p.vm(f"buffer_load_dwordx4 v{vX}, s[12:15], s26 offen lds", "wphi")
    tr_addr(p, vT, 10, 64, 8)
    p(f"v_add_u32 v{vT2}, 0x10000, v{vT}")
    for i in range(48): p(f"v_mov_b32 v{ACC+i}, 0")
    def reads(ks):
        b = WF + 12*(ks & 1)
        for part in range(3):
            base = vT if part < 2 else vT2
            off = (part % 2)*32768 + ks*1024
            p.ds(f"ds_read_b64_tr_b16 v[{b+4*part}:{b+4*part+1}], v{base} offset:{off}", f"k{ks}")
            p.ds(f"ds_read_b64_tr_b16 v[{b+4*part+2}:{b+4*part+3}], v{base} offset:{off+256}", f"k{ks}")
    stamp(p, 2)
    p.wait(vm="c0"); p("s_barrier"); reads(0)
    stamp(p, 3)
    pend = []
    for ks in range(32):
        if ks % 4 == 0 and ks//4 + AHEAD < 8: pend += chunk_loads(ks//4 + AHEAD)
        if ks + 1 < 32:
            if (ks + 1) % 4 == 0:
                p.wait(vm=f"c{(ks+1)//4}"); p("s_barrier")
            reads(ks + 1)
        p.wait(ds=f"k{ks}")
        b = WF + 12*(ks & 1)
        for part in range(3):
            a = ACC + 16*part
            p(f"v_mfma_f32_32x32x16_bf16 v[{a}:{a+15}], v[{b+4*part}:{b+4*part+3}], v[{X+4*ks}:{X+4*ks+3}], v[{a}:{a+15}]")
            if pend and (ks % 4 < 3 or True) and part != 1: pend.pop(0)()
    assert not pend
    stamp(p, 4)
    p(f"v_lshrrev_b32 v{vP}, 5, v1\nv_lshlrev_b32 v{vP}, 2, v{vP}\nv_bfe_u32 v10, v1, 2, 2\nv_add_u32 v{vP}, v{vP}, v10\nv_lshlrev_b32 v{vP}, 5, v{vP}")
    p(f"v_and_b32 v10, 3, v1\nv_lshlrev_b32 v10, 3, v10\nv_add_u32 v{vP}, v{vP}, v10")
    p(f"s_lshl_b32 s27, s20, 10\ns_add_u32 s27, s27, {K1_WPHI}\nv_add_u32 v{vP}, s27, v{vP}")
    p(f"v_and_b32 v{vS}, 16, v1\nv_lshlrev_b32 v{vS}, 11, v{vS}\nv_lshlrev_b32 v10, 16, v{vS}\nv_or_b32 v{vS}, v{vS}, v10")
    WP = 200
    p.wait(vm="wphi")
    for hd in range(2):
        p.ds(f"ds_read_b64_tr_b16 v[{WP+4*hd}:{WP+4*hd+1}], v{vP} offset:{512*hd}", "wp")
        p.ds(f"ds_read_b64_tr_b16 v[{WP+4*hd+2}:{WP+4*hd+3}], v{vP} offset:{512*hd+256}", "wp")
    QB = 208; VB = 224
    for part in (1, 0):
        for i in range(8): p(f"v_cvt_pk_bf16_f32 v{QB+8*part+i}, v{ACC+16*part+2*i}, v{ACC+16*part+2*i+1}")
    p.wait(ds="wp")
    for i in range(8): p(f"v_xor_b32 v{WP+i}, v{WP+i}, v{vS}")
    P = 64
    for bi, (part, hd) in enumerate(((1, 0), (1, 1), (0, 0), (0, 1))):
        q = QB + 8*part + 4*hd
        p(f"v_mfma_f32_32x32x16_bf16 v[{P+16*bi}:{P+16*bi+15}], v[{WP+4*hd}:{WP+4*hd+3}], v[{q}:{q+3}], 0")
    for i in range(8): p(f"v_cvt_pk_bf16_f32 v{VB+i}, v{ACC+32+2*i}, v{ACC+32+2*i+1}")
    vA, vR = 10, 11
    p(f"s_mul_i32 s27, s20, 9216\ns_add_u32 s27, s27, {K1_SCR}")
    p(f"v_and_b32 v{vA}, 31, v1\nv_mul_u32_u24 v{vA}, 72, v{vA}\nv_lshrrev_b32 v12, 5, v1\nv_lshlrev_b32 v12, 3, v12\nv_add_u32 v{vA}, v{vA}, v12\nv_add_u32 v{vA}, s27, v{vA}")
    tr_addr(p, vR, 12, 72, 8)
    p(f"v_add_u32 v{vR}, s27, v{vR}")
    p("v_mov_b32 v12, 0x3f803f80\nv_mov_b32 v13, 0x3f803f80")
    for hd in range(2):
        for q in range(2):
            p.ds(f"ds_write_b64 v{vA}, v[{VB+4*hd+2*q}:{VB+4*hd+2*q+1}] offset:{(2+hd)*2304 + 16*q}", "st")
            p.ds(f"ds_write_b64 v{vA}, v[12:13] offset:{(2+hd)*2304 + 32 + 16*q}", "st")
    p(f"s_mov_b32 s36, {LOG2E:#x}\ns_mov_b32 s37, {LOG2E:#x}")
    O = 128
    blocks = []
    for bi in range(4):
        for sg in range(2): blocks.append((P + 16*bi + 8*sg, O + 8*bi + 4*sg))
    softmax_blocks(p, blocks[:4], 36, 160)
    for hd in range(2):
        for sg in range(2):
            for q in range(2):
                r = O + 8*hd + 4*sg + 2*q
                p.ds(f"ds_write_b64 v{vA}, v[{r}:{r+1}] offset:{hd*2304 + 32*sg + 16*q}", "st")
    stamp(p, 5)
    p.wait(ds="st")
    F = 176
    for hd in range(2):
        for s2 in range(2):
            f = F + 8*(2*hd + s2)
            for ab in range(2):
                off = (2*ab + hd)*2304 + s2*1152
                p.ds(f"ds_read_b64_tr_b16 v[{f+4*ab}:{f+4*ab+1}], v{vR} offset:{off}", f"kv{hd}")
                p.ds(f"ds_read_b64_tr_b16 v[{f+4*ab+2}:{f+4*ab+3}], v{vR} offset:{off+288}", f"kv{hd}")
    C = 64
    p(f"s_mul_i32 s27, s20, 4352\ns_add_u32 s27, s27, {K1_KVP}")
    p("v_and_b32 v12, 31, v1\nv_lshlrev_b32 v12, 4, v12\nv_lshrrev_b32 v13, 5, v1\nv_mul_u32_u24 v13, 272, v13\nv_add_u32 v12, v12, v13\nv_add_u32 v12, s27, v12")
    for hd in range(2):
        p.wait(ds=f"kv{hd}")
        for s2 in range(2):
            f = F + 8*(2*hd + s2)
            c = "0" if s2 == 0 else f"v[{C+16*hd}:{C+16*hd+15}]"
            p(f"v_mfma_f32_32x32x16_bf16 v[{C+16*hd}:{C+16*hd+15}], v[{f}:{f+3}], v[{f+4}:{f+7}], {c}")
    p("s_mov_b32 exec_lo, 0x1ffff\ns_mov_b32 exec_hi, 0x1ffff")
    for hd in range(2):
        for b in range(4):
            p.ds(f"ds_write_b128 v12, v[{C+16*hd+4*b}:{C+16*hd+4*b+3}] offset:{hd*2176 + b*544}", "kvp")
    p("s_mov_b64 exec, -1")
    p.wait(ds="kvp")
    p("s_barrier")
    p(f"v_lshlrev_b32 v12, 2, v0")
    p(f"s_mul_i32 s27, s24, 4352\ns_add_u32 s27, s27, {WS_KV:#x}")
    p(f"v_add_u32 v13, {K1_KVP}, v12")
    for i in range(4):
        for w in range(4):
            p.ds(f"ds_read_b32 v{176+4*i+w}, v13 offset:{w*4352 + i*1024}", f"r{i}")
    for i in range(4):
        p.wait(ds=f"r{i}")
        r = 176 + 4*i
        p(f"v_add_f32 v{r}, v{r}, v{r+1}\nv_add_f32 v{r+2}, v{r+2}, v{r+3}\nv_add_f32 v{r}, v{r}, v{r+2}")
        p.vm(f"buffer_atomic_add_f32 v{r}, v12, s[16:19], s27 offen offset:{i*1024}", "at")
    p("s_cmp_lg_u32 s20, 0")
    p("s_cbranch_scc1 K1_q")
    for w in range(4): p(f"ds_read_b32 v{192+w}, v13 offset:{w*4352 + 4096}")
    p("s_waitcnt lgkmcnt(0)")
    p("v_add_f32 v192, v192, v193\nv_add_f32 v194, v194, v195\nv_add_f32 v192, v192, v194")
    p("s_add_u32 s27, s27, 4096")
    p("buffer_atomic_add_f32 v192, v12, s[16:19], s27 offen")
    p.label("K1_q")
    stamp(p, 6)
    softmax_blocks(p, blocks[4:], 36, 160)
    p(f"s_lshl_b32 s34, s25, 5\ns_lshl_b32 s35, s24, 1\ns_add_u32 s34, s34, s35\ns_lshl_b32 s34, s34, 11\ns_add_u32 s34, s34, {WS_PHIQ:#x}")
    for hd in range(2):
        for sg in range(2):
            r = O + 16 + 8*hd + 4*sg
            p.vm(f"buffer_store_dwordx4 v[{r}:{r+3}], v{vX}, s[16:19], s34 offen offset:{hd*2048 + sg*1024}", "phq")
    if STAMPS:
        stamp(p, 7)
        p("s_waitcnt vmcnt(0)")
        stamp(p, 8); stamp_rt(p, 9)
        stamp_flush(p, 1, 12, 16)
    p.label("K1_end")
    p("s_endpgm")
    return p, 256, 0


def wsrc_swz128(p, dst, tmp):
    p(f"v_lshrrev_b32 v{dst}, 3, v1\nv_lshlrev_b32 v{dst}, 10, v{dst}")
    p(f"v_bfe_u32 v{tmp}, v1, 4, 1\nv_lshlrev_b32 v{tmp}, 2, v{tmp}\nv_xor_b32 v{tmp}, v{tmp}, v1\nv_and_b32 v{tmp}, 7, v{tmp}\nv_lshlrev_b32 v{tmp}, 4, v{tmp}")
    p(f"v_add_u32 v{dst}, v{dst}, v{tmp}")

def tr_addr_swz128(p, d0, d1, tmp):
    p(f"v_lshrrev_b32 v{d0}, 5, v1\nv_lshlrev_b32 v{d0}, 2, v{d0}\nv_bfe_u32 v{tmp}, v1, 2, 2\nv_add_u32 v{d0}, v{d0}, v{tmp}\nv_lshlrev_b32 v{d0}, 7, v{d0}")
    p(f"v_bfe_u32 v{tmp}, v1, 3, 1\nv_lshlrev_b32 v{tmp}, 6, v{tmp}\nv_add_u32 v{d0}, v{d0}, v{tmp}")
    p(f"v_bfe_u32 v{tmp}, v1, 4, 1\nv_lshlrev_b32 v{tmp}, 5, v{tmp}\nv_add_u32 v{d0}, v{d0}, v{tmp}")
    p(f"v_and_b32 v{tmp}, 3, v1\nv_lshlrev_b32 v{tmp}, 3, v{tmp}\nv_add_u32 v{d0}, v{d0}, v{tmp}")
    p(f"v_xor_b32 v{d1}, 64, v{d0}")

def reduce_write(p, wavestride, sw=20):
    p(f"s_mul_i32 s40, s{sw}, {wavestride}")
    p("v_and_b32 v10, 31, v1\nv_mul_u32_u24 v10, 272, v10\nv_lshrrev_b32 v11, 5, v1\nv_lshlrev_b32 v11, 4, v11\nv_add_u32 v10, v10, v11\nv_add_u32 v10, s40, v10")
    for cg in range(2):
        for tg in range(2):
            for b in range(4):
                a = 32*cg + 16*tg + 4*b
                p.ds(f"ds_write_b128 v10, a[{a}:{a+3}] offset:{tg*32*272 + cg*128 + b*32}", "red")
    p.wait(ds="red")
    p("s_barrier")

def reduce_read(p, wavestride, ps, dst):
    T = dst + 8
    for w in range(4):
        for hb in range(2):
            r = dst + 4*hb if w == 0 else T + 8*(w-1) + 4*hb
            p.ds(f"ds_read_b128 v[{r}:{r+3}], v12 offset:{(w*wavestride) % 65536 + ps*32*272 + hb*16}" if w*wavestride + ps*32*272 + 16 < 65536 else
                 f"ds_read_b128 v[{r}:{r+3}], v13 offset:{w*wavestride - 65536 + ps*32*272 + hb*16}", f"rr{ps}")

def reduce_sum(p, ps, dst):
    T = dst + 8
    p.wait(ds=f"rr{ps}")
    for i in range(0, 8, 2):
        p(f"v_pk_add_f32 v[{dst+i}:{dst+i+1}], v[{dst+i}:{dst+i+1}], v[{T+i}:{T+i+1}]")
        p(f"v_pk_add_f32 v[{T+8+i}:{T+8+i+1}], v[{T+8+i}:{T+8+i+1}], v[{T+16+i}:{T+16+i+1}]")
    for i in range(0, 8, 2):
        p(f"v_pk_add_f32 v[{dst+i}:{dst+i+1}], v[{dst+i}:{dst+i+1}], v[{T+8+i}:{T+8+i+1}]")

def add_residual(p, dst, res, tmp):
    for i in range(4):
        p(f"v_lshlrev_b32 v{tmp+2*i}, 16, v{res+i}\nv_and_b32 v{tmp+2*i+1}, 0xffff0000, v{res+i}")
    for i in range(0, 8, 2):
        p(f"v_pk_add_f32 v[{dst+i}:{dst+i+1}], v[{dst+i}:{dst+i+1}], v[{tmp+i}:{tmp+i+1}]")

def rg_cb(p):
    p("s_and_b32 s21, s2, 7\ns_lshr_b32 s22, s2, 3")
    p("s_lshl_b32 s23, s21, 2\ns_lshr_b32 s24, s22, 3\ns_add_u32 s23, s23, s24\ns_and_b32 s24, s22, 7")

def hf_addr(p, dst, tmp):
    p(f"v_bfe_u32 v{dst}, v0, 1, 2\nv_lshlrev_b32 v{dst}, 10, v{dst}\nv_and_b32 v{tmp}, 1, v0\nv_lshlrev_b32 v{tmp}, 9, v{tmp}\nv_add_u32 v{dst}, v{dst}, v{tmp}")
    p(f"v_lshrrev_b32 v{tmp}, 3, v0\nv_lshlrev_b32 v{tmp}, 4, v{tmp}\nv_add_u32 v{dst}, v{dst}, v{tmp}")

K2_WS = 33792
K2_LDS = 4*K2_WS
def k2():
    p = Prog()
    stamp_rt(p, 0); stamp(p, 1)
    prologue(p, "K2_end", [(0, 4), (24, 6), (80, 16)])
    rg_cb(p)
    vX, vWo, vT0, vT1, vK = 4, 5, 6, 7, 8
    PH, ON, AK, AB, OB, WA = 64, 16, 192, 208, 224, 232
    p(f"v_lshlrev_b32 v{vX}, 4, v1")
    wsrc_swz128(p, vWo, 10)
    p(f"s_mul_i32 s25, s20, {K2_WS}")
    p(f"s_mul_i32 s26, s20, {8*2176}\ns_add_u32 s26, s26, {WS_KV:#x}")
    p("s_lshl_b32 s27, s20, 17\ns_lshl_b32 s28, s24, 7\ns_add_u32 s27, s27, s28")
    p(f"s_lshl_b32 s28, s23, 1\ns_lshl_b32 s28, s28, 5\ns_lshl_b32 s29, s20, 3\ns_add_u32 s28, s28, s29\ns_lshl_b32 s28, s28, 11\ns_add_u32 s28, s28, {WS_PHIQ:#x}")
    p("s_waitcnt lgkmcnt(0)")
    srd(p, 8, 4, 5, 2048*512*2)
    srd(p, 12, 6, 7, 512*512*2)
    srd(p, 16, 16, 17, WS_SIZE)
    def kv_need(hd): return (2176*(hd+1) + 1023)//1024
    def head_loads(hd):
        L = []
        for n in range(kv_need(hd-1) if hd else 0, kv_need(hd)):
            def f(n=n):
                p(f"s_add_u32 s31, s26, {n*1024}\ns_add_u32 m0, s25, {n*1024}")
                p.vm(f"buffer_load_dwordx4 v{vX}, s[16:19], s31 offen lds", f"kv{hd}")
            L.append(f)
        for tg in range(2):
            for s_ in range(2):
                def f(tg=tg, s_=s_):
                    r = PH + 16*hd + 8*tg + 4*s_
                    p(f"s_add_u32 s31, s28, {tg*65536 + hd*2048 + s_*1024}")
                    p.vm(f"buffer_load_dwordx4 v[{r}:{r+3}], v{vX}, s[16:19], s31 offen", f"h{hd}")
                L.append(f)
        for n in range(2):
            def f(n=n):
                p(f"s_add_u32 s31, s27, {(16*hd + 8*n)*1024}\ns_add_u32 m0, s25, {17408 + (16*hd + 8*n)*128}")
                p.vm(f"buffer_load_dwordx4 v{vWo}, s[12:15], s31 offen lds", f"h{hd}")
            L.append(f)
        return L
    AHEAD = 2
    for hd in range(AHEAD):
        for f in head_loads(hd): f()
    tr_addr_swz128(p, vT0, vT1, 10)
    p(f"s_add_u32 s29, s25, 17408\nv_add_u32 v{vT0}, s29, v{vT0}\nv_add_u32 v{vT1}, s29, v{vT1}")
    p(f"v_and_b32 v{vK}, 31, v1\nv_min_u32 v{vK}, 16, v{vK}\nv_lshlrev_b32 v{vK}, 4, v{vK}\nv_lshrrev_b32 v10, 5, v1\nv_mul_u32_u24 v10, 272, v10\nv_add_u32 v{vK}, v{vK}, v10\nv_add_u32 v{vK}, s25, v{vK}")
    for i in range(64): p(f"v_accvgpr_write_b32 a{i}, 0")
    XR = 48
    p("v_lshrrev_b32 v9, 3, v0\nv_lshlrev_b32 v9, 10, v9\nv_and_b32 v10, 7, v0\nv_lshlrev_b32 v10, 4, v10\nv_add_u32 v9, v9, v10")
    p("s_lshl_b32 s30, s23, 16\ns_lshl_b32 s31, s24, 7\ns_add_u32 s30, s30, s31")
    def prepA(hd):
        p.wait(vm=f"kv{hd}")
        for s_ in range(2):
            for q in range(2):
                r = AK + 8*s_ + 4*q
                p.ds(f"ds_read_b128 v[{r}:{r+3}], v{vK} offset:{hd*2176 + (2*s_+q)*544}", f"a{hd}")
    def cvtA(hd):
        p.wait(ds=f"a{hd}")
        for s_ in range(2):
            for jj in range(4):
                p(f"v_cvt_pk_bf16_f32 v{AB + 8*(hd&1) + 4*s_ + jj}, v{AK+8*s_+2*jj}, v{AK+8*s_+2*jj+1}")
    stamp(p, 2)
    prepA(0); cvtA(0)
    stamp(p, 3)
    pend = []
    for hd in range(8):
        if hd + AHEAD < 8: pend += head_loads(hd + AHEAD)
        if hd == 5:
            def f0(): p.vm(f"buffer_load_dwordx4 v[{XR}:{XR+3}], v9, s[8:11], s30 offen", "xr")
            def f1():
                p("s_add_u32 s31, s30, 32768")
                p.vm(f"buffer_load_dwordx4 v[{XR+4}:{XR+7}], v9, s[8:11], s31 offen", "xr")
            pend += [f0, f1]
        p.wait(vm=f"h{hd}")
        ab = AB + 8*(hd & 1)
        for tg in range(2):
            o = ON + 16*tg; ph = PH + 16*hd + 8*tg
            p(f"v_mfma_f32_32x32x16_bf16 v[{o}:{o+15}], v[{ab}:{ab+3}], v[{ph}:{ph+3}], 0")
            if pend: pend.pop(0)()
            p(f"v_mfma_f32_32x32x16_bf16 v[{o}:{o+15}], v[{ab+4}:{ab+7}], v[{ph+4}:{ph+7}], v[{o}:{o+15}]")
            if pend: pend.pop(0)()
        for cg, vt in ((0, vT0), (1, vT1)):
            p.ds(f"ds_read_b64_tr_b16 v[{WA+4*cg}:{WA+4*cg+1}], v{vt} offset:{hd*2048}", f"w{hd}")
            p.ds(f"ds_read_b64_tr_b16 v[{WA+4*cg+2}:{WA+4*cg+3}], v{vt} offset:{hd*2048+1024}", f"w{hd}")
        if hd + 1 < 8: prepA(hd + 1)
        if pend: pend.pop(0)()
        for tg in range(2):
            o = ON + 16*tg
            p(f"v_add_f32 v{o+8}, 0x358637bd, v{o+8}")
            p(f"v_rcp_f32 v{o+8}, v{o+8}")
            for i in range(0, 8, 2):
                p(f"v_pk_mul_f32 v[{o+i}:{o+i+1}], v[{o+i}:{o+i+1}], v[{o+8}:{o+9}] op_sel_hi:[1,0]")
            for jj in range(4): p(f"v_cvt_pk_bf16_f32 v{OB+4*tg+jj}, v{o+2*jj}, v{o+2*jj+1}")
            if pend: pend.pop(0)()
        p.wait(ds=f"w{hd}")
        for cg in range(2):
            for tg in range(2):
                a = 32*cg + 16*tg
                p(f"v_mfma_f32_32x32x16_bf16 a[{a}:{a+15}], v[{WA+4*cg}:{WA+4*cg+3}], v[{OB+4*tg}:{OB+4*tg+3}], a[{a}:{a+15}]")
                if pend: pend.pop(0)()
        if hd + 1 < 8: cvtA(hd + 1)
        while pend: pend.pop(0)()
    stamp(p, 4)
    reduce_write(p, K2_WS)
    stamp(p, 5)
    p("v_lshrrev_b32 v12, 3, v0\nv_mul_u32_u24 v12, 272, v12\nv_and_b32 v13, 7, v0\nv_lshlrev_b32 v13, 5, v13\nv_add_u32 v12, v12, v13\nv_add_u32 v13, 0x10000, v12")
    D = [64, 112]
    for ps in range(2): reduce_read(p, K2_WS, ps, D[ps])
    hf_addr(p, 14, 15)
    p("v_lshrrev_b32 v15, 3, v0\nv_lshlrev_b32 v15, 6, v15")
    p(f"s_lshl_b32 s33, s23, 12\ns_lshl_b32 s34, s24, 3\ns_add_u32 s33, s33, s34\ns_add_u32 s33, s33, {WS_ST:#x}")
    p(f"s_lshl_b32 s35, s23, 16\ns_lshl_b32 s34, s24, 12\ns_add_u32 s35, s35, s34\ns_add_u32 s35, s35, {WS_HF:#x}")
    p.wait(vm="xr")
    for ps in range(2):
        d = D[ps]
        reduce_sum(p, ps, d)
        add_residual(p, d, XR + 4*ps, d + 8)
        H = d + 16
        for i in range(4): p(f"v_cvt_pk_bf16_f32 v{H+i}, v{d+2*i}, v{d+2*i+1}")
        if ps: p("s_add_u32 s35, s35, 32768")
        p.vm(f"buffer_store_dwordx4 v[{H}:{H+3}], v14, s[16:19], s35 offen", "hst")
    for ps in range(2):
        d = D[ps]; H = d + 16
        for i in range(4): p(f"v_lshlrev_b32 v{d+2*i}, 16, v{H+i}\nv_and_b32 v{d+2*i+1}, 0xffff0000, v{H+i}")
    S = [D[0] + 20, D[1] + 20]
    for ps in range(2):
        d = D[ps]; s_ = S[ps]
        p(f"v_pk_add_f32 v[{s_}:{s_+1}], v[{d}:{d+1}], v[{d+2}:{d+3}]\nv_pk_add_f32 v[{s_+2}:{s_+3}], v[{d+4}:{d+5}], v[{d+6}:{d+7}]")
        p(f"v_pk_add_f32 v[{s_}:{s_+1}], v[{s_}:{s_+1}], v[{s_+2}:{s_+3}]\nv_add_f32 v{s_}, v{s_}, v{s_+1}")
    for ctl in ("quad_perm:[1,0,3,2]", "quad_perm:[2,3,0,1]", "row_half_mirror"):
        for ps in range(2): p(f"v_add_f32_dpp v{S[ps]}, v{S[ps]}, v{S[ps]} {ctl} row_mask:0xf bank_mask:0xf")
    for ps in range(2):
        d = D[ps]; s_ = S[ps]
        p(f"v_mul_f32 v{s_}, 0x3c800000, v{s_}")
        for i in range(8): p(f"v_sub_f32 v{d+i}, v{d+i}, v{s_}")
        p(f"v_mul_f32 v{s_+1}, v{d}, v{d}")
        for i in range(1, 8): p(f"v_fmac_f32 v{s_+1}, v{d+i}, v{d+i}")
    for ctl in ("quad_perm:[1,0,3,2]", "quad_perm:[2,3,0,1]", "row_half_mirror"):
        for ps in range(2): p(f"v_add_f32_dpp v{S[ps]+1}, v{S[ps]+1}, v{S[ps]+1} {ctl} row_mask:0xf bank_mask:0xf")
    p("v_and_b32 v16, 7, v0\nv_cmp_eq_u32 vcc, 0, v16\ns_and_saveexec_b64 s[38:39], vcc")
    for ps in range(2):
        if ps: p("s_add_u32 s33, s33, 2048")
        p.vm(f"buffer_store_dwordx2 v[{S[ps]}:{S[ps]+1}], v15, s[16:19], s33 offen", "sst")
    p("s_mov_b64 exec, s[38:39]")
    if STAMPS:
        stamp(p, 6)
        p("s_waitcnt vmcnt(0)")
        stamp(p, 7); stamp_rt(p, 8)
        stamp_flush(p, 2, 9, 16)
    p.label("K2_end")
    p("s_endpgm")
    return p, 240, 64

K4_RING = 8
K4_WS = 17408
K4_LDS = 4*K4_WS
def k4():
    p = Prog()
    stamp_rt(p, 0); stamp(p, 1)
    prologue(p, "K4_end", [(56, 4), (64, 6), (80, 16)])
    rg_cb(p)
    vX, vWo, vT0, vT1 = 4, 5, 6, 7
    HB, WA = 64, 192
    p(f"v_lshlrev_b32 v{vX}, 4, v1")
    wsrc_swz128(p, vWo, 10)
    p(f"s_mul_i32 s25, s20, {K4_WS}")
    p(f"s_mul_i32 s27, s20, {28*16*1024}\ns_lshl_b32 s28, s24, 7\ns_add_u32 s27, s27, s28")
    p(f"s_mul_i32 s28, s23, {2*112*1024}\ns_mul_i32 s29, s20, {28*1024}\ns_add_u32 s28, s28, s29\ns_add_u32 s28, s28, {WS_HH:#x}")
    p("s_waitcnt lgkmcnt(0)")
    srd(p, 8, 4, 5, 1792*512*2)
    srd(p, 12, 6, 7, 2048*512*2)
    srd(p, 16, 16, 17, WS_SIZE)
    def loads(k):
        L = []
        sl = k % K4_RING
        for n in range(2):
            def f(n=n):
                p(f"s_add_u32 s31, s27, {(16*k + 8*n)*1024}\ns_add_u32 m0, s25, {sl*2048 + n*1024}")
                p.vm(f"buffer_load_dwordx4 v{vWo}, s[8:11], s31 offen lds", f"k{k}")
            L.append(f)
        for tg in range(2):
            def f(tg=tg):
                r = HB + 8*sl + 4*tg
                p(f"s_add_u32 s31, s28, {tg*112*1024 + k*1024}")
                p.vm(f"buffer_load_dwordx4 v[{r}:{r+3}], v{vX}, s[16:19], s31 offen", f"k{k}")
            L.append(f)
        return L
    for k in range(K4_RING - 1):
        for f in loads(k): f()
    tr_addr_swz128(p, vT0, vT1, 10)
    p(f"v_add_u32 v{vT0}, s25, v{vT0}\nv_add_u32 v{vT1}, s25, v{vT1}")
    for i in range(64): p(f"v_accvgpr_write_b32 a{i}, 0")
    XR = 48
    hf_addr(p, 14, 15)
    p(f"s_lshl_b32 s35, s23, 16\ns_lshl_b32 s34, s24, 12\ns_add_u32 s35, s35, s34\ns_add_u32 s35, s35, {WS_HF:#x}")
    def reads(k):
        sl = k % K4_RING; b = WA + 8*(k & 1)
        p.wait(vm=f"k{k}")
        for cg, vt in ((0, vT0), (1, vT1)):
            p.ds(f"ds_read_b64_tr_b16 v[{b+4*cg}:{b+4*cg+1}], v{vt} offset:{sl*2048}", f"w{k}")
            p.ds(f"ds_read_b64_tr_b16 v[{b+4*cg+2}:{b+4*cg+3}], v{vt} offset:{sl*2048+1024}", f"w{k}")
    stamp(p, 2)
    reads(0)
    stamp(p, 3)
    for k in range(28):
        pend = loads(k + K4_RING - 1) if k + K4_RING - 1 < 28 else []
        if k == 22:
            def f0(): p.vm(f"buffer_load_dwordx4 v[{XR}:{XR+3}], v14, s[16:19], s35 offen", "xr")
            def f1():
                p("s_add_u32 s31, s35, 32768")
                p.vm(f"buffer_load_dwordx4 v[{XR+4}:{XR+7}], v14, s[16:19], s31 offen", "xr")
            pend += [f0, f1]
        p.wait(ds=f"w{k}")
        sl = k % K4_RING; b = WA + 8*(k & 1)
        first = True
        for cg in range(2):
            for tg in range(2):
                a = 32*cg + 16*tg; h = HB + 8*sl + 4*tg
                p(f"v_mfma_f32_32x32x16_bf16 a[{a}:{a+15}], v[{b+4*cg}:{b+4*cg+3}], v[{h}:{h+3}], a[{a}:{a+15}]")
                if pend: pend.pop(0)()
        while pend: pend.pop(0)()
        if k + 1 < 28: reads(k + 1)
    stamp(p, 4)
    reduce_write(p, K4_WS)
    stamp(p, 5)
    p("v_lshrrev_b32 v12, 3, v0\nv_mul_u32_u24 v12, 272, v12\nv_and_b32 v13, 7, v0\nv_lshlrev_b32 v13, 5, v13\nv_add_u32 v12, v12, v13\nv_add_u32 v13, 0x10000, v12")
    D = [64, 112]
    for ps in range(2): reduce_read(p, K4_WS, ps, D[ps])
    p("v_lshrrev_b32 v9, 3, v0\nv_lshlrev_b32 v9, 10, v9\nv_and_b32 v10, 7, v0\nv_lshlrev_b32 v10, 4, v10\nv_add_u32 v9, v9, v10")
    p("s_lshl_b32 s30, s23, 16\ns_lshl_b32 s31, s24, 7\ns_add_u32 s30, s30, s31")
    p.wait(vm="xr")
    for ps in range(2):
        d = D[ps]
        reduce_sum(p, ps, d)
        add_residual(p, d, XR + 4*ps, d + 8)
        H = d + 16
        for i in range(4): p(f"v_cvt_pk_bf16_f32 v{H+i}, v{d+2*i}, v{d+2*i+1}")
        if ps: p("s_add_u32 s30, s30, 32768")
        p.vm(f"buffer_store_dwordx4 v[{H}:{H+3}], v9, s[12:15], s30 offen", "ost")
    if STAMPS:
        stamp(p, 6)
        p("s_waitcnt vmcnt(0)")
        stamp(p, 7); stamp_rt(p, 8)
        stamp_flush(p, 4, 9, 16)
    p.label("K4_end")
    p("s_endpgm")
    return p, 208, 64


K3_NR = 9
K3_LDS = K3_NR*16384
K3_AHEAD = 2
def k3():
    p = Prog()
    stamp_rt(p, 0); stamp(p, 1)
    prologue(p, "K3_end", [(40, 4), (48, 6), (80, 16)])
    p("s_and_b32 s21, s2, 7\ns_lshr_b32 s22, s2, 3")
    p("s_lshr_b32 s23, s21, 2\ns_lshl_b32 s23, s23, 3\ns_lshr_b32 s24, s22, 2\ns_add_u32 s23, s23, s24")
    p("s_and_b32 s24, s21, 3\ns_lshl_b32 s24, s24, 2\ns_and_b32 s25, s22, 3\ns_add_u32 s24, s24, s25")
    p("s_lshl_b32 s25, s23, 2\ns_add_u32 s25, s25, s20")
    p("s_lshr_b32 s26, s24, 1\ns_mul_i32 s26, s26, 7\ns_and_b32 s27, s24, 1")
    p("s_lshl_b32 s28, s27, 2\ns_add_u32 s28, s28, s26")
    p("s_add_u32 s26, s26, 3")
    H, WF, ACC2, ACC3, T = 64, 192, 16, 48, 224
    vX, vG1, vU1, vG2, vU2 = 2, 3, 4, 5, 6
    vL = [7, 8, 9, 10]
    vC = [11, 12, 13, 14]
    p(f"v_lshlrev_b32 v{vX}, 4, v1")
    p(f"v_lshrrev_b32 v{vG1}, 3, v1\nv_mul_u32_u24 v{vG1}, 3584, v{vG1}")
    p(f"v_bfe_u32 v15, v1, 4, 1\nv_lshlrev_b32 v15, 2, v15\nv_xor_b32 v15, v15, v1\nv_and_b32 v15, 7, v15\nv_lshlrev_b32 v15, 4, v15")
    p(f"v_xor_b32 v{vU1}, 32, v15\nv_add_u32 v{vU1}, v{vU1}, v{vG1}\nv_add_u32 v{vG1}, v{vG1}, v15")
    p(f"v_lshrrev_b32 v{vG2}, 2, v1\nv_mul_u32_u24 v{vG2}, 3584, v{vG2}\nv_and_b32 v15, 3, v1\nv_lshlrev_b32 v15, 4, v15")
    p(f"v_xor_b32 v{vU2}, 32, v15\nv_add_u32 v{vU2}, v{vU2}, v{vG2}\nv_add_u32 v{vG2}, v{vG2}, v15")
    p("s_mul_i32 s29, s20, 57344\ns_lshl_b32 s30, s28, 6\ns_add_u32 s29, s29, s30")
    p("s_mul_i32 s30, s20, 114688\ns_add_u32 s31, s28, 2\ns_lshl_b32 s31, s31, 6\ns_add_u32 s32, s30, s31")
    p("s_lshl_b32 s31, s26, 6\ns_add_u32 s33, s30, s31")
    p("s_lshl_b32 s34, s20, 11")
    p(f"s_lshl_b32 s35, s25, 15\ns_add_u32 s35, s35, {WS_HF:#x}")
    p(f"s_mul_i32 s36, s25, {112*1024}\ns_add_u32 s36, s36, {WS_HH:#x}")
    p(f"s_lshl_b32 s37, s28, 11\ns_add_u32 s37, s37, s36")
    p(f"s_lshl_b32 s38, s26, 11\ns_lshl_b32 s39, s27, 10\ns_add_u32 s38, s38, s39\ns_add_u32 s38, s38, s36")
    p(f"s_lshl_b32 s39, s25, 11\ns_add_u32 s39, s39, {WS_ST:#x}")
    p("v_and_b32 v15, 31, v1\nv_lshlrev_b32 v15, 6, v15\nv_lshrrev_b32 v11, 5, v1\nv_lshlrev_b32 v11, 5, v11\nv_add_u32 v15, v15, v11")
    p("s_waitcnt lgkmcnt(0)")
    srd(p, 8, 4, 5, 512*1792*2)
    srd(p, 12, 6, 7, 512*1792*2)
    srd(p, 16, 16, 17, WS_SIZE)
    ST = T
    p.vm(f"buffer_load_dwordx4 v[{ST}:{ST+3}], v15, s[16:19], s39 offen", "st")
    p.vm(f"buffer_load_dwordx4 v[{ST+4}:{ST+7}], v15, s[16:19], s39 offen offset:16", "st")
    def slot_loads(s):
        L = []
        base = (s % K3_NR)*16384
        if s < 8:
            for M, vs, rs in ((0, vG1, 8), (1, vU1, 12)):
                for n in range(2):
                    def f(M=M, vs=vs, rs=rs, n=n):
                        p(f"s_add_u32 s40, s29, {(64*s + 8*n)*3584}\ns_add_u32 m0, s34, {base + M*8192 + n*1024}")
                        p.vm(f"buffer_load_dwordx4 v{vs}, s[{rs}:{rs+3}], s40 offen lds", f"s{s}")
                    L.append(f)
            for q in range(4):
                def f(ks=4*s+q):
                    p(f"s_add_u32 s40, s35, {ks*1024}")
                    p.vm(f"buffer_load_dwordx4 v[{H+4*ks}:{H+4*ks+3}], v{vX}, s[16:19], s40 offen", f"s{s}")
                L.append(f)
        else:
            sb = 32 if s < 12 else 33
            k0 = 128*((s - 8) % 4)
            for M, vs, rs in ((0, vG2, 8), (1, vU2, 12)):
                for n in range(2):
                    def f(M=M, vs=vs, rs=rs, n=n):
                        p(f"s_add_u32 s40, s{sb}, {(k0 + 16*n)*3584}\ns_add_u32 m0, s34, {base + M*8192 + n*1024}")
                        p.vm(f"buffer_load_dwordx4 v{vs}, s[{rs}:{rs+3}], s40 offen lds", f"s{s}")
                    L.append(f)
        return L
    for s_ in range(K3_AHEAD):
        for f in slot_loads(s_): f()
    a0 = vL[0]
    p(f"v_bfe_u32 v{a0}, v1, 4, 1\nv_lshlrev_b32 v11, 13, v{a0}")
    p(f"v_bfe_u32 v12, v1, 3, 1\nv_lshlrev_b32 v12, 1, v12\nv_add_u32 v12, v12, v{a0}\nv_lshlrev_b32 v12, 5, v12")
    p(f"v_lshrrev_b32 v13, 5, v1\nv_lshlrev_b32 v13, 3, v13\nv_bfe_u32 v14, v1, 2, 2\nv_add_u32 v13, v13, v14")
    p(f"v_and_b32 v14, 3, v1\nv_lshlrev_b32 v14, 3, v14\nv_add_u32 v11, v11, v14")
    p(f"v_lshlrev_b32 v14, 7, v13\nv_add_u32 v14, v14, v11\nv_add_u32 v{a0}, v14, v12")
    for u in range(1, 4): p(f"v_xor_b32 v{vL[u]}, {u*32}, v{a0}")
    vL2 = 15
    p(f"v_lshlrev_b32 v14, 6, v13\nv_add_u32 v14, v14, v11\nv_bfe_u32 v12, v1, 4, 1\nv_lshlrev_b32 v12, 5, v12")
    p.wait(vm="st")
    p(f"v_add_u32 v{vL2}, v14, v12")
    MEAN, RSTD, NB = T + 8, T + 9, T + 10
    p(f"v_add_f32 v{MEAN}, v{ST}, v{ST+2}\nv_add_f32 v{RSTD}, v{ST+4}, v{ST+6}\nv_add_f32 v{MEAN}, v{MEAN}, v{RSTD}")
    p(f"v_mov_b32 v{NB}, v{MEAN}\nv_permlane32_swap_b32 v{MEAN}, v{NB}\nv_add_f32 v{MEAN}, v{MEAN}, v{NB}\nv_mul_f32 v{MEAN}, 0x3e000000, v{MEAN}")
    for i in range(4): p(f"v_sub_f32 v{ST+2*i}, v{ST+2*i}, v{MEAN}")
    p(f"v_mul_f32 v{RSTD}, v{ST}, v{ST}")
    for i in range(1, 4): p(f"v_fmac_f32 v{RSTD}, v{ST+2*i}, v{ST+2*i}")
    p(f"v_mul_f32 v{RSTD}, 0x42800000, v{RSTD}")
    for i in range(4): p(f"v_add_f32 v{RSTD}, v{RSTD}, v{ST+2*i+1}")
    p(f"v_mov_b32 v{NB}, v{RSTD}\nv_permlane32_swap_b32 v{RSTD}, v{NB}\nv_add_f32 v{RSTD}, v{RSTD}, v{NB}")
    p(f"v_mov_b32 v{NB}, 0x3727c5ac\nv_fmac_f32 v{NB}, 0x3b000000, v{RSTD}\nv_rsq_f32 v{RSTD}, v{NB}")
    p(f"v_mul_f32 v{NB}, v{MEAN}, v{RSTD}\nv_sub_f32 v{NB}, 0, v{NB}")
    for i in range(64): p(f"v_accvgpr_write_b32 a{i}, 0")
    for i in range(48): p(f"v_mov_b32 v{ACC2+i}, 0")
    NT = T + 12
    def norm_ops(ks):
        L = []
        for i in range(4):
            r = H + 4*ks + i
            L.append(f"v_lshlrev_b32 v{NT+2*i}, 16, v{r}"); L.append(f"v_and_b32 v{NT+2*i+1}, 0xffff0000, v{r}")
        for i in range(8): L.append(f"v_fma_f32 v{NT+i}, v{NT+i}, v{RSTD}, v{NB}")
        for i in range(4): L.append(f"v_cvt_pk_bf16_f32 v{H+4*ks+i}, v{NT+2*i}, v{NT+2*i+1}")
        return L
    ET = T
    outsel = [0]
    def glu_ops(acc, is_a, sbase, off):
        L = []
        o = 244 + 4*(outsel[0] & 1); outsel[0] += 1
        for half in range(2):
            js = range(4*half, 4*half + 4)
            if is_a:
                for j in js: L.append(f"v_accvgpr_read_b32 v{ET+j%4}, a{acc+j}")
                for j in js: L.append(f"v_mul_f32 v{ET+j%4}, 0xbfb8aa3b, v{ET+j%4}")
            else:
                for j in js: L.append(f"v_mul_f32 v{ET+j%4}, 0xbfb8aa3b, v{acc+j}")
            for j in js: L.append(f"v_exp_f32 v{ET+j%4}, v{ET+j%4}")
            if is_a:
                for j in js: L.append(f"v_accvgpr_read_b32 v{ET+4+j%4}, a{acc+8+j}")
            for j in js: L.append(f"v_add_f32 v{ET+j%4}, 1.0, v{ET+j%4}")
            for j in js: L.append(f"v_rcp_f32 v{ET+j%4}, v{ET+j%4}")
            for j in js:
                u = f"v{ET+4+j%4}" if is_a else f"v{acc+8+j}"
                L.append(f"v_mul_f32 v{ET+j%4}, {u}, v{ET+j%4}")
            for jj in range(2): L.append(f"v_cvt_pk_bf16_f32 v{o+2*half+jj}, v{ET+2*jj}, v{ET+2*jj+1}")
        L.append(("store", f"s_add_u32 s41, s{sbase}, {off}", f"buffer_store_dwordx4 v[{o}:{o+3}], v{vX}, s[16:19], s41 offen"))
        return L
    def emit(x):
        if isinstance(x, tuple):
            p(x[1]); p.vm(x[2], "hh")
        else: p(x)
    steps = []
    for s_ in range(8):
        for q in range(4): steps.append((s_, q, 4*s_+q, 1))
    for s_ in range(8, 16):
        for q in range(8): steps.append((s_, q, 8*((s_-8) % 4)+q, 2 if s_ < 12 else 3))
    def set_bases(s_):
        base = (s_ % K3_NR)*16384
        if s_ < 8:
            for u in range(4): p(f"v_add_u32 v{vC[u]}, {base}, v{vL[u]}")
        elif s_ < 12:
            p(f"v_add_u32 v{vC[0]}, {base}, v{vL2}\nv_xor_b32 v{vC[1]}, 32, v{vC[0]}")
        else:
            p(f"s_lshl_b32 s42, s27, 5\nv_add_u32 v{vC[0]}, {base}, v{vL2}\nv_xor_b32 v{vC[0]}, s42, v{vC[0]}")
    def reads(idx):
        s_, q, ks, ps = steps[idx]
        b = WF + 16*(idx & 1)
        nf = {1: 4, 2: 2, 3: 1}[ps]
        for u in range(nf):
            off = q*2048 if ps == 1 else q*1024
            d = 512 if ps == 1 else 256
            p.ds(f"ds_read_b64_tr_b16 v[{b+4*u}:{b+4*u+1}], v{vC[u]} offset:{off}", f"k{idx}")
            p.ds(f"ds_read_b64_tr_b16 v[{b+4*u+2}:{b+4*u+3}], v{vC[u]} offset:{off+d}", f"k{idx}")
    stamp(p, 2)
    p.wait(vm="s0"); p("s_barrier"); set_bases(0); reads(0)
    for x in norm_ops(0): p(x)
    stamp(p, 3)
    pend = []; fill = []
    for idx, (s_, q, ks, ps) in enumerate(steps):
        if q == 0 and s_ + K3_AHEAD < 16: pend += slot_loads(s_ + K3_AHEAD)
        if idx + 1 < len(steps):
            if steps[idx+1][0] != s_:
                p.wait(vm=f"s{s_+1}"); p("s_barrier"); set_bases(s_ + 1)
            reads(idx + 1)
        if ps == 1 and ks + 1 < 32: fill += norm_ops(ks + 1)
        if ps == 2 and s_ == 8 and q == 0:
            for u in range(4): fill += glu_ops(16*u, True, 37, u*1024)
        if ps == 3 and s_ == 12 and q == 0:
            if STAMPS: stamp(p, 5)
            for u in range(2): fill += glu_ops(ACC2 + 16*u, False, 37, (4+u)*1024)
        if ps == 2 and s_ == 8 and q == 0 and STAMPS: stamp(p, 4)
        p.wait(ds=f"k{idx}")
        b = WF + 16*(idx & 1)
        nf = {1: 4, 2: 2, 3: 1}[ps]
        remaining_mfma = sum({1: 4, 2: 2, 3: 1}[x[3]] for x in steps[idx:] if x[3] == ps)
        for u in range(nf):
            if ps == 1: acc = f"a[{16*u}:{16*u+15}]"
            elif ps == 2: acc = f"v[{ACC2+16*u}:{ACC2+16*u+15}]"
            else: acc = f"v[{ACC3}:{ACC3+15}]"
            p(f"v_mfma_f32_32x32x16_bf16 {acc}, v[{b+4*u}:{b+4*u+3}], v[{H+4*ks}:{H+4*ks+3}], {acc}")
            if pend and (ps != 1 or u % 2 == 0 or len(pend) > 2*(4 - q)): pend.pop(0)()
            if ps == 1: n = 5
            else: n = -(-len(fill) // max(remaining_mfma - u - 2, 1))
            for _ in range(min(n, len(fill))): emit(fill.pop(0))
        if ps == 1:
            while fill: emit(fill.pop(0))
    while pend: pend.pop(0)()
    while fill: emit(fill.pop(0))
    stamp(p, 6)
    for x in glu_ops(ACC3, False, 38, 0): emit(x)
    if STAMPS:
        p("s_waitcnt vmcnt(0)")
        stamp(p, 7); stamp_rt(p, 8)
        stamp_flush(p, 3, 9, 16)
    p.label("K3_end")
    p("s_endpgm")
    return p, 256, 64

KERNELS = [("k0_kernel", k0, 256, 256, 0), ("k1_kernel", k1, 256, 256, K1_LDS), ("k2_kernel", k2, 256, 256, K2_LDS), ("k3_kernel", k3, 256, 256, K3_LDS), ("k4_kernel", k4, 256, 256, K4_LDS)]

def build(kernels=None):
    kernels = kernels or KERNELS
    head = []
    body = []; descs = []
    for name, fn, grid, block, lds in kernels:
        head.append(f"; @launch kernel={name} grid=({grid},1,1) block=({block},1,1) lds={lds}")
        p, vg, ag = fn()
        t, d = kernel_text(name, p, vg, ag)
        body.append(t); descs.append(d)
        print(f"{name}: {p.count()} instrs, {p.nops} nop states", file=sys.stderr)
    txt = "\n".join(head) + '\n.amdgcn_target "amdgcn-amd-amdhsa--gfx950"\n' + "".join(body)
    txt += '.section .rodata,"a"\n'
    for d in descs: txt += ".p2align 6\n" + d
    return txt

if __name__ == "__main__":
    if "--stamps" in sys.argv:
        STAMPS = True; sys.argv.remove("--stamps")
    out = sys.argv[1] if len(sys.argv) > 1 else "out.s"
    open(out, "w").write(build())
```

```python
import re

REG_RE = re.compile(r'^(-?)(abs\()?([vas])(\d+)\)?$')
RNG_RE = re.compile(r'^([vas])\[(\d+):(\d+)\]$')

def regs_of(op):
    op = op.strip()
    if op.startswith('-'): op = op[1:]
    if op.startswith('abs(') and op.endswith(')'): op = op[4:-1]
    if op.startswith('|') and op.endswith('|'): op = op[1:-1]
    m = RNG_RE.match(op)
    if m: return [(m.group(1), i) for i in range(int(m.group(2)), int(m.group(3)) + 1)]
    m = re.match(r'^([vas])(\d+)$', op)
    if m: return [(m.group(1), int(m.group(2)))]
    if op in ('vcc', 'vcc_lo', 'vcc_hi'): return [('x', 'vcc')]
    if op in ('exec', 'exec_lo', 'exec_hi'): return [('x', 'exec')]
    if op == 'm0': return [('x', 'm0')]
    return []

TRANS = ('v_exp_f32', 'v_log_f32', 'v_rcp_f32', 'v_rsq_f32', 'v_sqrt_f32', 'v_sin_f32', 'v_cos_f32', 'v_rcp_iflag_f32')
def mfma_passes(mn):
    if '32x32x16' in mn or '32x32x8' in mn: return 8
    if '16x16x32' in mn or '16x16x16' in mn: return 4
    if '4x4x4' in mn: return 2
    raise ValueError(mn)

class Ins:
    __slots__ = ('text', 'mn', 'ops', 'cls', 'wr', 'rd', 'A', 'B', 'C', 'D', 'passes', 'trans', 'dpp', 'perm', 'lane', 'wide_store', 'lds_dma', 'states', 'mask_rd')
    def __init__(self, text):
        self.text = text
        t = text.split(';')[0].strip()
        parts = t.split(None, 1)
        mn = parts[0]; self.mn = mn
        rest = parts[1] if len(parts) > 1 else ''
        ops = []; depth = 0; cur = ''
        for ch in rest:
            if ch == '[': depth += 1
            if ch == ']': depth -= 1
            if ch == ',' and depth == 0: ops.append(cur.strip()); cur = ''
            else: cur += ch
        if cur.strip(): ops.append(cur.strip())
        mods = ''
        if ops:
            last = ops[-1].split(None, 1)
            ops[-1] = last[0]
            if len(last) > 1: mods = last[1]
        self.ops = ops
        mo = re.search(r'offset:(\d+)', mods)
        if mo:
            lim = 4095 if (mn.startswith('buffer_') or mn.startswith('global_')) else 65535
            assert int(mo.group(1)) <= lim, "offset out of range: " + text
        self.wr = set(); self.rd = set(); self.A = self.B = self.C = self.D = None
        self.passes = 0; self.trans = False; self.dpp = False; self.perm = False; self.lane = False
        self.wide_store = set(); self.lds_dma = False; self.states = 1; self.mask_rd = set()
        R = lambda i: regs_of(ops[i]) if i < len(ops) else []
        if mn == 's_nop':
            self.cls = 'nop'; self.states = int(ops[0], 0) + 1
        elif mn.startswith('v_mfma'):
            self.cls = 'mfma'; self.passes = mfma_passes(mn)
            self.D = R(0); self.A = R(1); self.B = R(2); self.C = R(3)
            self.wr = set(self.D); self.rd = set(self.A) | set(self.B) | set(self.C)
        elif mn.startswith('v_'):
            self.cls = 'valu'
            base = mn.replace('_e32', '').replace('_e64', '').replace('_dpp', '').replace('_sdwa', '')
            self.trans = base in TRANS
            self.dpp = '_dpp' in mn or 'quad_perm' in mods or 'row_' in mods
            if base.startswith('v_cmp'):
                self.wr = set(R(0)); self.rd = set(R(1)) | set(R(2))
                if base.startswith('v_cmpx'): self.wr.add(('x', 'exec'))
            elif base.startswith('v_permlane'):
                self.perm = True
                self.wr = set(R(0)) | set(R(1)); self.rd = set(self.wr)
            elif base in ('v_readfirstlane_b32', 'v_readlane_b32'):
                self.lane = True
                self.wr = set(R(0)); self.rd = set(R(1)) | set(R(2))
            elif base in ('v_add_co_u32', 'v_sub_co_u32', 'v_subrev_co_u32'):
                self.wr = set(R(0)) | set(R(1)); self.rd = set(R(2)) | set(R(3))
            elif base in ('v_addc_co_u32', 'v_subb_co_u32'):
                self.wr = set(R(0)) | set(R(1)); self.rd = set(R(2)) | set(R(3)) | set(R(4))
            elif base == 'v_cndmask_b32':
                self.wr = set(R(0)); self.rd = set(R(1)) | set(R(2))
                self.mask_rd = set(R(3)) if len(ops) > 3 else {('x', 'vcc')}
                self.rd |= self.mask_rd
            else:
                self.wr = set(R(0))
                for i in range(1, len(ops)): self.rd |= set(R(i))
                if base in ('v_fmac_f32', 'v_dot2c_f32_bf16', 'v_pk_fmac_f16', 'v_writelane_b32') or self.dpp or 'UNUSED_PRESERVE' in mods:
                    self.rd |= self.wr
        elif mn.startswith('buffer_') or mn.startswith('global_'):
            self.cls = 'vmem'
            lds = bool(re.search(r'\blds\b', mods)) or '_lds_' in mn
            self.lds_dma = lds
            if mn in ('buffer_inv', 'buffer_wbl2'):
                pass
            elif mn.startswith('buffer_load'):
                if lds:
                    for i in range(len(ops)): self.rd |= set(R(i))
                    self.rd.add(('x', 'm0'))
                else:
                    self.wr = set(R(0))
                    for i in range(1, len(ops)): self.rd |= set(R(i))
            elif mn.startswith('buffer_store') or mn.startswith('buffer_atomic'):
                for i in range(len(ops)): self.rd |= set(R(i))
                if 'sc0' in mods and mn.startswith('buffer_atomic'): self.wr = set(R(0))
                if 'x4' in mn or 'x3' in mn: self.wide_store = set(R(0))
            elif mn.startswith('global_load'):
                self.wr = set(R(0))
                for i in range(1, len(ops)): self.rd |= set(R(i))
            elif mn.startswith('global_store') or mn.startswith('global_atomic'):
                for i in range(len(ops)): self.rd |= set(R(i))
                if 'x4' in mn or 'x3' in mn: self.wide_store = set(R(1))
            else: raise ValueError(text)
        elif mn.startswith('ds_'):
            self.cls = 'ds'
            if mn.startswith('ds_read') or mn.startswith('ds_bpermute') or mn.startswith('ds_swizzle'):
                self.wr = set(R(0))
                for i in range(1, len(ops)): self.rd |= set(R(i))
            else:
                for i in range(len(ops)): self.rd |= set(R(i))
        elif mn.startswith('s_'):
            self.cls = 'salu'
            nodst = ('s_cmp', 's_cbranch', 's_branch', 's_waitcnt', 's_barrier', 's_endpgm', 's_setprio', 's_sleep', 's_bitcmp')
            if mn.startswith(nodst):
                for i in range(len(ops)): self.rd |= set(R(i))
            else:
                self.wr = set(R(0))
                for i in range(1, len(ops)): self.rd |= set(R(i))
                if 'saveexec' in mn: self.wr.add(('x', 'exec'))
        else:
            raise ValueError("unknown instruction: " + text)

XDL_RAW = {2: 5, 4: 8, 8: 12, 16: 20}
XDL_COVL = {2: 4, 4: 6, 8: 10, 16: 18}
XDL_WAR = {2: 1, 4: 3, 8: 7, 16: 15}

def need(p, c):
    n = 0
    vg = lambda s: {r for r in s if r[0] in 'va'}
    sg = lambda s: {r for r in s if r[0] == 's' or r == ('x', 'vcc')}
    if p.cls == 'valu':
        w = vg(p.wr)
        if c.cls == 'mfma' and w & c.rd: n = max(n, 2)
        if c.cls == 'valu':
            if p.trans and not c.trans and (w & c.rd): n = max(n, 1)
            if p.trans and c.trans and (w & c.rd): n = max(n, 1)
            if (c.perm or c.dpp) and (w & c.rd): n = max(n, 2)
            if c.lane and (w & c.rd): n = max(n, 1)
            if sg(p.wr) & c.rd: n = max(n, 4 if c.lane else 2)
            if ('x', 'exec') in p.wr and (c.dpp or c.lane or c.perm): n = max(n, 5)
        if c.cls == 'vmem' and (sg(p.wr) & c.rd): n = max(n, 5)
        if c.cls == 'salu' and (sg(p.wr) & c.rd): n = max(n, 2)
        if c.cls == 'mfma' and ('x', 'exec') in p.wr: n = max(n, 4)
    if p.cls == 'mfma':
        D = set(p.D)
        if c.cls == 'mfma':
            if D & (set(c.A) | set(c.B)): n = max(n, XDL_RAW[p.passes])
            if D & set(c.C):
                if list(p.D) == list(c.C) and p.passes == c.passes: n = max(n, 2 if p.passes == 2 else 0)
                else: n = max(n, XDL_COVL[p.passes])
            elif D & set(c.D):
                n = max(n, XDL_COVL[p.passes])
        elif c.cls in ('valu', 'vmem', 'ds'):
            if D & (c.rd | c.wr): n = max(n, XDL_RAW[p.passes])
            if c.cls == 'valu' and (set(p.C) & c.wr): n = max(n, XDL_WAR[p.passes])
    if p.cls == 'salu':
        if ('x', 'm0') in p.wr and c.lds_dma: n = max(n, 1)
    if p.cls == 'vmem' and p.wide_store:
        if p.wide_store & c.wr: n = max(n, 2 if c.cls == 'valu' else 1)
    return n

class Prog:
    def __init__(self):
        self.items = []
        self.vmq = []
        self.dsq = []
        self.uid = 0
    def __call__(self, text):
        for t in text.split('\n'):
            t = t.strip()
            if t: self.items.append(Ins(t))
    def label(self, name): self.items.append(('label', name))
    def newlabel(self, p='L'):
        self.uid += 1; return f"{p}{self.uid}"
    def vm(self, text, tag=None):
        self(text); self.vmq.append(tag)
    def ds(self, text, tag=None):
        self(text); self.dsq.append(tag)
    def _cnt(self, q, tags):
        if not isinstance(tags, (list, tuple, set)): tags = [tags]
        last = -1
        for i, t in enumerate(q):
            if t in tags: last = i
        return last
    def wait(self, vm=None, ds=None):
        parts = []
        if vm is not None:
            last = self._cnt(self.vmq, vm)
            if last >= 0:
                n = len(self.vmq) - 1 - last
                parts.append(f"vmcnt({min(n, 63)})")
                self.vmq = self.vmq[len(self.vmq) - min(n, 63):] if min(n, 63) > 0 else []
        if ds is not None:
            last = self._cnt(self.dsq, ds)
            if last >= 0:
                n = len(self.dsq) - 1 - last
                parts.append(f"lgkmcnt({min(n, 15)})")
                self.dsq = self.dsq[len(self.dsq) - min(n, 15):] if min(n, 15) > 0 else []
        if parts: self("s_waitcnt " + " ".join(parts))
    def wait_all(self, vm=True, ds=True):
        parts = []
        if vm: parts.append("vmcnt(0)"); self.vmq = []
        if ds: parts.append("lgkmcnt(0)"); self.dsq = []
        self("s_waitcnt " + " ".join(parts))
    def finalize(self):
        out = []; hist = []
        nops = 0
        for it in self.items:
            if isinstance(it, tuple):
                out.append(it); continue
            req = 0; dist = 0
            for p in reversed(hist):
                if dist >= 20: break
                n = need(p, it)
                if n - dist > req: req = n - dist
                dist += p.states
            while req > 0:
                k = min(req, 16)
                nop = Ins(f"s_nop {k-1}")
                out.append(nop); hist.append(nop); req -= k; nops += k
            out.append(it); hist.append(it)
            if len(hist) > 40: hist = hist[-30:]
        self.nops = nops
        return out
    def text(self):
        lines = []
        for it in self.finalize():
            if isinstance(it, tuple): lines.append(it[1] + ":")
            else: lines.append(" " + it.text)
        return "\n".join(lines) + "\n"
    def count(self):
        return sum(1 for it in self.items if not isinstance(it, tuple))

def kernel_text(name, prog, vgpr, agpr=0, sgpr=96):
    accum = (vgpr + 3) // 4 * 4
    nfv = accum + agpr if agpr else vgpr
    return f""".text
.globl {name}
.p2align 8
.type {name},@function
{name}:
{prog.text()}""", f""".amdhsa_kernel {name}
  .amdhsa_next_free_vgpr {nfv}
  .amdhsa_next_free_sgpr {sgpr}
  .amdhsa_accum_offset {accum}
  .amdhsa_group_segment_fixed_size 0
  .amdhsa_kernarg_size 88
  .amdhsa_user_sgpr_count 2
  .amdhsa_user_sgpr_kernarg_segment_ptr 1
  .amdhsa_system_sgpr_workgroup_id_x 1
  .amdhsa_float_denorm_mode_32 3
.end_amdhsa_kernel
"""
```

```python
import sys
from dsl import Prog, kernel_text

NAME = "sequential_preLN__linear_kernel_hedgehog__glu_gated_glu__prompt"
WS_XN   = 0x000000
WS_OF   = 0x200000
WS_KV   = 0x400000
WS_HF   = 0x500000
WS_ST   = 0x700000
WS_HH   = 0x800000
WS_CS   = 0xF00000
WS_RS   = 0xF10000
WS_FL   = 0xF20000
WS_EP   = 0xF30000
WS_F1   = 0xF80000
WS_CNT  = 0xF90000
WS_GO   = 0xFA0000
WS_DBG  = 0xF40000
WS_SIZE = 0x1000000
assert True
F1, F2, F3, F4, F5, F6 = (WS_FL + i*4096 for i in range(6))
LOG2E = 0x3fb8aa3b
STAMPS = False
TOUCH = True
PACE0 = 40
DELAY0 = 0
PACE = 40
SLEEP = 2
NSTAMP = [0]
SPIN = 1 << 18

S_WAVE, S_X, S_I, S_TAG = 20, 21, 22, 60
P_X, P_WQKV, P_WPHI, P_WO, P_WG, P_WU, P_WD, P_OUT, P_WS = 64, 66, 68, 70, 74, 76, 78, 80, 84
R_WS = 4

def srd(p, d, ptr, size, shift=0):
    if shift:
        p(f"s_sub_u32 s{d}, s{ptr}, {shift}\ns_subb_u32 s{d+1}, s{ptr+1}, 0\ns_and_b32 s{d+1}, s{d+1}, 0xffff")
    else:
        p(f"s_mov_b32 s{d}, s{ptr}\ns_and_b32 s{d+1}, s{ptr+1}, 0xffff")
    p(f"s_mov_b32 s{d+2}, {size + shift:#x}\ns_mov_b32 s{d+3}, 0x20000")

def stamp(p, name):
    if not STAMPS: return
    i = NSTAMP[0]; NSTAMP[0] += 1
    STAMP_NAMES.append(name)
    p(f"s_memtime s[98:99]\ns_waitcnt lgkmcnt(0)\nv_writelane_b32 v255, s98, {i}")
STAMP_NAMES = []

def flag_store(p, arr, sblock, sword, vt=(2, 3)):
    p(f"s_lshl_b32 s58, s{sblock}, 8\ns_lshl_b32 s59, s{sword}, 2\ns_add_u32 s58, s58, s59\ns_add_u32 s58, s58, {arr:#x}")
    p(f"v_mov_b32 v{vt[0]}, s{S_TAG}\nv_mov_b32 v{vt[1]}, 0")
    p("s_mov_b64 exec, 1")
    p.vm(f"buffer_store_dword v{vt[0]}, v{vt[1]}, s[{R_WS}:{R_WS+3}], s58 offen sc1", "flag")
    p("s_mov_b64 exec, -1")

def poll(p, arr, sblock, nwords=64, extra=None, vt=(2, 3), barrier=True, always=False, arr2=None):
    L = p.newlabel("PL"); D = p.newlabel("PD")
    if not always: p(f"s_cmp_lg_u32 s{S_WAVE}, 0\ns_cbranch_scc1 {D}")
    if arr2 is not None:
        p(f"s_lshl_b32 s55, s{arr2[1]}, 8\ns_add_u32 s55, s55, {arr2[0]:#x}\nv_and_b32 v18, 63, v0\nv_min_u32 v18, {arr2[2]-1}, v18\nv_lshlrev_b32 v18, 2, v18")
    p(f"s_lshl_b32 s58, s{sblock}, 8\ns_add_u32 s58, s58, {arr:#x}")
    p(f"v_and_b32 v{vt[0]}, 63, v0")
    if nwords < 64: p(f"v_min_u32 v{vt[0]}, {nwords-1}, v{vt[0]}")
    p(f"v_lshlrev_b32 v{vt[0]}, 2, v{vt[0]}")
    if extra is not None:
        pass
    p(f"s_mov_b32 s59, {SPIN}")
    p.label(L)
    p(f"buffer_load_dword v{vt[1]}, v{vt[0]}, s[{R_WS}:{R_WS+3}], s58 offen sc1")
    if extra is not None:
        p(f"v_mov_b32 v19, 0\nbuffer_load_dword v19, v19, s[{R_WS}:{R_WS+3}], s{extra} offen sc1")
    if arr2 is not None:
        p(f"buffer_load_dword v19, v18, s[{R_WS}:{R_WS+3}], s55 offen sc1")
    p("s_waitcnt vmcnt(0)")
    p(f"v_cmp_ne_u32 vcc, s{S_TAG}, v{vt[1]}")
    if extra is not None or arr2 is not None:
        p(f"v_cmp_ne_u32 s[56:57], s{S_TAG}, v19\ns_or_b64 vcc, vcc, s[56:57]")
    p(f"s_cbranch_vccz {D}")
    if SLEEP: p(f"s_sleep {SLEEP}")
    p(f"s_sub_u32 s59, s59, 1\ns_cmp_lg_u32 s59, 0\ns_cbranch_scc1 {L}")
    p.label(D)
    if barrier: p("s_barrier")

def paced(p, fns):
    for f in fns:
        n0 = len(p.vmq)
        f()
        if len(p.vmq) > PACE:
            p(f"s_waitcnt vmcnt({PACE})"); p.vmq = p.vmq[-PACE:]

def poll_with_bulk(p, bulk, *args, **kw):
    A = p.newlabel("BK"); B = p.newlabel("BK")
    q0 = list(p.vmq)
    p(f"s_cmp_eq_u32 s{S_WAVE}, 0\ns_cbranch_scc1 {A}")
    bulk()
    q1 = list(p.vmq)
    p.label(A)
    poll(p, *args, **kw)
    p(f"s_cmp_lg_u32 s{S_WAVE}, 0\ns_cbranch_scc1 {B}")
    p.vmq = list(q0)
    bulk()
    p.label(B)
    p.vmq = q1

def arrive(p, k, sblock, n):
    D = p.newlabel("AR")
    p("s_barrier")
    p(f"s_cmp_lg_u32 s{S_WAVE}, 0\ns_cbranch_scc1 {D}")
    p(f"s_lshl_b32 s58, s{sblock}, 9\ns_add_u32 s58, s58, {WS_CNT + k*128:#x}\nv_mov_b32 v2, 1\nv_mov_b32 v3, 0\ns_mov_b64 exec, 1")
    p(f"buffer_atomic_add v2, v3, s[{R_WS}:{R_WS+3}], s58 offen sc0 sc1\ns_waitcnt vmcnt(0)\nv_readfirstlane_b32 s59, v2\ns_mov_b64 exec, -1")
    p(f"s_cmp_lg_u32 s59, {n-1}\ns_cbranch_scc1 {D}")
    p(f"s_lshl_b32 s58, s{sblock}, 7\ns_add_u32 s58, s58, {WS_GO + k*2048:#x}\nv_mov_b32 v2, s{S_TAG}\ns_mov_b64 exec, 1")
    p(f"buffer_store_dword v2, v3, s[{R_WS}:{R_WS+3}], s58 offen sc1\ns_mov_b64 exec, -1")
    p.label(D)

def wait_go(p, k, sblock, arr2=None, bulk=None):
    A = p.newlabel("BK"); B = p.newlabel("BK"); L = p.newlabel("PL"); D = p.newlabel("PD")
    q0 = list(p.vmq)
    p(f"s_cmp_eq_u32 s{S_WAVE}, 0\ns_cbranch_scc1 {A}")
    if bulk:
        p("s_sleep 1")
        bulk()
    q1 = list(p.vmq)
    p(f"s_branch {D}")
    p.label(A)
    p(f"s_lshl_b32 s58, s{sblock}, 7\ns_add_u32 s58, s58, {WS_GO + k*2048:#x}\nv_mov_b32 v2, 0\ns_mov_b32 s59, {SPIN}")
    if arr2 is not None:
        p(f"s_lshl_b32 s55, s{arr2[1]}, 8\ns_add_u32 s55, s55, {arr2[0]:#x}\nv_and_b32 v18, 63, v0\nv_min_u32 v18, {arr2[2]-1}, v18\nv_lshlrev_b32 v18, 2, v18")
    p.label(L)
    p(f"buffer_load_dword v3, v2, s[{R_WS}:{R_WS+3}], s58 offen sc1")
    if arr2 is not None: p(f"buffer_load_dword v19, v18, s[{R_WS}:{R_WS+3}], s55 offen sc1")
    p(f"s_waitcnt vmcnt(0)\nv_cmp_ne_u32 vcc, s{S_TAG}, v3")
    if arr2 is not None: p(f"v_cmp_ne_u32 s[56:57], s{S_TAG}, v19\ns_or_b64 vcc, vcc, s[56:57]")
    p(f"s_cbranch_vccz {D}")
    if SLEEP: p(f"s_sleep {SLEEP}")
    p(f"s_sub_u32 s59, s59, 1\ns_cmp_lg_u32 s59, 0\ns_cbranch_scc1 {L}")
    p.label(D)
    p("s_barrier")
    if bulk:
        p(f"s_cmp_lg_u32 s{S_WAVE}, 0\ns_cbranch_scc1 {B}")
        p.vmq = list(q0)
        bulk()
        p.label(B)
    p.vmq = q1

def wave_sum(p, regs, tmp):
    for ctl in ("quad_perm:[1,0,3,2]", "quad_perm:[2,3,0,1]", "row_half_mirror", "row_mirror"):
        for r in regs: p(f"v_add_f32_dpp v{r}, v{r}, v{r} {ctl} row_mask:0xf bank_mask:0xf")
    for sw in ("v_permlane16_swap_b32", "v_permlane32_swap_b32"):
        for r, t in zip(regs, tmp): p(f"v_mov_b32 v{t}, v{r}")
        for r, t in zip(regs, tmp): p(f"{sw} v{r}, v{t}")
        for r, t in zip(regs, tmp): p(f"v_add_f32 v{r}, v{r}, v{t}")

def tr_addr(p, dst, tmp, pitch, hrows):
    p(f"v_lshrrev_b32 v{dst}, 5, v1\nv_mul_u32_u24 v{dst}, {hrows}, v{dst}\nv_bfe_u32 v{tmp}, v1, 2, 2\nv_add_u32 v{dst}, v{dst}, v{tmp}\nv_mul_u32_u24 v{dst}, {pitch}, v{dst}")
    p(f"v_bfe_u32 v{tmp}, v1, 4, 1\nv_lshlrev_b32 v{tmp}, 5, v{tmp}\nv_add_u32 v{dst}, v{dst}, v{tmp}\nv_and_b32 v{tmp}, 3, v1\nv_lshlrev_b32 v{tmp}, 3, v{tmp}\nv_add_u32 v{dst}, v{dst}, v{tmp}")

def softmax_ops(blocks, sL, tmp):
    L = []; p = L.append
    n = len(blocks)
    M = [tmp + 4*i for i in range(n)]; T = [m + 1 for m in M]; S = [m + 2 for m in M]
    for (b, o), m in zip(blocks, M): p(f"v_max3_f32 v{m}, v{b}, v{b+1}, v{b+2}")
    for (b, o), m in zip(blocks, M): p(f"v_max3_f32 v{m}, v{m}, v{b+3}, v{b+4}")
    for (b, o), m in zip(blocks, M): p(f"v_max3_f32 v{m}, v{m}, v{b+5}, v{b+6}")
    for (b, o), m in zip(blocks, M): p(f"v_max_f32 v{m}, v{m}, v{b+7}")
    for m, t in zip(M, T): p(f"v_mov_b32 v{t}, v{m}")
    for m, t in zip(M, T): p(f"v_permlane32_swap_b32 v{m}, v{t}")
    for m, t in zip(M, T): p(f"v_max_f32 v{m}, v{m}, v{t}")
    for m in M: p(f"v_mul_f32 v{m}, s{sL}, v{m}")
    for (b, o), m in zip(blocks, M):
        for i in range(4):
            p(f"v_pk_fma_f32 v[{b+2*i}:{b+2*i+1}], v[{b+2*i}:{b+2*i+1}], s[{sL}:{sL+1}], v[{m}:{m+1}] op_sel_hi:[1,1,0] neg_lo:[0,0,1] neg_hi:[0,0,1]")
    for (b, o), m in zip(blocks, M):
        for i in range(8): p(f"v_exp_f32 v{b+i}, v{b+i}")
    for (b, o), s_ in zip(blocks, S): p(f"v_pk_add_f32 v[{s_}:{s_+1}], v[{b}:{b+1}], v[{b+2}:{b+3}]")
    for (b, o), m in zip(blocks, M): p(f"v_pk_add_f32 v[{m}:{m+1}], v[{b+4}:{b+5}], v[{b+6}:{b+7}]")
    for m, s_ in zip(M, S): p(f"v_pk_add_f32 v[{m}:{m+1}], v[{m}:{m+1}], v[{s_}:{s_+1}]")
    for m, t in zip(M, T): p(f"v_add_f32 v{m}, v{m}, v{t}")
    for m, t in zip(M, T): p(f"v_mov_b32 v{t}, v{m}")
    for m, t in zip(M, T): p(f"v_permlane32_swap_b32 v{m}, v{t}")
    for m, t in zip(M, T): p(f"v_add_f32 v{m}, v{m}, v{t}")
    for m in M: p(f"v_rcp_f32 v{m}, v{m}")
    for (b, o), m in zip(blocks, M):
        for i in range(4): p(f"v_pk_mul_f32 v[{b+2*i}:{b+2*i+1}], v[{b+2*i}:{b+2*i+1}], v[{m}:{m+1}] op_sel_hi:[1,0]")
    for (b, o), m in zip(blocks, M):
        for i in range(4): p(f"v_cvt_pk_bf16_f32 v{o+i}, v{b+2*i}, v{b+2*i+1}")
    return L

def stream(p, mf, ring, R, L, pend=None, fill=None, emit=None, fill_total=None, pend_every=1):
    pend = pend if pend is not None else []
    fill = fill if fill is not None else []
    emit = emit or p
    n = len(mf)
    uid = p.newlabel("t")
    def rd(i):
        m = mf[i]
        if m.get("pre"): m["pre"]()
        b = ring + 4*(i % R)
        p.ds(f"ds_read_b64_tr_b16 v[{b}:{b+1}], v{m['areg']} offset:{m['off'][0]}", f"{uid}_{i}")
        p.ds(f"ds_read_b64_tr_b16 v[{b+2}:{b+3}], v{m['areg']} offset:{m['off'][1]}", f"{uid}_{i}")
    for i in range(min(L, n)): rd(i)
    for i in range(n):
        m = mf[i]
        if m.get("before"): m["before"]()
        tags = [f"{uid}_{i}"] + ([f"{uid}_{i+1}"] if (i % 2 == 0 and i + 1 < n and i + 1 < i + L - 1) else [])
        p.wait(vm=m.get("vm"), ds=tags)
        b = ring + 4*(i % R)
        p(f"v_mfma_f32_32x32x16_bf16 {m['acc']}, v[{b}:{b+3}], {m['B']}, {m.get('C', m['acc'])}")
        if i + L < n: rd(i + L)
        if m.get("post"): m["post"]()
        if pend and i % pend_every == 0: pend.pop(0)()
        if fill:
            k = -(-len(fill) // max(n - i - 2, 1))
            for _ in range(min(k, len(fill))): emit(fill.pop(0))

def stream2(p, mf, ring, R, L, pend=None, pend_at=None):
    pend = pend if pend is not None else []
    uid = p.newlabel("t")
    frags = [i for i, m in enumerate(mf) if not m.get("share")]
    fidx = {}
    c = -1
    for i, m in enumerate(mf):
        if not m.get("share"): c += 1
        fidx[i] = c
    nf = len(frags)
    def rd(f):
        m = mf[frags[f]]
        if m.get("pre"): m["pre"]()
        b = ring + 4*(f % R)
        p.ds(f"ds_read_b64_tr_b16 v[{b}:{b+1}], v{m['areg']} offset:{m['off'][0]}", f"{uid}_{f}")
        p.ds(f"ds_read_b64_tr_b16 v[{b+2}:{b+3}], v{m['areg']} offset:{m['off'][1]}", f"{uid}_{f}")
    for f in range(min(L, nf)): rd(f)
    for i, m in enumerate(mf):
        f = fidx[i]
        p.wait(vm=m.get("vm"), ds=f"{uid}_{f}")
        b = ring + 4*(f % R)
        p(f"v_mfma_f32_32x32x16_bf16 {m['acc']}, v[{b}:{b+3}], {m['B']}, {m['acc']}")
        if not m.get("share") and f + L < nf: rd(f + L)
        if m.get("post"): m["post"]()

def interleave(p, ops, fns, every):
    fns = list(fns)
    for i, x in enumerate(ops):
        p(x)
        if fns and i % every == every - 1: fns.pop(0)()
    for f in fns: f()

def wsrc_swz128(p, dst, tmp):
    p(f"v_lshrrev_b32 v{dst}, 3, v1\nv_lshlrev_b32 v{dst}, 10, v{dst}")
    p(f"v_bfe_u32 v{tmp}, v1, 4, 1\nv_lshlrev_b32 v{tmp}, 2, v{tmp}\nv_xor_b32 v{tmp}, v{tmp}, v1\nv_and_b32 v{tmp}, 7, v{tmp}\nv_lshlrev_b32 v{tmp}, 4, v{tmp}")
    p(f"v_add_u32 v{dst}, v{dst}, v{tmp}")

def tr_addr_swz128(p, d0, d1, tmp):
    p(f"v_lshrrev_b32 v{d0}, 5, v1\nv_lshlrev_b32 v{d0}, 2, v{d0}\nv_bfe_u32 v{tmp}, v1, 2, 2\nv_add_u32 v{d0}, v{d0}, v{tmp}\nv_lshlrev_b32 v{d0}, 7, v{d0}")
    p(f"v_bfe_u32 v{tmp}, v1, 3, 1\nv_lshlrev_b32 v{tmp}, 6, v{tmp}\nv_add_u32 v{d0}, v{d0}, v{tmp}")
    p(f"v_bfe_u32 v{tmp}, v1, 4, 1\nv_lshlrev_b32 v{tmp}, 5, v{tmp}\nv_add_u32 v{d0}, v{d0}, v{tmp}")
    p(f"v_and_b32 v{tmp}, 3, v1\nv_lshlrev_b32 v{tmp}, 3, v{tmp}\nv_add_u32 v{d0}, v{d0}, v{tmp}")
    p(f"v_xor_b32 v{d1}, 64, v{d0}")

L_W1, L_WPHI, L_SCR, L_KVP = 0, 98304, 102400, 139264
W1BASE = {1: 0, 2: 32768, 0: 65536}
L_CS = 65536
L_WO, L_RED2 = 0, 65536
K3_NR = 10
def pos(s): return ((s + 8) % K3_NR)*16384
L_WD_W = 36864
LDS_BYTES = 160*1024

def roles(p):
    p(f"s_and_b32 s{S_X}, s2, 7\ns_lshr_b32 s{S_I}, s2, 3")
    p(f"s_lshr_b32 s24, s{S_X}, 1\ns_lshl_b32 s24, s24, 2\ns_lshr_b32 s23, s{S_I}, 3\ns_add_u32 s24, s24, s23")
    p(f"s_and_b32 s25, s{S_X}, 1\ns_lshl_b32 s25, s25, 3\ns_and_b32 s23, s{S_I}, 7\ns_add_u32 s25, s25, s23")
    p(f"s_lshl_b32 s26, s{S_X}, 2\ns_lshr_b32 s23, s{S_I}, 3\ns_add_u32 s26, s26, s23\ns_and_b32 s27, s{S_I}, 7")
    p(f"s_mul_i32 s23, s{S_I}, 37\ns_lshr_b32 s23, s23, 8")
    p(f"s_lshr_b32 s28, s{S_X}, 1\ns_lshl_b32 s28, s28, 2\ns_add_u32 s28, s28, s23")
    p(f"s_mul_i32 s23, s23, 7\ns_sub_u32 s29, s{S_I}, s23\ns_and_b32 s23, s{S_X}, 1\ns_mul_i32 s23, s23, 7\ns_add_u32 s29, s29, s23")
    p(f"s_cmp_ge_u32 s{S_I}, 28\ns_cselect_b32 s29, 14, s29")
    p("s_lshr_b32 s30, s2, 4")

def p0(p):
    vX, vW = 4, 5
    R_A, R_B, R_C = 8, 12, 16
    p(f"v_lshlrev_b32 v{vX}, 4, v1")
    DM = p.newlabel("DMAW"); JN = p.newlabel("P0J")
    p(f"s_cmp_ge_u32 s{S_WAVE}, 2\ns_cbranch_scc1 {DM}")
    p(f"s_lshl_b32 s31, s2, 3\ns_lshl_b32 s32, s{S_WAVE}, 2\ns_add_u32 s31, s31, s32\ns_lshl_b32 s32, s31, 10")
    p("v_and_b32 v8, 3, v1\nv_lshrrev_b32 v9, 2, v1\nv_lshlrev_b32 v10, 10, v8\nv_lshlrev_b32 v11, 4, v9\nv_add_u32 v10, v10, v11")
    p("s_waitcnt lgkmcnt(0)")
    srd(p, R_A, P_X, 2048*512*2)
    XI = 12
    srd(p, R_WS, P_WS, WS_SIZE)
    Z = p.newlabel("Z")
    p(f"s_and_b32 s35, s2, 15\ns_xor_b32 s37, s{S_WAVE}, 1\ns_or_b32 s35, s35, s37\ns_cmp_lg_u32 s35, 0\ns_cbranch_scc1 {Z}")
    p("v_mov_b32 v28, 0\nv_mov_b32 v29, 0\nv_mov_b32 v30, 0\nv_mov_b32 v31, 0")
    p(f"s_mul_i32 s35, s30, 4352\ns_add_u32 s35, s35, {WS_KV:#x}")
    for i in range(4): p(f"buffer_store_dwordx4 v[28:31], v{vX}, s[{R_WS}:{R_WS+3}], s35 offen offset:{i*1024} sc1")
    p("s_add_u32 s35, s35, 4096\ns_mov_b64 exec, 0xffff")
    p(f"buffer_store_dwordx4 v[28:31], v{vX}, s[{R_WS}:{R_WS+3}], s35 offen sc1")
    p(f"s_lshl_b32 s35, s30, 9\ns_add_u32 s35, s35, {WS_CNT:#x}\ns_mov_b32 exec_lo, -1")
    p(f"buffer_store_dwordx4 v[28:31], v{vX}, s[{R_WS}:{R_WS+3}], s35 offen sc1")
    p("s_mov_b64 exec, -1")
    p.label(Z)
    for i in range(4): p.vm(f"buffer_load_dwordx4 v[{XI+4*i}:{XI+4*i+3}], v10, s[{R_A}:{R_A+3}], s32 offen offset:{i*256}", "x")
    p(f"s_mov_b32 s59, {WS_EP:#x}\ns_load_dword s{S_TAG}, s[{P_WS}:{P_WS+1}], s59")
    p(f"v_lshlrev_b32 v9, 7, v9\nv_lshlrev_b32 v8, 4, v8\nv_add_u32 v8, v8, v9\ns_lshl_b32 s36, s{S_WAVE}, 6\ns_lshl_b32 s37, s2, 13\ns_add_u32 s36, s36, s37\ns_add_u32 s36, s36, {WS_XN:#x}")
    stamp(p, "p0 issue")
    p.wait(vm="x")
    stamp(p, "p0 x landed")
    B = 32
    for i in range(16): p(f"v_lshlrev_b32 v{B+2*i}, 16, v{XI+i}\nv_and_b32 v{B+2*i+1}, 0xffff0000, v{XI+i}")
    def tree(op_first, dst):
        for i in range(8): op_first(i)
        for w_ in (4, 2, 1):
            for i in range(w_): p(f"v_pk_add_f32 v[{64+2*i}:{65+2*i}], v[{64+2*i}:{65+2*i}], v[{64+2*(i+w_)}:{65+2*(i+w_)}]")
        p(f"v_add_f32 v{dst}, v64, v65")
    def row_reduce(r):
        p(f"v_add_f32_dpp v{r}, v{r}, v{r} row_ror:4 row_mask:0xf bank_mask:0xf\nv_add_f32_dpp v{r}, v{r}, v{r} row_ror:8 row_mask:0xf bank_mask:0xf")
        for sw in ("v_permlane16_swap_b32", "v_permlane32_swap_b32"):
            p(f"v_mov_b32 v{r+1}, v{r}\n{sw} v{r}, v{r+1}\nv_add_f32 v{r}, v{r}, v{r+1}")
    tree(lambda i: p(f"v_pk_add_f32 v[{64+2*i}:{65+2*i}], v[{B+4*i}:{B+4*i+1}], v[{B+4*i+2}:{B+4*i+3}]"), 80)
    row_reduce(80)
    p("v_mul_f32 v80, 0xbb000000, v80")
    for i in range(16): p(f"v_pk_add_f32 v[{B+2*i}:{B+2*i+1}], v[{B+2*i}:{B+2*i+1}], v[80:81] op_sel_hi:[1,0]")
    def sq(i):
        p(f"v_pk_mul_f32 v[{64+2*i}:{65+2*i}], v[{B+4*i}:{B+4*i+1}], v[{B+4*i}:{B+4*i+1}]")
    for i in range(8): sq(i)
    for i in range(8): p(f"v_pk_fma_f32 v[{64+2*i}:{65+2*i}], v[{B+4*i+2}:{B+4*i+3}], v[{B+4*i+2}:{B+4*i+3}], v[{64+2*i}:{65+2*i}]")
    tree(lambda i: None, 82)
    row_reduce(82)
    p("v_mov_b32 v84, 0x3727c5ac\nv_fmac_f32 v84, 0x3b000000, v82\nv_rsq_f32 v84, v84")
    for i in range(16): p(f"v_pk_mul_f32 v[{B+2*i}:{B+2*i+1}], v[{B+2*i}:{B+2*i+1}], v[84:85] op_sel_hi:[1,0]")
    for n in range(4):
        for i in range(4): p(f"v_cvt_pk_bf16_f32 v{XI+4*n+i}, v{B+8*n+2*i}, v{B+8*n+2*i+1}")
        if n == 2: p("s_add_u32 s36, s36, 4096")
        p.vm(f"buffer_store_dwordx4 v[{XI+4*n}:{XI+4*n+3}], v8, s[{R_WS}:{R_WS+3}], s36 offen offset:{(n%2)*2048} sc1", "xn")
    p("s_waitcnt vmcnt(0) lgkmcnt(0)"); p.vmq = []
    p(f"s_mul_i32 s{S_TAG}, s{S_TAG}, 0x9e3779b1\ns_add_u32 s{S_TAG}, s{S_TAG}, 1")
    p(f"s_lshl_b32 s58, s2, 1\ns_add_u32 s58, s58, s{S_WAVE}\ns_lshl_b32 s58, s58, 7\ns_add_u32 s58, s58, {WS_F1:#x}")
    p(f"v_mov_b32 v2, s{S_TAG}\nv_mov_b32 v3, 0\ns_mov_b64 exec, 1")
    p(f"buffer_store_dword v2, v3, s[{R_WS}:{R_WS+3}], s58 offen sc1\ns_mov_b64 exec, -1")
    stamp(p, "p0 flag")
    p(f"s_cmp_lg_u32 s{S_WAVE}, 0\ns_cbranch_scc1 {JN}")
    srd(p, R_C, P_WPHI, 32*16*16*2)
    p(f"s_lshl_b32 s35, s25, 10\ns_mov_b32 m0, {L_WPHI}")
    p(f"buffer_load_dwordx4 v{vX}, s[{R_C}:{R_C+3}], s35 offen lds")
    p(f"s_branch {JN}")
    p.label(DM)
    p("s_waitcnt lgkmcnt(0)")
    srd(p, R_B, P_WQKV, 512*1536*2)
    p(f"v_lshrrev_b32 v{vW}, 2, v1\nv_mul_u32_u24 v{vW}, 3072, v{vW}\nv_and_b32 v10, 3, v1\nv_lshlrev_b32 v10, 4, v10\nv_add_u32 v{vW}, v{vW}, v10")
    p(f"s_sub_u32 s32, s{S_WAVE}, 1\ns_lshl_b32 s33, s32, 10\ns_lshl_b32 s34, s25, 6\ns_add_u32 s33, s33, s34")
    p(f"s_sub_u32 s34, s{S_WAVE}, 2\ns_lshl_b32 s34, s34, 15")
    p("s_and_b32 s36, s24, 3\ns_lshl_b32 s36, s36, 1\ns_and_b32 s37, s25, 1\ns_add_u32 s36, s36, s37\ns_lshl_b32 s36, s36, 2")
    for ks in range(32):
        p(f"s_add_u32 s37, s36, {ks}\ns_and_b32 s37, s37, 31\ns_mul_i32 s38, s37, {16*3072}\ns_add_u32 s38, s38, s33\ns_lshl_b32 s39, s37, 10\ns_add_u32 m0, s39, s34")
        if ks >= PACE0: p(f"s_waitcnt vmcnt({PACE0-1})")
        p(f"buffer_load_dwordx4 v{vW}, s[{R_B}:{R_B+3}], s38 offen lds")
    p(f"s_mov_b32 s59, {WS_EP:#x}\ns_load_dword s{S_TAG}, s[{P_WS}:{P_WS+1}], s59")
    srd(p, R_WS, P_WS, WS_SIZE)
    p("s_waitcnt vmcnt(0) lgkmcnt(0)")
    p(f"s_mul_i32 s{S_TAG}, s{S_TAG}, 0x9e3779b1\ns_add_u32 s{S_TAG}, s{S_TAG}, 1")
    stamp(p, "p0 W1 landed")
    p.label(JN)
    p.vmq = []
    p("s_barrier")
    L = p.newlabel("PL"); D = p.newlabel("PD")
    p(f"s_cmp_lg_u32 s{S_WAVE}, 0\ns_cbranch_scc1 {D}")
    stamp(p, "p0 poll start")
    p(f"s_lshl_b32 s35, s24, 5\nv_add_u32 v2, s35, v1\ns_lshl_b32 s35, s25, 5\ns_add_u32 s35, s35, 1\nv_mov_b32 v3, s35\nv_cmp_gt_u32 vcc, 32, v1\nv_cndmask_b32 v2, v3, v2, vcc\nv_lshlrev_b32 v2, 7, v2")
    p(f"s_mov_b32 s58, {WS_F1:#x}\ns_mov_b32 s59, {SPIN}")
    p.label(L)
    p(f"buffer_load_dword v3, v2, s[{R_WS}:{R_WS+3}], s58 offen sc1\ns_waitcnt vmcnt(0)\nv_cmp_ne_u32 vcc, s{S_TAG}, v3\ns_cbranch_vccz {D}")
    if SLEEP: p(f"s_sleep {SLEEP}")
    p(f"s_sub_u32 s59, s59, 1\ns_cmp_lg_u32 s59, 0\ns_cbranch_scc1 {L}")
    p.label(D)
    p("s_barrier")
    stamp(p, "S1 passed")

def cs_loads(p):
    CSL = p.newlabel("CS")
    p(f"s_cmp_ge_u32 s2, 224\ns_cbranch_scc1 {CSL}")
    p(f"s_cmp_ge_u32 s2, 112\ns_cselect_b32 s35, 112, 0\ns_cselect_b32 s40, s{P_WU}, s{P_WG}\ns_cselect_b32 s41, s{P_WU+1}, s{P_WG+1}")
    p("s_sub_u32 s36, s2, s35")
    srd(p, 8, 40, 512*1792*2)
    p("s_lshr_b32 s37, s36, 2\ns_and_b32 s38, s36, 3")
    p(f"s_lshl_b32 s39, s38, 2\ns_add_u32 s39, s39, s{S_WAVE}\ns_mul_i32 s39, s39, {32*3584}\ns_lshl_b32 s40, s37, 7\ns_add_u32 s39, s39, s40")
    p("v_lshrrev_b32 v18, 3, v1\nv_mul_u32_u24 v18, 3584, v18\nv_bfe_u32 v19, v1, 4, 1\nv_lshlrev_b32 v19, 2, v19\nv_xor_b32 v19, v19, v1\nv_and_b32 v19, 7, v19\nv_lshlrev_b32 v19, 4, v19\nv_add_u32 v18, v18, v19")
    p(f"s_lshl_b32 s40, s{S_WAVE}, 12\ns_add_u32 s40, s40, {L_CS}")
    for n in range(4):
        p(f"s_add_u32 s41, s39, {n*8*3584}\ns_add_u32 m0, s40, {n*1024}")
        p(f"buffer_load_dwordx4 v18, s[8:11], s41 offen lds")
    p.label(CSL)

def cs_compute(p):
    CSL = p.newlabel("CS")
    p(f"s_cmp_ge_u32 s2, 224\ns_cbranch_scc1 {CSL}")
    p(f"s_lshl_b32 s40, s{S_WAVE}, 12\ns_add_u32 s40, s40, {L_CS}")
    tr_addr_swz128(p, 18, 19, 20)
    p("v_add_u32 v18, s40, v18\nv_add_u32 v19, s40, v19\nv_mov_b32 v20, 0x3f803f80\nv_mov_b32 v21, 0x3f803f80\nv_mov_b32 v22, 0x3f803f80\nv_mov_b32 v23, 0x3f803f80")
    for ks in range(2):
        for cg in range(2):
            r = 24 + 8*ks + 4*cg
            p(f"ds_read_b64_tr_b16 v[{r}:{r+1}], v{18+cg} offset:{ks*2048}")
            p(f"ds_read_b64_tr_b16 v[{r+2}:{r+3}], v{18+cg} offset:{ks*2048+1024}")
    p("s_waitcnt lgkmcnt(0)")
    for cg in range(2):
        for ks in range(2):
            r = 24 + 8*ks + 4*cg
            p(f"v_mfma_f32_32x32x16_bf16 v[{64+16*cg}:{79+16*cg}], v[20:23], v[{r}:{r+3}], {'0' if ks == 0 else f'v[{64+16*cg}:{79+16*cg}]'}")
    p(f"s_lshl_b32 s40, s{S_WAVE}, 8\ns_add_u32 s40, s40, {L_CS + 16384}\nv_lshlrev_b32 v18, 2, v1\nv_add_u32 v18, s40, v18")
    p("s_mov_b32 exec_hi, 0")
    p("ds_write_b32 v18, v64\nds_write_b32 v18, v80 offset:128")
    p("s_mov_b64 exec, -1\ns_waitcnt lgkmcnt(0)")
    p.label(CSL)

def cs_finish(p):
    CS2 = p.newlabel("CS")
    p(f"s_cmp_ge_u32 s2, 224\ns_cbranch_scc1 {CS2}\ns_cmp_lg_u32 s{S_WAVE}, 1\ns_cbranch_scc1 {CS2}")
    p(f"v_lshlrev_b32 v18, 2, v1\nv_add_u32 v18, {L_CS + 16384}, v18")
    for w in range(4): p(f"ds_read_b32 v{20+w}, v18 offset:{w*256}")
    p("s_waitcnt lgkmcnt(0)\nv_add_f32 v20, v20, v21\nv_add_f32 v22, v22, v23\nv_add_f32 v20, v20, v22")
    p("s_cmp_ge_u32 s2, 112\ns_cselect_b32 s36, 112, 0\ns_cselect_b32 s35, 1792, 0\ns_cselect_b32 s39, 8, 0\ns_sub_u32 s36, s2, s36")
    p("s_lshr_b32 s37, s36, 2\ns_and_b32 s38, s36, 3\ns_lshr_b32 s40, s39, 3\ns_lshl_b32 s41, s38, 1\ns_add_u32 s40, s40, s41\ns_mul_i32 s40, s40, 28\ns_add_u32 s40, s40, s37\ns_lshl_b32 s40, s40, 8")
    p(f"s_add_u32 s40, s40, {WS_CS:#x}\nv_and_b32 v18, 15, v1\nv_lshlrev_b32 v18, 4, v18\nv_lshrrev_b32 v19, 4, v1\nv_lshlrev_b32 v19, 2, v19\nv_add_u32 v18, v18, v19")
    p(f"buffer_store_dword v20, v18, s[{R_WS}:{R_WS+3}], s40 offen sc1")
    p("s_waitcnt vmcnt(0)")
    p("s_lshr_b32 s40, s37, 1\ns_and_b32 s37, s37, 1\ns_lshl_b32 s37, s37, 2\ns_add_u32 s37, s37, s38\ns_add_u32 s37, s37, s39")
    q0 = list(p.vmq)
    flag_store(p, F6, 40, 37, vt=(20, 21))
    p.vmq = q0
    p.label(CS2)

def p1(p):
    vX, vT, vT2, vP, vS = 4, 6, 7, 8, 9
    ACC, X, WF = 16, 64, 192
    R_A = 8
    p(f"s_lshl_b32 s31, s24, 2\ns_add_u32 s31, s31, s{S_WAVE}")
    p(f"s_lshl_b32 s32, s31, 15\ns_add_u32 s32, s32, {WS_XN:#x}\ns_add_u32 s33, s32, 4096")
    p("v_bfe_u32 v5, v1, 3, 2\nv_lshlrev_b32 v5, 13, v5\nv_lshrrev_b32 v10, 5, v1\nv_lshlrev_b32 v10, 7, v10\nv_add_u32 v5, v5, v10\nv_and_b32 v10, 7, v1\nv_lshlrev_b32 v10, 4, v10\nv_add_u32 v5, v5, v10")
    def xload(ks):
        p.vm(f"buffer_load_dwordx4 v[{X+4*ks}:{X+4*ks+3}], v5, s[{R_WS}:{R_WS+3}], s{32 + ks//16} offen offset:{(ks%16)*256} sc1", f"x{ks}")
    LEAD = 8
    for ks in range(LEAD): xload(ks)
    tr_addr(p, vT, 10, 64, 8)
    p(f"v_add_u32 v{vT2}, 0x10000, v{vT}")
    AK_, AV_, AQ_ = ACC + 16, ACC + 32, ACC
    def ent(ks, part, acc, first):
        off = (W1BASE[part] % 65536) + ks*1024
        return dict(acc=f"v[{acc}:{acc+15}]", B=f"v[{X+4*ks}:{X+4*ks+3}]", areg=(vT2 if part == 0 else vT), off=(off, off+256), C=("0" if first else f"v[{acc}:{acc+15}]"))
    mf = []
    for ks in range(32):
        e = ent(ks, 1, AK_, ks == 0); e["vm"] = f"x{ks}"; mf.append(e)
        mf.append(ent(ks, 2, AV_, ks == 0))
    stream(p, mf, WF, 8, 5, pend=[(lambda k=k: xload(k)) for k in range(LEAD, 32)], pend_every=2)
    stamp(p, "p1 pass A")
    srd(p, 12, P_WQKV, 512*1536*2)
    p(f"v_lshrrev_b32 v14, 2, v1\nv_mul_u32_u24 v14, 3072, v14\nv_and_b32 v10, 3, v1\nv_lshlrev_b32 v10, 4, v10\nv_add_u32 v14, v14, v10")
    p(f"s_mul_i32 s33, s{S_WAVE}, {8*16*3072}\ns_lshl_b32 s34, s25, 6\ns_add_u32 s33, s33, s34\ns_lshl_b32 s34, s{S_WAVE}, 13")
    for c in range(8):
        p(f"s_add_u32 s35, s33, {c*16*3072}\ns_add_u32 m0, s34, {W1BASE[0] + c*1024}")
        p.vm(f"buffer_load_dwordx4 v14, s[12:15], s35 offen lds", "wq")
    WP = 224
    p(f"v_lshrrev_b32 v{vP}, 5, v1\nv_lshlrev_b32 v{vP}, 2, v{vP}\nv_bfe_u32 v10, v1, 2, 2\nv_add_u32 v{vP}, v{vP}, v10\nv_lshlrev_b32 v{vP}, 5, v{vP}")
    p(f"v_and_b32 v10, 3, v1\nv_lshlrev_b32 v10, 3, v10\nv_add_u32 v{vP}, v{vP}, v10\nv_add_u32 v{vP}, {L_WPHI}, v{vP}")
    p(f"v_and_b32 v{vS}, 16, v1\nv_lshlrev_b32 v{vS}, 11, v{vS}\nv_lshlrev_b32 v10, 16, v{vS}\nv_or_b32 v{vS}, v{vS}, v10")
    for hd in range(2):
        p.ds(f"ds_read_b64_tr_b16 v[{WP+4*hd}:{WP+4*hd+1}], v{vP} offset:{512*hd}", "wp")
        p.ds(f"ds_read_b64_tr_b16 v[{WP+4*hd+2}:{WP+4*hd+3}], v{vP} offset:{512*hd+256}", "wp")
    vA, vR = 10, 11
    p(f"s_mul_i32 s35, s{S_WAVE}, 9216\ns_add_u32 s35, s35, {L_SCR}")
    p(f"v_and_b32 v{vA}, 31, v1\nv_mul_u32_u24 v{vA}, 72, v{vA}\nv_lshrrev_b32 v12, 5, v1\nv_lshlrev_b32 v12, 3, v12\nv_add_u32 v{vA}, v{vA}, v12\nv_add_u32 v{vA}, s35, v{vA}")
    tr_addr(p, vR, 12, 72, 8)
    p(f"v_add_u32 v{vR}, s35, v{vR}")
    KB, VB = 232, 240
    for i in range(8): p(f"v_cvt_pk_bf16_f32 v{KB+i}, v{AK_+2*i}, v{AK_+2*i+1}")
    p.wait(ds="wp")
    for i in range(8): p(f"v_xor_b32 v{WP+i}, v{WP+i}, v{vS}")
    PK = [WF, WF + 16]
    for hd in range(2):
        p(f"v_mfma_f32_32x32x16_bf16 v[{PK[hd]}:{PK[hd]+15}], v[{WP+4*hd}:{WP+4*hd+3}], v[{KB+4*hd}:{KB+4*hd+3}], 0")
    for i in range(8): p(f"v_cvt_pk_bf16_f32 v{VB+i}, v{AV_+2*i}, v{AV_+2*i+1}")
    p("v_mov_b32 v12, 0x3f803f80\nv_mov_b32 v13, 0x3f803f80")
    for hd in range(2):
        for q in range(2):
            p.ds(f"ds_write_b64 v{vA}, v[{VB+4*hd+2*q}:{VB+4*hd+2*q+1}] offset:{(2+hd)*2304 + 16*q}", "st")
            p.ds(f"ds_write_b64 v{vA}, v[12:13] offset:{(2+hd)*2304 + 32 + 16*q}", "st")
    p(f"s_mov_b32 s36, {LOG2E:#x}\ns_mov_b32 s37, {LOG2E:#x}")
    OK_ = 32
    blk = [(PK[hd] + 8*sg, OK_ + 8*hd + 4*sg) for hd in range(2) for sg in range(2)]
    for x in softmax_ops(blk, 36, 48): p(x)
    for hd in range(2):
        for sg in range(2):
            for q in range(2):
                r = OK_ + 8*hd + 4*sg + 2*q
                p.ds(f"ds_write_b64 v{vA}, v[{r}:{r+1}] offset:{hd*2304 + 32*sg + 16*q}", "st")
    stamp(p, "p1 k softmax")
    p.wait(ds="st")
    F = WF
    for hd in range(2):
        for s2 in range(2):
            f = F + 8*(2*hd + s2)
            for ab in range(2):
                off = (2*ab + hd)*2304 + s2*1152
                p.ds(f"ds_read_b64_tr_b16 v[{f+4*ab}:{f+4*ab+1}], v{vR} offset:{off}", f"kv{hd}")
                p.ds(f"ds_read_b64_tr_b16 v[{f+4*ab+2}:{f+4*ab+3}], v{vR} offset:{off+288}", f"kv{hd}")
    C = [32, 48]
    p(f"s_mul_i32 s35, s{S_WAVE}, 4352\ns_add_u32 s35, s35, {L_KVP}")
    p("v_and_b32 v12, 31, v1\nv_lshlrev_b32 v12, 4, v12\nv_lshrrev_b32 v13, 5, v1\nv_mul_u32_u24 v13, 272, v13\nv_add_u32 v12, v12, v13\nv_add_u32 v12, s35, v12")
    for hd in range(2):
        p.wait(ds=f"kv{hd}")
        for s2 in range(2):
            f = F + 8*(2*hd + s2)
            c = "0" if s2 == 0 else f"v[{C[hd]}:{C[hd]+15}]"
            p(f"v_mfma_f32_32x32x16_bf16 v[{C[hd]}:{C[hd]+15}], v[{f}:{f+3}], v[{f+4}:{f+7}], {c}")
    p("s_mov_b32 exec_lo, 0x1ffff\ns_mov_b32 exec_hi, 0x1ffff")
    for hd in range(2):
        for b in range(4):
            p.ds(f"ds_write_b128 v12, v[{C[hd]+4*b}:{C[hd]+4*b+3}] offset:{hd*2176 + b*544}", "kvp")
    p("s_mov_b64 exec, -1")
    p.wait(vm="wq", ds="kvp")
    p("s_barrier")
    p("v_lshlrev_b32 v12, 2, v0")
    p(f"s_mul_i32 s35, s25, 4352\ns_add_u32 s35, s35, {WS_KV:#x}")
    p(f"v_add_u32 v13, {L_KVP}, v12")
    for i in range(5):
        for w in range(4): p.ds(f"ds_read_b32 v{32+4*i+w}, v13 offset:{w*4352 + i*1024}", f"r{i}")
    for i in range(4):
        p.wait(ds=f"r{i}")
        r = 32 + 4*i
        p(f"v_add_f32 v{r}, v{r}, v{r+1}\nv_add_f32 v{r+2}, v{r+2}, v{r+3}\nv_add_f32 v{r}, v{r}, v{r+2}")
        p.vm(f"buffer_atomic_add_f32 v{r}, v12, s[{R_WS}:{R_WS+3}], s35 offen offset:{i*1024}", "at")
    p.wait(ds="r4")
    p("v_add_f32 v48, v48, v49\nv_add_f32 v50, v50, v51\nv_add_f32 v48, v48, v50")
    AT = p.newlabel("AT")
    p(f"s_cmp_lg_u32 s{S_WAVE}, 0\ns_cbranch_scc1 {AT}")
    p(f"s_add_u32 s35, s35, 4096\nbuffer_atomic_add_f32 v48, v12, s[{R_WS}:{R_WS+3}], s35 offen")
    p.label(AT)
    stamp(p, "p1 kv atomics issued")
    vWo, vWo2 = 14, 15
    wsrc_swz128(p, vWo, 10)
    p(f"v_add_u32 v{vWo2}, {8192-1024}, v{vWo}")
    srd(p, R_A, P_WO, 512*512*2)
    p(f"s_lshl_b32 s40, s{S_WAVE}, 17\ns_lshl_b32 s41, s27, 7\ns_add_u32 s40, s40, s41\ns_lshl_b32 s41, s{S_WAVE}, 14")
    def wo_load(k):
        def f():
            p(f"s_add_u32 s42, s40, {16*k*1024}\ns_add_u32 m0, s41, {L_WO + k*2048}")
            p.vm(f"buffer_load_dwordx4 v{vWo}, s[{R_A}:{R_A+3}], s42 offen lds", "wo")
            p.vm(f"buffer_load_dwordx4 v{vWo2}, s[{R_A}:{R_A+3}], s42 offen offset:1024 lds", "wo")
        return f
    def touches():
        T0 = p.newlabel("TC"); T3 = p.newlabel("TC")
        q0 = list(p.vmq)
        p(f"s_cmp_eq_u32 s{S_WAVE}, 0\ns_cbranch_scc1 {T0}\ns_cmp_eq_u32 s{S_WAVE}, 3\ns_cbranch_scc1 {T3}")
        p(f"s_cmp_eq_u32 s{S_WAVE}, 2\ns_cselect_b32 s50, s{P_WU}, s{P_WG}\ns_cselect_b32 s51, s{P_WU+1}, s{P_WG+1}")
        srd(p, 16, 50, 512*1792*2)
        p(f"v_lshrrev_b32 v13, 4, v1\nv_mul_u32_u24 v13, 3584, v13\nv_and_b32 v10, 15, v1\nv_min_u32 v10, 13, v10\nv_lshlrev_b32 v10, 7, v10\nv_add_u32 v13, v13, v10")
        p(f"s_lshl_b32 s52, s{S_I}, 4\ns_mul_i32 s52, s52, 3584\ns_and_b32 s50, s{S_X}, 1\ns_mul_i32 s50, s50, 1792\ns_add_u32 s52, s52, s50")
        for n in range(4):
            if n: p(f"s_add_u32 s52, s52, {4*3584}")
            p(f"buffer_load_dword v{250+n%2}, v13, s[16:19], s52 offen")
        p(f"s_branch {T0}")
        p.label(T3)
        srd(p, 16, P_WD, 1792*512*2)
        p(f"s_mul_i32 s52, s2, 56\nv_min_u32 v13, 55, v1\nv_add_u32 v13, s52, v13\nv_lshlrev_b32 v13, 7, v13")
        p("buffer_load_dword v252, v13, s[16:19], 0 offen")
        p.label(T0)
        p.vmq = q0
    mf = [ent(ks, 0, AQ_, ks == 0) for ks in range(32)]
    stream(p, mf, WF, 8, 5, pend=[wo_load(k) for k in range(8)] + ([touches] if TOUCH else []), pend_every=3)
    QB = 232
    for i in range(8): p(f"v_cvt_pk_bf16_f32 v{QB+i}, v{AQ_+2*i}, v{AQ_+2*i+1}")
    PQ = [64, 80]
    for hd in range(2):
        p(f"v_mfma_f32_32x32x16_bf16 v[{PQ[hd]}:{PQ[hd]+15}], v[{WP+4*hd}:{WP+4*hd+3}], v[{QB+4*hd}:{QB+4*hd+3}], 0")
    p("s_barrier")
    stamp(p, "p1 pass B")
    PHQ = 144
    blk = [(PQ[hd] + 8*sg, PHQ + 8*hd + 4*sg) for hd in range(2) for sg in range(2)]
    for x in softmax_ops(blk, 36, 160): p(x)
    stamp(p, "p1 q softmax")
    p.wait(vm="at")
    arrive(p, 0, 25, 16)
    stamp(p, "p1 kv flag")
    P3W.setup(p)
    def bulk2():
        cs_loads(p)
        SK0 = p.newlabel("SK")
        p(f"s_cmp_ge_u32 s29, 14\ns_cbranch_scc1 {SK0}")
        q0 = list(p.vmq)
        paced(p, [f for s_ in range(2) for f in P3W.loads(p, s_)])
        p.vmq = q0
        p.label(SK0)
    vK = 12
    p(f"v_and_b32 v{vK}, 31, v1\nv_min_u32 v{vK}, 16, v{vK}\nv_lshlrev_b32 v{vK}, 4, v{vK}\nv_lshrrev_b32 v13, 5, v1\nv_mul_u32_u24 v13, 272, v13\nv_add_u32 v{vK}, v{vK}, v13")
    wait_go(p, 0, 25, bulk=bulk2)
    stamp(p, "S2 passed")
    p(f"s_mul_i32 s35, s25, 4352\ns_add_u32 s35, s35, {WS_KV:#x}")
    AK = 64
    for hd in range(2):
        for s_ in range(2):
            for q in range(2):
                r = AK + 16*hd + 8*s_ + 4*q
                o = hd*2176 + (2*s_+q)*544
                p.vm(f"buffer_load_dwordx4 v[{r}:{r+3}], v{vK}, s[{R_WS}:{R_WS+3}], s35 offen offset:{o} sc1", f"kv{hd}")
    AB, ON = 96, 16
    for hd in range(2):
        p.wait(vm=f"kv{hd}")
        for s_ in range(2):
            for jj in range(4): p(f"v_cvt_pk_bf16_f32 v{AB+8*hd+4*s_+jj}, v{AK+16*hd+8*s_+2*jj}, v{AK+16*hd+8*s_+2*jj+1}")
        o = ON + 16*hd
        p(f"v_mfma_f32_32x32x16_bf16 v[{o}:{o+15}], v[{AB+8*hd}:{AB+8*hd+3}], v[{PHQ+8*hd}:{PHQ+8*hd+3}], 0")
        p(f"v_mfma_f32_32x32x16_bf16 v[{o}:{o+15}], v[{AB+8*hd+4}:{AB+8*hd+7}], v[{PHQ+8*hd+4}:{PHQ+8*hd+7}], v[{o}:{o+15}]")
    p(f"s_lshl_b32 s35, s31, 5\ns_lshl_b32 s36, s25, 1\ns_add_u32 s35, s35, s36\ns_lshl_b32 s35, s35, 10\ns_add_u32 s35, s35, {WS_OF:#x}")
    for hd in range(2):
        o = ON + 16*hd
        p(f"v_add_f32 v{o+8}, 0x358637bd, v{o+8}\nv_rcp_f32 v{o+8}, v{o+8}")
        for i in range(0, 8, 2): p(f"v_pk_mul_f32 v[{o+i}:{o+i+1}], v[{o+i}:{o+i+1}], v[{o+8}:{o+9}] op_sel_hi:[1,0]")
        for jj in range(4): p(f"v_cvt_pk_bf16_f32 v{112+4*hd+jj}, v{o+2*jj}, v{o+2*jj+1}")
        p.vm(f"buffer_store_dwordx4 v[{112+4*hd}:{115+4*hd}], v{vX}, s[{R_WS}:{R_WS+3}], s35 offen offset:{hd*1024} sc1", "of")
    p.wait(vm="of")
    arrive(p, 1, 24, 16)
    stamp(p, "p1 o flag")
    cs_compute(p)
    p("s_barrier")
    cs_finish(p)

def reduce_write(p, base, wavestride):
    p(f"s_mul_i32 s40, s{S_WAVE}, {wavestride}\ns_add_u32 s40, s40, {base}")
    p("v_and_b32 v10, 31, v1\nv_mul_u32_u24 v10, 272, v10\nv_lshrrev_b32 v11, 5, v1\nv_lshlrev_b32 v11, 4, v11\nv_add_u32 v10, v10, v11\nv_add_u32 v10, s40, v10")
    for cg in range(2):
        for tg in range(2):
            for b in range(4):
                a = 32*cg + 16*tg + 4*b
                p.ds(f"ds_write_b128 v10, a[{a}:{a+3}] offset:{tg*32*272 + cg*128 + b*32}", "red")
    p.wait(ds="red")
    p("s_barrier")

def reduce_read(p, base, wavestride, ps, dst):
    T = dst + 8
    for w in range(4):
        for hb in range(2):
            r = dst + 4*hb if w == 0 else T + 8*(w-1) + 4*hb
            off = base + w*wavestride + ps*32*272 + hb*16
            reg = (12, 13, 11)[off // 65536]
            p.ds(f"ds_read_b128 v[{r}:{r+3}], v{reg} offset:{off % 65536}", f"rr{ps}")

def reduce_sum(p, ps, dst):
    T = dst + 8
    p.wait(ds=f"rr{ps}")
    for i in range(0, 8, 2):
        p(f"v_pk_add_f32 v[{dst+i}:{dst+i+1}], v[{dst+i}:{dst+i+1}], v[{T+i}:{T+i+1}]")
        p(f"v_pk_add_f32 v[{T+8+i}:{T+8+i+1}], v[{T+8+i}:{T+8+i+1}], v[{T+16+i}:{T+16+i+1}]")
    for i in range(0, 8, 2):
        p(f"v_pk_add_f32 v[{dst+i}:{dst+i+1}], v[{dst+i}:{dst+i+1}], v[{T+8+i}:{T+8+i+1}]")

def add_residual(p, dst, res, tmp):
    for i in range(4): p(f"v_lshlrev_b32 v{tmp+2*i}, 16, v{res+i}\nv_and_b32 v{tmp+2*i+1}, 0xffff0000, v{res+i}")
    for i in range(0, 8, 2): p(f"v_pk_add_f32 v[{dst+i}:{dst+i+1}], v[{dst+i}:{dst+i+1}], v[{tmp+i}:{tmp+i+1}]")

def hf_addr(p, dst, tmp):
    p(f"v_bfe_u32 v{dst}, v0, 1, 2\nv_lshlrev_b32 v{dst}, 10, v{dst}\nv_and_b32 v{tmp}, 1, v0\nv_lshlrev_b32 v{tmp}, 9, v{tmp}\nv_add_u32 v{dst}, v{dst}, v{tmp}")
    p(f"v_lshrrev_b32 v{tmp}, 3, v0\nv_lshlrev_b32 v{tmp}, 4, v{tmp}\nv_add_u32 v{dst}, v{dst}, v{tmp}")

def red_addr(p):
    p("v_lshrrev_b32 v12, 3, v0\nv_mul_u32_u24 v12, 272, v12\nv_and_b32 v13, 7, v0\nv_lshlrev_b32 v13, 5, v13\nv_add_u32 v12, v12, v13\nv_add_u32 v13, 0x10000, v12\nv_add_u32 v11, 0x20000, v12")

class P3W:
    vG0, vG1, vU0, vU1 = 240, 241, 242, 243
    R_G, R_U = 12, 16
    @staticmethod
    def setup(p):
        v = P3W
        p(f"v_lshrrev_b32 v{v.vG0}, 3, v1\nv_mul_u32_u24 v{v.vG0}, 3584, v{v.vG0}")
        p(f"v_bfe_u32 v{v.vU1}, v1, 4, 1\nv_lshlrev_b32 v{v.vU1}, 2, v{v.vU1}\nv_xor_b32 v{v.vU1}, v{v.vU1}, v1\nv_and_b32 v{v.vU1}, 7, v{v.vU1}\nv_lshlrev_b32 v{v.vU1}, 4, v{v.vU1}")
        p(f"v_xor_b32 v{v.vU0}, 32, v{v.vU1}\nv_add_u32 v{v.vU0}, v{v.vU0}, v{v.vG0}\nv_add_u32 v{v.vG0}, v{v.vG0}, v{v.vU1}")
        p(f"v_add_u32 v{v.vG1}, {8*3584-1024}, v{v.vG0}\nv_add_u32 v{v.vU1}, {8*3584-1024}, v{v.vU0}")
        srd(p, v.R_G, P_WG, 512*1792*2)
        srd(p, v.R_U, P_WU, 512*1792*2, shift=2048)
        p(f"s_mul_i32 s44, s{S_WAVE}, {16*3584}\ns_lshl_b32 s45, s29, 8\ns_add_u32 s44, s44, s45\ns_lshl_b32 s45, s{S_WAVE}, 12")
    @staticmethod
    def loads(p, s):
        v = P3W
        line, c = divmod(s, 8)
        def f0():
            p(f"s_add_u32 s46, s44, {c*64*3584 + line*128}\ns_add_u32 m0, s45, {pos(s)}")
            p.vm(f"buffer_load_dwordx4 v{v.vG0}, s[{v.R_G}:{v.R_G+3}], s46 offen lds", f"s{s}")
        def f1(): p.vm(f"buffer_load_dwordx4 v{v.vG1}, s[{v.R_G}:{v.R_G+3}], s46 offen offset:1024 lds", f"s{s}")
        def f2(): p.vm(f"buffer_load_dwordx4 v{v.vU0}, s[{v.R_U}:{v.R_U+3}], s46 offen offset:2048 lds", f"s{s}")
        def f3(): p.vm(f"buffer_load_dwordx4 v{v.vU1}, s[{v.R_U}:{v.R_U+3}], s46 offen offset:3072 lds", f"s{s}")
        return [f0, f1, f2, f3]

P3_PRE = 8

HKEEP = 180
L_OF = 65536
def p2(p):
    vX, vT, vB = 4, 6, 7
    WA, BR, ACC = 192, 224, 16
    p(f"s_lshr_b32 s31, s26, 1")
    p(f"s_lshr_b32 s32, s{S_WAVE}, 1\ns_and_b32 s33, s{S_WAVE}, 1")
    tr_addr_swz128(p, vT, 8, 10)
    p(f"s_lshl_b32 s34, s33, 6\nv_xor_b32 v{vT}, s34, v{vT}")
    p(f"s_lshl_b32 s34, s32, 15\ns_add_u32 s34, s34, {L_OF}\nv_add_u32 v{vB}, s34, v{vX}")
    XR = 48
    p("v_and_b32 v9, 31, v1\nv_lshlrev_b32 v9, 10, v9\nv_lshrrev_b32 v10, 5, v1\nv_lshlrev_b32 v10, 3, v10\nv_add_u32 v9, v9, v10")
    p("s_lshl_b32 s34, s26, 16\ns_lshl_b32 s35, s32, 15\ns_add_u32 s34, s34, s35\ns_lshl_b32 s35, s27, 7\ns_add_u32 s34, s34, s35\ns_lshl_b32 s35, s33, 6\ns_add_u32 s34, s34, s35")
    srd(p, 8, P_X, 2048*512*2)
    for b_ in range(4): p.vm(f"buffer_load_dwordx2 v[{XR+2*b_}:{XR+2*b_+1}], v9, s[8:11], s34 offen offset:{16*b_}", "xr")
    p(f"s_lshl_b32 s35, s26, 16\ns_lshl_b32 s36, s{S_WAVE}, 11\ns_add_u32 s35, s35, s36\ns_add_u32 s35, s35, {WS_OF:#x}\ns_add_u32 s36, s36, {L_OF}")
    p.wait(vm="wo")
    wait_go(p, 1, 31)
    stamp(p, "S2b passed")
    for c in range(4):
        for tg in range(2):
            p(f"s_add_u32 s37, s35, {tg*32768 + c*8192}\ns_add_u32 m0, s36, {tg*32768 + c*8192}")
            p.vm(f"buffer_load_dwordx4 v{vX}, s[{R_WS}:{R_WS+3}], s37 offen sc1 lds", f"o{c}")
            p.vm(f"buffer_load_dwordx4 v{vX}, s[{R_WS}:{R_WS+3}], s37 offen offset:1024 sc1 lds", f"o{c}")
    uid = p.newlabel("t")
    def rd(k):
        if k % 8 == 0:
            p.wait(vm=f"o{k//8}"); p("s_barrier")
        a_ = WA + 4*(k % 6); bb = BR + 4*(k % 4)
        p.ds(f"ds_read_b64_tr_b16 v[{a_}:{a_+1}], v{vT} offset:{L_WO + k*2048}", f"{uid}{k}")
        p.ds(f"ds_read_b64_tr_b16 v[{a_+2}:{a_+3}], v{vT} offset:{L_WO + k*2048 + 1024}", f"{uid}{k}")
        p.ds(f"ds_read_b128 v[{bb}:{bb+3}], v{vB} offset:{k*1024}", f"{uid}{k}")
    L = 3
    for k in range(L): rd(k)
    for k in range(32):
        p.wait(ds=f"{uid}{k}")
        a_ = WA + 4*(k % 6); bb = BR + 4*(k % 4)
        p(f"v_mfma_f32_32x32x16_bf16 v[{ACC}:{ACC+15}], v[{a_}:{a_+3}], v[{bb}:{bb+3}], {'0' if k == 0 else f'v[{ACC}:{ACC+15}]'}")
        if k + L < 32: rd(k + L)
    stamp(p, "p2 main")
    p("s_barrier")
    p(f"s_lshl_b32 s34, s26, 1\ns_add_u32 s34, s34, s32")
    p(f"s_lshl_b32 s35, s34, 5\ns_lshl_b32 s36, s27, 2\ns_add_u32 s35, s35, s36\ns_lshl_b32 s36, s33, 1\ns_add_u32 s35, s35, s36\ns_lshl_b32 s35, s35, 10\ns_add_u32 s35, s35, {WS_HF:#x}")
    p(f"s_lshl_b32 s36, s34, 4\ns_lshl_b32 s37, s27, 1\ns_add_u32 s36, s36, s37\ns_add_u32 s36, s36, s33\ns_lshl_b32 s36, s36, 8\ns_add_u32 s36, s36, {WS_ST:#x}")
    p.wait(vm="xr")
    T = 64
    for i in range(8): p(f"v_lshlrev_b32 v{T+2*i}, 16, v{XR+i}\nv_and_b32 v{T+2*i+1}, 0xffff0000, v{XR+i}")
    for i in range(0, 16, 2): p(f"v_pk_add_f32 v[{ACC+i}:{ACC+i+1}], v[{ACC+i}:{ACC+i+1}], v[{T+i}:{T+i+1}]")
    for i in range(8): p(f"v_cvt_pk_bf16_f32 v{HKEEP+i}, v{ACC+2*i}, v{ACC+2*i+1}")
    for f in range(2):
        p.vm(f"buffer_store_dwordx4 v[{HKEEP+4*f}:{HKEEP+4*f+3}], v{vX}, s[{R_WS}:{R_WS+3}], s35 offen offset:{f*1024} sc1", "hst")
    for i in range(8): p(f"v_lshlrev_b32 v{T+2*i}, 16, v{HKEEP+i}\nv_and_b32 v{T+2*i+1}, 0xffff0000, v{HKEEP+i}")
    for i in range(4): p(f"v_pk_add_f32 v[{T+16+2*i}:{T+17+2*i}], v[{T+4*i}:{T+4*i+1}], v[{T+4*i+2}:{T+4*i+3}]")
    p(f"v_pk_add_f32 v[{T+16}:{T+17}], v[{T+16}:{T+17}], v[{T+18}:{T+19}]\nv_pk_add_f32 v[{T+20}:{T+21}], v[{T+20}:{T+21}], v[{T+22}:{T+23}]")
    p(f"v_pk_add_f32 v[{T+16}:{T+17}], v[{T+16}:{T+17}], v[{T+20}:{T+21}]\nv_add_f32 v{T+24}, v{T+16}, v{T+17}")
    p(f"v_mov_b32 v{T+25}, v{T+24}\nv_permlane32_swap_b32 v{T+24}, v{T+25}\nv_add_f32 v{T+24}, v{T+24}, v{T+25}")
    p(f"v_mul_f32 v{T+24}, 0x3d000000, v{T+24}\nv_sub_f32 v{T+26}, 0, v{T+24}")
    for i in range(0, 16, 2): p(f"v_pk_add_f32 v[{T+i}:{T+i+1}], v[{T+i}:{T+i+1}], v[{T+26}:{T+27}] op_sel_hi:[1,0]")
    p(f"v_pk_mul_f32 v[{T+16}:{T+17}], v[{T}:{T+1}], v[{T}:{T+1}]\nv_pk_mul_f32 v[{T+18}:{T+19}], v[{T+2}:{T+3}], v[{T+2}:{T+3}]")
    for i in range(4, 16, 4):
        p(f"v_pk_fma_f32 v[{T+16}:{T+17}], v[{T+i}:{T+i+1}], v[{T+i}:{T+i+1}], v[{T+16}:{T+17}]\nv_pk_fma_f32 v[{T+18}:{T+19}], v[{T+i+2}:{T+i+3}], v[{T+i+2}:{T+i+3}], v[{T+18}:{T+19}]")
    p(f"v_pk_add_f32 v[{T+16}:{T+17}], v[{T+16}:{T+17}], v[{T+18}:{T+19}]\nv_add_f32 v{T+25}, v{T+16}, v{T+17}")
    p(f"v_mov_b32 v{T+26}, v{T+25}\nv_permlane32_swap_b32 v{T+25}, v{T+26}\nv_add_f32 v{T+25}, v{T+25}, v{T+26}")
    p("v_lshlrev_b32 v10, 3, v1\ns_mov_b32 exec_hi, 0")
    p.vm(f"buffer_store_dwordx2 v[{T+24}:{T+25}], v10, s[{R_WS}:{R_WS+3}], s36 offen sc1", "hst")
    p("s_mov_b64 exec, -1")
    p.wait(vm="hst")
    arrive(p, 2, 31, 16)
    stamp(p, "p2 h flag")
    E = p.newlabel("EP")
    p(f"s_or_b32 s35, s2, s{S_WAVE}\ns_cmp_lg_u32 s35, 3\ns_cbranch_scc1 {E}")
    p(f"s_cmp_lg_u32 s2, 0\ns_cbranch_scc1 {E}")
    p(f"s_mov_b32 s36, {WS_EP:#x}\ns_load_dword s35, s[{P_WS}:{P_WS+1}], s36\ns_waitcnt lgkmcnt(0)\ns_add_u32 s35, s35, 1\nv_mov_b32 v2, s35\nv_mov_b32 v3, 0")
    p(f"s_mov_b64 exec, 1\nbuffer_store_dword v2, v3, s[{R_WS}:{R_WS+3}], s36 offen sc1\ns_mov_b64 exec, -1")
    p.label(E)

def p3(p):
    END = p.newlabel("P3END")
    p(f"s_cmp_ge_u32 s29, 14\ns_cbranch_scc1 {END}")
    v = P3W
    vX = 4
    WF, ACC, T = 192, 16, 224
    vL = [5, 6, 7, 8]; vC = [9, 10, 11, 12]
    p(f"s_lshl_b32 s31, s28, 2\ns_add_u32 s31, s31, s{S_WAVE}")
    a0 = vL[0]
    p(f"v_bfe_u32 v{a0}, v1, 4, 1\nv_lshlrev_b32 v13, 11, v{a0}")
    p(f"v_bfe_u32 v14, v1, 3, 1\nv_lshlrev_b32 v14, 1, v14\nv_add_u32 v14, v14, v{a0}\nv_lshlrev_b32 v14, 5, v14\nv_add_u32 v13, v13, v14")
    p(f"v_lshrrev_b32 v14, 5, v1\nv_lshlrev_b32 v14, 2, v14\nv_bfe_u32 v15, v1, 2, 2\nv_add_u32 v14, v14, v15\nv_lshlrev_b32 v14, 7, v14\nv_add_u32 v13, v13, v14")
    p(f"v_and_b32 v14, 3, v1\nv_lshlrev_b32 v14, 3, v14\nv_add_u32 v{a0}, v13, v14")
    for u in range(1, 4): p(f"v_xor_b32 v{vL[u]}, {u*32}, v{a0}")
    p(f"s_lshl_b32 s33, s31, 12\ns_add_u32 s33, s33, {WS_ST:#x}")
    p("v_and_b32 v15, 31, v1\nv_lshlrev_b32 v15, 3, v15\nv_lshrrev_b32 v14, 5, v1\nv_lshlrev_b32 v14, 11, v14\nv_add_u32 v15, v15, v14")
    p(f"s_lshl_b32 s34, s31, 15\ns_add_u32 s34, s34, {WS_HF:#x}")
    p(f"s_mul_i32 s36, s31, {112*1024}\ns_lshl_b32 s37, s29, 13\ns_add_u32 s36, s36, s37\ns_add_u32 s36, s36, {WS_HH:#x}")
    def bulk3():
        paced(p, [f for s_ in range(2, P3_PRE) for f in P3W.loads(p, s_)])
    wait_go(p, 2, 28, arr2=(F6, 29, 16), bulk=bulk3)
    stamp(p, "S3 passed")
    def hload(ks):
        if ks % 4 == 0: p(f"s_add_u32 s35, s34, {ks*1024}")
        p.vm(f"buffer_load_dwordx4 a[{4*ks}:{4*ks+3}], v{vX}, s[{R_WS}:{R_WS+3}], s35 offen offset:{(ks%4)*1024} sc1", f"h{ks}")
    LEAD = 8
    for ks in range(4): hload(ks)
    ST = 96
    for i in range(8): p.vm(f"buffer_load_dwordx2 v[{ST+2*i}:{ST+2*i+1}], v15, s[{R_WS}:{R_WS+3}], s33 offen offset:{i*256} sc1", "st")
    CSR = 128
    p("v_bfe_u32 v16, v1, 4, 2\nv_lshrrev_b32 v17, 1, v16\nv_lshlrev_b32 v17, 2, v17\nv_and_b32 v16, 1, v16\nv_add_u32 v16, v16, v17\nv_mul_u32_u24 v16, 7168, v16\nv_and_b32 v17, 15, v1\nv_lshlrev_b32 v17, 4, v17\nv_add_u32 v16, v16, v17")
    p(f"s_lshl_b32 s32, s29, 9\ns_add_u32 s32, s32, {WS_CS:#x}\ns_add_u32 s37, s32, 14336")
    for l_ in range(2):
        for qq in range(2):
            r = CSR + 8*l_ + 4*qq
            p.vm(f"buffer_load_dwordx4 v[{r}:{r+3}], v16, s[{R_WS}:{R_WS+3}], s{37 if qq else 32} offen offset:{l_*256} sc1", "cs")
    for ks in range(4, LEAD): hload(ks)
    AUG, BA, CGR = 160, 168, 176
    MEAN, RSTD, CG = T + 8, T + 9, T + 10
    prep = []; q_ = prep.append
    def Q(txt):
        for x in txt.split("\n"): q_(x)
    Q("v_cmp_gt_u32 vcc, 32, v1")
    for l_ in range(2):
        for u in range(4):
            c = CSR + 8*l_ + u; t = CSR + 8*l_ + 4 + u; fr = 4*l_ + u
            Q(f"v_add_f32 v{c}, v{c}, v{t}")
        for u in range(4): Q(f"v_mov_b32 v{CSR+8*l_+4+u}, v{CSR+8*l_+u}")
        for u in range(4): Q(f"v_permlane32_swap_b32 v{CSR+8*l_+u}, v{CSR+8*l_+4+u}")
        for u in range(4): Q(f"v_add_f32 v{CSR+8*l_+u}, v{CSR+8*l_+u}, v{CSR+8*l_+4+u}")
        for u in range(4): Q(f"v_cvt_pk_bf16_f32 v{CSR+8*l_+4+u}, v{CSR+8*l_+u}, v{CSR+8*l_+u}")
        for u in range(4): Q(f"v_and_b32 v{CSR+8*l_+4+u}, 0xffff0000, v{CSR+8*l_+4+u}")
        for u in range(4): Q(f"v_sub_f32 v{CSR+8*l_+4+u}, v{CSR+8*l_+u}, v{CSR+8*l_+4+u}")
        for u in range(4): Q(f"v_cvt_pk_bf16_f32 v{CSR+8*l_+4+u}, v{CSR+8*l_+u}, v{CSR+8*l_+4+u}")
        for u in range(4): Q(f"v_cndmask_b32 v{AUG+4*l_+u}, 0, v{CSR+8*l_+4+u}, vcc")
    Q(f"v_add_f32 v{MEAN}, v{ST}, v{ST+2}")
    for i in range(2, 8): Q(f"v_add_f32 v{MEAN}, v{MEAN}, v{ST+2*i}")
    Q(f"v_mov_b32 v{CG}, v{MEAN}\nv_nop\nv_permlane32_swap_b32 v{MEAN}, v{CG}\nv_add_f32 v{MEAN}, v{MEAN}, v{CG}\nv_mul_f32 v{MEAN}, 0x3d800000, v{MEAN}")
    for i in range(8): Q(f"v_sub_f32 v{ST+2*i}, v{ST+2*i}, v{MEAN}")
    Q(f"v_mul_f32 v{RSTD}, v{ST}, v{ST}")
    for i in range(1, 8): Q(f"v_fmac_f32 v{RSTD}, v{ST+2*i}, v{ST+2*i}")
    Q(f"v_mul_f32 v{RSTD}, 0x42000000, v{RSTD}")
    for i in range(8): Q(f"v_add_f32 v{RSTD}, v{RSTD}, v{ST+2*i+1}")
    Q(f"v_mov_b32 v{CG}, v{RSTD}\nv_nop\nv_permlane32_swap_b32 v{RSTD}, v{CG}\nv_add_f32 v{RSTD}, v{RSTD}, v{CG}")
    Q(f"v_mov_b32 v{CG}, 0x3727c5ac\nv_fmac_f32 v{CG}, 0x3b000000, v{RSTD}\nv_rsq_f32 v{RSTD}, v{CG}")
    Q(f"v_mul_f32 v{CGR}, 0xbfb8aa3b, v{RSTD}")
    Q(f"v_sub_f32 v{ST}, 0, v{MEAN}\nv_cvt_pk_bf16_f32 v{ST+1}, v{ST}, v{ST}\nv_and_b32 v{ST+2}, 0xffff0000, v{ST+1}\nv_sub_f32 v{ST+2}, v{ST}, v{ST+2}\nv_cvt_pk_bf16_f32 v{ST+2}, v{ST+2}, v{ST+2}")
    Q(f"v_cndmask_b32 v{BA}, 0, v{ST+1}, vcc\nv_cndmask_b32 v{BA+1}, 0, v{ST+2}, vcc\nv_mov_b32 v{BA+2}, 0\nv_mov_b32 v{BA+3}, 0\nv_mov_b32 v174, 0\nv_mov_b32 v175, 0")
    def rs_store():
        RSK = p.newlabel("RS")
        p(f"s_cmp_lg_u32 s29, 0\ns_cbranch_scc1 {RSK}")
        p(f"s_lshl_b32 s37, s31, 7\ns_add_u32 s37, s37, {WS_RS:#x}\nv_lshlrev_b32 v13, 2, v1\ns_mov_b32 exec_hi, 0")
        p(f"buffer_store_dword v{RSTD}, v13, s[{R_WS}:{R_WS+3}], s37 offen sc1\ns_mov_b64 exec, -1")
        p.label(RSK)
    A1 = [ACC + 16*u for u in range(4)]; A2 = [ACC + 64, ACC + 80, ACC + 96, ACC]
    def aug(acc, fr, add=False):
        p(f"v_mov_b32 v172, v{AUG+fr}\nv_mov_b32 v173, v{AUG+fr}")
        p(f"v_mfma_f32_32x32x16_bf16 v[{acc}:{acc+15}], v[172:175], v[{BA}:{BA+3}], {f'v[{acc}:{acc+15}]' if add else '0'}")
    ET = T; outsel = [0]
    def glu_ops(acc, off):
        L = []
        o = 232 + 4*(outsel[0] & 1); outsel[0] += 1
        for half in range(2):
            js = range(4*half, 4*half + 4)
            for j in js: L.append(f"v_mul_f32 v{ET+j%4}, v{CGR}, v{acc+j}")
            for j in js: L.append(f"v_exp_f32 v{ET+j%4}, v{ET+j%4}")
            for j in js: L.append(f"v_add_f32 v{ET+j%4}, 1.0, v{ET+j%4}")
            for j in js: L.append(f"v_rcp_f32 v{ET+j%4}, v{ET+j%4}")
            for j in js: L.append(f"v_mul_f32 v{ET+j%4}, v{acc+8+j}, v{ET+j%4}")
            for jj in range(2): L.append(f"v_cvt_pk_bf16_f32 v{o+2*half+jj}, v{ET+2*jj}, v{ET+2*jj+1}")
        L.append(("store", f"s_add_u32 s41, s36, {off}", f"buffer_store_dwordx4 v[{o}:{o+3}], v{vX}, s[{R_WS}:{R_WS+3}], s41 offen sc1"))
        return L
    def emit(x):
        if isinstance(x, tuple): p(x[1]); p.vm(x[2], "hh")
        else: p(x)
    cur = {"slot": None}
    ready = set()
    def mkpre(s_):
        def pre():
            if s_ not in ready:
                p.wait(vm=f"s{s_}"); p("s_barrier"); ready.add(s_)
            if cur["slot"] != s_:
                base = pos(s_)
                for u in cur["us"]: p(f"v_add_u32 v{vC[u]}, {base}, v{vL[u]}")
                cur["slot"] = s_
        return pre
    def entries(line, us, accs):
        cur["us"] = us; cur["slot"] = None
        mf = []
        for ks in range(32):
            s_ = 8*line + ks//4
            for u in us:
                mf.append(dict(acc=f"v[{accs[u]}:{accs[u]+15}]", B=f"a[{4*ks}:{4*ks+3}]", areg=vC[u], off=((ks % 4)*4096, (ks % 4)*4096 + 1024), pre=mkpre(s_), ks=ks, slot=s_))
        return mf
    stamp(p, "p3 setup")
    mf = entries(0, [0, 1, 2, 3], A1)
    for u in range(4): mf[u]["C"] = "0"
    nxt = {"h": LEAD, "s": P3_PRE}
    def post1(m):
        def f():
            if m["first"] and nxt["h"] < 32:
                hload(nxt["h"]); nxt["h"] += 1
        return f
    slotq = []
    def want_slots(cur_slot):
        while nxt["s"] < 16 and nxt["s"] - K3_NR + 2 <= cur_slot:
            slotq.extend(P3W.loads(p, nxt["s"])); nxt["s"] += 1
    for i, m in enumerate(mf):
        m["first"] = (i % 4 == 0)
        if i % 4 == 0: m["vm"] = f"h{m['ks']}"
        def post(m=m, i=i):
            if i % 4 == 0 and nxt["h"] < 32: hload(nxt["h"]); nxt["h"] += 1
            if i % 16 == 1: want_slots(m["slot"])
            if i % 4 == 2 and slotq: slotq.pop(0)()
            if i % 4 == 3 and slotq and nxt["h"] >= 32: slotq.pop(0)()
            if i >= 40:
                for _ in range(2):
                    if prep: p(prep.pop(0))
        m["post"] = post
    stream(p, mf, WF, 8, 6)
    while prep: p(prep.pop(0))
    rs_store()
    for u in range(4): aug(A1[u], u, add=True)
    stamp(p, "p3 pass1")
    for u in range(2): aug(A2[u], 4 + u)
    fill = []
    for u in range(4): fill += glu_ops(A1[u], u*1024)
    mf = entries(1, [0, 1], A2)
    for i, m in enumerate(mf):
        def post(m=m, i=i):
            if i % 8 == 1: want_slots(m["slot"])
            if slotq: slotq.pop(0)()
        m["post"] = post
    stream(p, mf, WF, 8, 6, fill=fill, emit=emit)
    assert nxt["s"] == 16 and not slotq and not fill
    stamp(p, "p3 pass2a")
    aug(A2[2], 6)
    fill = glu_ops(A2[0], 4*1024) + glu_ops(A2[1], 5*1024)
    stream(p, entries(1, [2], A2), WF, 8, 6, fill=fill, emit=emit)
    stamp(p, "p3 pass2b")
    aug(A2[3], 7)
    fill = glu_ops(A2[2], 6*1024)
    stream(p, entries(1, [3], A2), WF, 8, 6, fill=fill, emit=emit)
    p("s_barrier")
    stamp(p, "p3 pass2c")
    return END, glu_ops(A2[3], 7*1024), emit

def p4_setup(p):
    vWo, vWo2 = 244, 245
    wsrc_swz128(p, vWo, 246)
    p(f"v_add_u32 v{vWo2}, {8192-1024}, v{vWo}")
    srd(p, 8, P_WD, 1792*512*2)
    p(f"s_mul_i32 s47, s{S_WAVE}, {28*16*1024}\ns_lshl_b32 s48, s27, 7\ns_add_u32 s47, s47, s48\ns_mul_i32 s48, s{S_WAVE}, {L_WD_W}")
NWD = L_WD_W // 2048
def wd_load(p, k):
    def f():
        p(f"s_add_u32 s49, s47, {16*k*1024}\ns_add_u32 m0, s48, {(k % NWD)*2048}")
        p.vm(f"buffer_load_dwordx4 v244, s[8:11], s49 offen lds", f"d{k}")
        p.vm(f"buffer_load_dwordx4 v245, s[8:11], s49 offen offset:1024 lds", f"d{k}")
    return f

P4_PRE = 18
def p4(p):
    vX, vT0, vT1 = 4, 6, 7
    HB, WA = 64, 192
    RING = 8
    p(f"s_lshr_b32 s31, s26, 1")
    tr_addr_swz128(p, vT0, vT1, 10)
    p(f"v_add_u32 v{vT0}, s48, v{vT0}\nv_add_u32 v{vT1}, s48, v{vT1}")
    for i in range(64): p(f"v_accvgpr_write_b32 a{i}, 0")
    p(f"s_mul_i32 s33, s26, {2*112*1024}\ns_mul_i32 s34, s{S_WAVE}, {28*1024}\ns_add_u32 s33, s33, s34\ns_add_u32 s33, s33, {WS_HH:#x}\ns_add_u32 s34, s33, {112*1024}")
    def bulk4():
        paced(p, [wd_load(p, k) for k in range(P4_PRE)])
    wait_go(p, 3, 31, bulk=bulk4)
    stamp(p, "S4 passed")
    def hload(k):
        sl = k % RING
        def f0():
            if k % 4 == 0 and k: p("s_add_u32 s33, s33, 4096\ns_add_u32 s34, s34, 4096")
            p.vm(f"buffer_load_dwordx4 v[{HB+8*sl}:{HB+8*sl+3}], v{vX}, s[{R_WS}:{R_WS+3}], s33 offen offset:{(k%4)*1024} sc1", f"k{k}")
        def f1(): p.vm(f"buffer_load_dwordx4 v[{HB+8*sl+4}:{HB+8*sl+7}], v{vX}, s[{R_WS}:{R_WS+3}], s34 offen offset:{(k%4)*1024} sc1", f"k{k}")
        return [f0, f1]
    for k in range(RING - 1):
        for f in hload(k): f()
    p(f"s_lshr_b32 s36, s{S_WAVE}, 1\ns_lshl_b32 s35, s26, 1\ns_add_u32 s35, s35, s36\ns_lshl_b32 s35, s35, 7\ns_add_u32 s35, s35, {WS_RS:#x}\nv_and_b32 v9, 31, v1\nv_lshlrev_b32 v9, 2, v9")
    p.vm(f"buffer_load_dword v56, v9, s[{R_WS}:{R_WS+3}], s35 offen sc1", "rs")
    nd = [P4_PRE]
    mf = []
    for k in range(28):
        sl = k % RING
        for cg, vt in ((0, vT0), (1, vT1)):
            for tg in range(2):
                a_ = 32*cg + 16*tg; h = HB + 8*sl + 4*tg
                e = dict(acc=f"a[{a_}:{a_+15}]", B=f"v[{h}:{h+3}]", areg=vt, off=((k % NWD)*2048, (k % NWD)*2048 + 1024), vm=f"k{k}", share=(tg == 1))
                if cg == 0 and tg == 0: e["pre"] = (lambda k=k: p.wait(vm=f"d{k}"))
                def post(k=k, cg=cg, tg=tg):
                    n = k + RING - 1
                    if n < 28 and cg == 0: hload(n)[tg]()
                    if cg == 1 and tg == 0 and nd[0] < 28 and nd[0] - NWD < k - 1:
                        wd_load(p, nd[0])(); nd[0] += 1
                e["post"] = post
                mf.append(e)
    stream2(p, mf, WA, 6, 3)
    assert nd[0] == 28
    stamp(p, "p4 main")
    reduce_write(p, 0, L_WD_W)
    p(f"s_lshr_b32 s36, s{S_WAVE}, 1\ns_and_b32 s37, s{S_WAVE}, 1\ns_mul_i32 s38, s36, {32*272}\ns_lshl_b32 s39, s37, 7\ns_add_u32 s38, s38, s39")
    p("v_and_b32 v10, 31, v1\nv_mul_u32_u24 v10, 272, v10\nv_lshrrev_b32 v11, 5, v1\nv_lshlrev_b32 v11, 4, v11\nv_add_u32 v10, v10, v11\nv_add_u32 v10, s38, v10\nv_add_u32 v11, 0x10000, v10")
    D = 64
    for w in range(4):
        for b_ in range(4):
            off = w*L_WD_W + b_*32
            p.ds(f"ds_read_b128 v[{D+16*w+4*b_}:{D+16*w+4*b_+3}], v{10 if off < 65536 else 11} offset:{off % 65536}", f"rr{w}")
    p("v_and_b32 v9, 31, v1\nv_lshlrev_b32 v9, 10, v9\nv_lshrrev_b32 v12, 5, v1\nv_lshlrev_b32 v12, 4, v12\nv_add_u32 v9, v9, v12")
    p("s_lshl_b32 s32, s26, 16\ns_lshl_b32 s33, s36, 15\ns_add_u32 s32, s32, s33\ns_lshl_b32 s33, s27, 7\ns_add_u32 s32, s32, s33\ns_lshl_b32 s33, s37, 6\ns_add_u32 s32, s32, s33")
    srd(p, 12, P_OUT, 2048*512*2)
    T = 128
    for i in range(8): p(f"v_lshlrev_b32 v{T+2*i}, 16, v{HKEEP+i}\nv_and_b32 v{T+2*i+1}, 0xffff0000, v{HKEEP+i}")
    p.wait(vm="rs", ds="rr1")
    for i in range(0, 16, 2): p(f"v_pk_add_f32 v[{D+i}:{D+i+1}], v[{D+i}:{D+i+1}], v[{D+16+i}:{D+16+i+1}]")
    p.wait(ds="rr3")
    for i in range(0, 16, 2): p(f"v_pk_add_f32 v[{D+32+i}:{D+32+i+1}], v[{D+32+i}:{D+32+i+1}], v[{D+48+i}:{D+48+i+1}]")
    for i in range(0, 16, 2): p(f"v_pk_add_f32 v[{D+i}:{D+i+1}], v[{D+i}:{D+i+1}], v[{D+32+i}:{D+32+i+1}]")
    for i in range(0, 16, 2): p(f"v_pk_fma_f32 v[{D+i}:{D+i+1}], v[{D+i}:{D+i+1}], v[56:57], v[{T+i}:{T+i+1}] op_sel_hi:[1,0,1]")
    Q = 160
    for i in range(8): p(f"v_cvt_pk_bf16_f32 v{Q+i}, v{D+2*i}, v{D+2*i+1}")
    for m in range(2):
        p(f"v_permlane32_swap_b32 v{Q+4*m}, v{Q+4*m+2}\nv_permlane32_swap_b32 v{Q+4*m+1}, v{Q+4*m+3}")
    for m in range(2):
        p.vm(f"buffer_store_dwordx4 v[{Q+4*m}:{Q+4*m+3}], v9, s[12:15], s32 offen offset:{32*m}", "ost")

def mega():
    p = Prog()
    NSTAMP[0] = 0; STAMP_NAMES.clear()
    p("s_cmp_ge_u32 s2, 256\ns_cbranch_scc1 L_end")
    p("s_load_dwordx16 s[64:79], s[0:1], 0\ns_load_dwordx4 s[80:83], s[0:1], 64\ns_load_dwordx2 s[84:85], s[0:1], 80")
    p(f"v_and_b32 v1, 63, v0\nv_lshrrev_b32 v2, 6, v0\nv_readfirstlane_b32 s{S_WAVE}, v2")
    if STAMPS: p("v_mov_b32 v255, 0\ns_memrealtime s[96:97]\ns_waitcnt lgkmcnt(0)\nv_writelane_b32 v255, s96, 63")
    stamp(p, "entry")
    roles(p)
    p0(p)
    p1(p)
    p2(p)
    END, tail, emit = p3(p)
    for x in tail: emit(x)
    p.wait(vm="hh")
    arrive(p, 3, 28, 14)
    stamp(p, "p3 hh flag")
    qa = list(p.vmq)
    J = p.newlabel("J")
    p(f"s_branch {J}")
    p.label(END)
    p.label(J)
    p.vmq = []
    p4_setup(p)
    p4(p)
    if STAMPS:
        stamp(p, "p4 stores issued")
        p("s_waitcnt vmcnt(0)")
        stamp(p, "end")
        p("s_memrealtime s[96:97]\ns_waitcnt lgkmcnt(0)\nv_writelane_b32 v255, s96, 62")
        p(f"s_lshl_b32 s58, s2, 2\ns_add_u32 s58, s58, s{S_WAVE}\ns_lshl_b32 s58, s58, 8\ns_add_u32 s58, s58, {WS_DBG:#x}\nv_lshlrev_b32 v2, 2, v1")
        p(f"buffer_store_dword v255, v2, s[{R_WS}:{R_WS+3}], s58 offen")
    p.label("L_end")
    p("s_endpgm")
    return p

def build():
    p = mega()
    t, d = kernel_text(NAME + "_kernel", p, 256, 128, sgpr=100)
    print(f"mega: {p.count()} instrs, {p.nops if hasattr(p,'nops') else 0} nop states", file=sys.stderr)
    txt = f"; @launch grid=(256,1,1) block=(256,1,1) lds={LDS_BYTES}\n" + '.amdgcn_target "amdgcn-amd-amdhsa--gfx950"\n' + t
    txt += '.section .rodata,"a"\n.p2align 6\n' + d
    return txt

if __name__ == "__main__":
    for a_ in list(sys.argv):
        if a_.startswith("--set="):
            k_, v_ = a_[6:].split("="); globals()[k_] = int(v_); sys.argv.remove(a_)
    if "--stamps" in sys.argv:
        STAMPS = True; sys.argv.remove("--stamps")
    out = sys.argv[1] if len(sys.argv) > 1 else "mega.s"
    txt = build()
    open(out, "w").write(txt)
    if STAMPS: open(out + ".names", "w").write("\n".join(STAMP_NAMES))
```

```python
import sys
from dsl import Prog, kernel_text

NAME = "sequential_preLN__linear_kernel_hedgehog__glu_gated_glu__prompt"
WS_XN   = 0x000000
WS_OF   = 0x200000
WS_KV   = 0x400000
WS_HF   = 0x500000
WS_ST   = 0x700000
WS_HH   = 0x800000
WS_CS   = 0xF00000
WS_RS   = 0xF10000
WS_FL   = 0xF20000
WS_EP   = 0xF30000
WS_F1   = 0xF80000
WS_CNT  = 0xF90000
WS_GO   = 0xFA0000
WS_DBG  = 0xF40000
WS_SIZE = 0x1000000
assert True
F1, F2, F3, F4, F5, F6 = (WS_FL + i*4096 for i in range(6))
LOG2E = 0x3fb8aa3b
STAMPS = False
TOUCH = True
CODEPF = 1
CODE_LINES_PER_WG = 10
CODE_BYTES = 40960
PACE0 = 40
DELAY0 = 0
PACE = 40
SLEEP = 2
NSTAMP = [0]
SPIN = 1 << 18

S_WAVE, S_X, S_I, S_TAG = 20, 21, 22, 60
P_X, P_WQKV, P_WPHI, P_WO, P_WG, P_WU, P_WD, P_OUT, P_WS = 64, 66, 68, 70, 74, 76, 78, 80, 84
R_WS = 4

def srd(p, d, ptr, size, shift=0):
    if shift:
        p(f"s_sub_u32 s{d}, s{ptr}, {shift}\ns_subb_u32 s{d+1}, s{ptr+1}, 0\ns_and_b32 s{d+1}, s{d+1}, 0xffff")
    else:
        p(f"s_mov_b32 s{d}, s{ptr}\ns_and_b32 s{d+1}, s{ptr+1}, 0xffff")
    p(f"s_mov_b32 s{d+2}, {size + shift:#x}\ns_mov_b32 s{d+3}, 0x20000")

def stamp(p, name):
    if not STAMPS: return
    i = NSTAMP[0]; NSTAMP[0] += 1
    STAMP_NAMES.append(name)
    p(f"s_memtime s[98:99]\ns_waitcnt lgkmcnt(0)\nv_writelane_b32 v255, s98, {i}")
STAMP_NAMES = []

def flag_store(p, arr, sblock, sword, vt=(2, 3)):
    p(f"s_lshl_b32 s58, s{sblock}, 8\ns_lshl_b32 s59, s{sword}, 2\ns_add_u32 s58, s58, s59\ns_add_u32 s58, s58, {arr:#x}")
    p(f"v_mov_b32 v{vt[0]}, s{S_TAG}\nv_mov_b32 v{vt[1]}, 0")
    p("s_mov_b64 exec, 1")
    p.vm(f"buffer_store_dword v{vt[0]}, v{vt[1]}, s[{R_WS}:{R_WS+3}], s58 offen sc1", "flag")
    p("s_mov_b64 exec, -1")

def poll(p, arr, sblock, nwords=64, extra=None, vt=(2, 3), barrier=True, always=False, arr2=None):
    L = p.newlabel("PL"); D = p.newlabel("PD")
    if not always: p(f"s_cmp_lg_u32 s{S_WAVE}, 0\ns_cbranch_scc1 {D}")
    if arr2 is not None:
        p(f"s_lshl_b32 s55, s{arr2[1]}, 8\ns_add_u32 s55, s55, {arr2[0]:#x}\nv_and_b32 v18, 63, v0\nv_min_u32 v18, {arr2[2]-1}, v18\nv_lshlrev_b32 v18, 2, v18")
    p(f"s_lshl_b32 s58, s{sblock}, 8\ns_add_u32 s58, s58, {arr:#x}")
    p(f"v_and_b32 v{vt[0]}, 63, v0")
    if nwords < 64: p(f"v_min_u32 v{vt[0]}, {nwords-1}, v{vt[0]}")
    p(f"v_lshlrev_b32 v{vt[0]}, 2, v{vt[0]}")
    if extra is not None:
        pass
    p(f"s_mov_b32 s59, {SPIN}")
    p.label(L)
    p(f"buffer_load_dword v{vt[1]}, v{vt[0]}, s[{R_WS}:{R_WS+3}], s58 offen sc1")
    if extra is not None:
        p(f"v_mov_b32 v19, 0\nbuffer_load_dword v19, v19, s[{R_WS}:{R_WS+3}], s{extra} offen sc1")
    if arr2 is not None:
        p(f"buffer_load_dword v19, v18, s[{R_WS}:{R_WS+3}], s55 offen sc1")
    p("s_waitcnt vmcnt(0)")
    p(f"v_cmp_ne_u32 vcc, s{S_TAG}, v{vt[1]}")
    if extra is not None or arr2 is not None:
        p(f"v_cmp_ne_u32 s[56:57], s{S_TAG}, v19\ns_or_b64 vcc, vcc, s[56:57]")
    p(f"s_cbranch_vccz {D}")
    if SLEEP: p(f"s_sleep {SLEEP}")
    p(f"s_sub_u32 s59, s59, 1\ns_cmp_lg_u32 s59, 0\ns_cbranch_scc1 {L}")
    p.label(D)
    if barrier: p("s_barrier")

def paced(p, fns):
    for f in fns:
        n0 = len(p.vmq)
        f()
        if len(p.vmq) > PACE:
            p(f"s_waitcnt vmcnt({PACE})"); p.vmq = p.vmq[-PACE:]

def poll_with_bulk(p, bulk, *args, **kw):
    A = p.newlabel("BK"); B = p.newlabel("BK")
    q0 = list(p.vmq)
    p(f"s_cmp_eq_u32 s{S_WAVE}, 0\ns_cbranch_scc1 {A}")
    bulk()
    q1 = list(p.vmq)
    p.label(A)
    poll(p, *args, **kw)
    p(f"s_cmp_lg_u32 s{S_WAVE}, 0\ns_cbranch_scc1 {B}")
    p.vmq = list(q0)
    bulk()
    p.label(B)
    p.vmq = q1

def arrive(p, k, sblock, n):
    D = p.newlabel("AR")
    p("s_barrier")
    p(f"s_cmp_lg_u32 s{S_WAVE}, 0\ns_cbranch_scc1 {D}")
    p(f"s_lshl_b32 s58, s{sblock}, 9\ns_add_u32 s58, s58, {WS_CNT + k*128:#x}\nv_mov_b32 v2, 1\nv_mov_b32 v3, 0\ns_mov_b64 exec, 1")
    p(f"buffer_atomic_add v2, v3, s[{R_WS}:{R_WS+3}], s58 offen sc0 sc1\ns_waitcnt vmcnt(0)\nv_readfirstlane_b32 s59, v2\ns_mov_b64 exec, -1")
    p(f"s_cmp_lg_u32 s59, {n-1}\ns_cbranch_scc1 {D}")
    p(f"s_lshl_b32 s58, s{sblock}, 7\ns_add_u32 s58, s58, {WS_GO + k*2048:#x}\nv_mov_b32 v2, s{S_TAG}\ns_mov_b64 exec, 1")
    p(f"buffer_store_dword v2, v3, s[{R_WS}:{R_WS+3}], s58 offen sc1\ns_mov_b64 exec, -1")
    p.label(D)

def wait_go(p, k, sblock, arr2=None, bulk=None):
    A = p.newlabel("BK"); B = p.newlabel("BK"); L = p.newlabel("PL"); D = p.newlabel("PD")
    q0 = list(p.vmq)
    p(f"s_cmp_eq_u32 s{S_WAVE}, 0\ns_cbranch_scc1 {A}")
    if bulk:
        p("s_sleep 1")
        bulk()
    q1 = list(p.vmq)
    p(f"s_branch {D}")
    p.label(A)
    p(f"s_lshl_b32 s58, s{sblock}, 7\ns_add_u32 s58, s58, {WS_GO + k*2048:#x}\nv_mov_b32 v2, 0\ns_mov_b32 s59, {SPIN}")
    if arr2 is not None:
        p(f"s_lshl_b32 s55, s{arr2[1]}, 8\ns_add_u32 s55, s55, {arr2[0]:#x}\nv_and_b32 v18, 63, v0\nv_min_u32 v18, {arr2[2]-1}, v18\nv_lshlrev_b32 v18, 2, v18")
    p.label(L)
    p(f"buffer_load_dword v3, v2, s[{R_WS}:{R_WS+3}], s58 offen sc1")
    if arr2 is not None: p(f"buffer_load_dword v19, v18, s[{R_WS}:{R_WS+3}], s55 offen sc1")
    p(f"s_waitcnt vmcnt(0)\nv_cmp_ne_u32 vcc, s{S_TAG}, v3")
    if arr2 is not None: p(f"v_cmp_ne_u32 s[56:57], s{S_TAG}, v19\ns_or_b64 vcc, vcc, s[56:57]")
    p(f"s_cbranch_vccz {D}")
    if SLEEP: p(f"s_sleep {SLEEP}")
    p(f"s_sub_u32 s59, s59, 1\ns_cmp_lg_u32 s59, 0\ns_cbranch_scc1 {L}")
    p.label(D)
    p("s_barrier")
    if bulk:
        p(f"s_cmp_lg_u32 s{S_WAVE}, 0\ns_cbranch_scc1 {B}")
        p.vmq = list(q0)
        bulk()
        p.label(B)
    p.vmq = q1

def wave_sum(p, regs, tmp):
    for ctl in ("quad_perm:[1,0,3,2]", "quad_perm:[2,3,0,1]", "row_half_mirror", "row_mirror"):
        for r in regs: p(f"v_add_f32_dpp v{r}, v{r}, v{r} {ctl} row_mask:0xf bank_mask:0xf")
    for sw in ("v_permlane16_swap_b32", "v_permlane32_swap_b32"):
        for r, t in zip(regs, tmp): p(f"v_mov_b32 v{t}, v{r}")
        for r, t in zip(regs, tmp): p(f"{sw} v{r}, v{t}")
        for r, t in zip(regs, tmp): p(f"v_add_f32 v{r}, v{r}, v{t}")

def tr_addr(p, dst, tmp, pitch, hrows):
    p(f"v_lshrrev_b32 v{dst}, 5, v1\nv_mul_u32_u24 v{dst}, {hrows}, v{dst}\nv_bfe_u32 v{tmp}, v1, 2, 2\nv_add_u32 v{dst}, v{dst}, v{tmp}\nv_mul_u32_u24 v{dst}, {pitch}, v{dst}")
    p(f"v_bfe_u32 v{tmp}, v1, 4, 1\nv_lshlrev_b32 v{tmp}, 5, v{tmp}\nv_add_u32 v{dst}, v{dst}, v{tmp}\nv_and_b32 v{tmp}, 3, v1\nv_lshlrev_b32 v{tmp}, 3, v{tmp}\nv_add_u32 v{dst}, v{dst}, v{tmp}")

def softmax_ops(blocks, sL, tmp):
    L = []; p = L.append
    n = len(blocks)
    M = [tmp + 4*i for i in range(n)]; T = [m + 1 for m in M]; S = [m + 2 for m in M]
    for (b, o), m in zip(blocks, M): p(f"v_max3_f32 v{m}, v{b}, v{b+1}, v{b+2}")
    for (b, o), m in zip(blocks, M): p(f"v_max3_f32 v{m}, v{m}, v{b+3}, v{b+4}")
    for (b, o), m in zip(blocks, M): p(f"v_max3_f32 v{m}, v{m}, v{b+5}, v{b+6}")
    for (b, o), m in zip(blocks, M): p(f"v_max_f32 v{m}, v{m}, v{b+7}")
    for m, t in zip(M, T): p(f"v_mov_b32 v{t}, v{m}")
    for m, t in zip(M, T): p(f"v_permlane32_swap_b32 v{m}, v{t}")
    for m, t in zip(M, T): p(f"v_max_f32 v{m}, v{m}, v{t}")
    for m in M: p(f"v_mul_f32 v{m}, s{sL}, v{m}")
    for (b, o), m in zip(blocks, M):
        for i in range(4):
            p(f"v_pk_fma_f32 v[{b+2*i}:{b+2*i+1}], v[{b+2*i}:{b+2*i+1}], s[{sL}:{sL+1}], v[{m}:{m+1}] op_sel_hi:[1,1,0] neg_lo:[0,0,1] neg_hi:[0,0,1]")
    for (b, o), m in zip(blocks, M):
        for i in range(8): p(f"v_exp_f32 v{b+i}, v{b+i}")
    for (b, o), s_ in zip(blocks, S): p(f"v_pk_add_f32 v[{s_}:{s_+1}], v[{b}:{b+1}], v[{b+2}:{b+3}]")
    for (b, o), m in zip(blocks, M): p(f"v_pk_add_f32 v[{m}:{m+1}], v[{b+4}:{b+5}], v[{b+6}:{b+7}]")
    for m, s_ in zip(M, S): p(f"v_pk_add_f32 v[{m}:{m+1}], v[{m}:{m+1}], v[{s_}:{s_+1}]")
    for m, t in zip(M, T): p(f"v_add_f32 v{m}, v{m}, v{t}")
    for m, t in zip(M, T): p(f"v_mov_b32 v{t}, v{m}")
    for m, t in zip(M, T): p(f"v_permlane32_swap_b32 v{m}, v{t}")
    for m, t in zip(M, T): p(f"v_add_f32 v{m}, v{m}, v{t}")
    for m in M: p(f"v_rcp_f32 v{m}, v{m}")
    for (b, o), m in zip(blocks, M):
        for i in range(4): p(f"v_pk_mul_f32 v[{b+2*i}:{b+2*i+1}], v[{b+2*i}:{b+2*i+1}], v[{m}:{m+1}] op_sel_hi:[1,0]")
    for (b, o), m in zip(blocks, M):
        for i in range(4): p(f"v_cvt_pk_bf16_f32 v{o+i}, v{b+2*i}, v{b+2*i+1}")
    return L

def stream(p, mf, ring, R, L, pend=None, fill=None, emit=None, fill_total=None, pend_every=1):
    pend = pend if pend is not None else []
    fill = fill if fill is not None else []
    emit = emit or p
    n = len(mf)
    uid = p.newlabel("t")
    def rd(i):
        m = mf[i]
        if m.get("pre"): m["pre"]()
        b = ring + 4*(i % R)
        p.ds(f"ds_read_b64_tr_b16 v[{b}:{b+1}], v{m['areg']} offset:{m['off'][0]}", f"{uid}_{i}")
        p.ds(f"ds_read_b64_tr_b16 v[{b+2}:{b+3}], v{m['areg']} offset:{m['off'][1]}", f"{uid}_{i}")
    for i in range(min(L, n)): rd(i)
    for i in range(n):
        m = mf[i]
        if m.get("before"): m["before"]()
        tags = [f"{uid}_{i}"] + ([f"{uid}_{i+1}"] if (i % 2 == 0 and i + 1 < n and i + 1 < i + L - 1) else [])
        p.wait(vm=m.get("vm"), ds=tags)
        b = ring + 4*(i % R)
        p(f"v_mfma_f32_32x32x16_bf16 {m['acc']}, v[{b}:{b+3}], {m['B']}, {m.get('C', m['acc'])}")
        if i + L < n: rd(i + L)
        if m.get("post"): m["post"]()
        if pend and i % pend_every == 0: pend.pop(0)()
        if fill:
            k = -(-len(fill) // max(n - i - 2, 1))
            for _ in range(min(k, len(fill))): emit(fill.pop(0))

def stream2(p, mf, ring, R, L, pend=None, pend_at=None):
    pend = pend if pend is not None else []
    uid = p.newlabel("t")
    frags = [i for i, m in enumerate(mf) if not m.get("share")]
    fidx = {}
    c = -1
    for i, m in enumerate(mf):
        if not m.get("share"): c += 1
        fidx[i] = c
    nf = len(frags)
    def rd(f):
        m = mf[frags[f]]
        if m.get("pre"): m["pre"]()
        b = ring + 4*(f % R)
        p.ds(f"ds_read_b64_tr_b16 v[{b}:{b+1}], v{m['areg']} offset:{m['off'][0]}", f"{uid}_{f}")
        p.ds(f"ds_read_b64_tr_b16 v[{b+2}:{b+3}], v{m['areg']} offset:{m['off'][1]}", f"{uid}_{f}")
    for f in range(min(L, nf)): rd(f)
    for i, m in enumerate(mf):
        f = fidx[i]
        p.wait(vm=m.get("vm"), ds=f"{uid}_{f}")
        b = ring + 4*(f % R)
        p(f"v_mfma_f32_32x32x16_bf16 {m['acc']}, v[{b}:{b+3}], {m['B']}, {m['acc']}")
        if not m.get("share") and f + L < nf: rd(f + L)
        if m.get("post"): m["post"]()

def interleave(p, ops, fns, every):
    fns = list(fns)
    for i, x in enumerate(ops):
        p(x)
        if fns and i % every == every - 1: fns.pop(0)()
    for f in fns: f()

def wsrc_swz128(p, dst, tmp):
    p(f"v_lshrrev_b32 v{dst}, 3, v1\nv_lshlrev_b32 v{dst}, 10, v{dst}")
    p(f"v_bfe_u32 v{tmp}, v1, 4, 1\nv_lshlrev_b32 v{tmp}, 2, v{tmp}\nv_xor_b32 v{tmp}, v{tmp}, v1\nv_and_b32 v{tmp}, 7, v{tmp}\nv_lshlrev_b32 v{tmp}, 4, v{tmp}")
    p(f"v_add_u32 v{dst}, v{dst}, v{tmp}")

def tr_addr_swz128(p, d0, d1, tmp):
    p(f"v_lshrrev_b32 v{d0}, 5, v1\nv_lshlrev_b32 v{d0}, 2, v{d0}\nv_bfe_u32 v{tmp}, v1, 2, 2\nv_add_u32 v{d0}, v{d0}, v{tmp}\nv_lshlrev_b32 v{d0}, 7, v{d0}")
    p(f"v_bfe_u32 v{tmp}, v1, 3, 1\nv_lshlrev_b32 v{tmp}, 6, v{tmp}\nv_add_u32 v{d0}, v{d0}, v{tmp}")
    p(f"v_bfe_u32 v{tmp}, v1, 4, 1\nv_lshlrev_b32 v{tmp}, 5, v{tmp}\nv_add_u32 v{d0}, v{d0}, v{tmp}")
    p(f"v_and_b32 v{tmp}, 3, v1\nv_lshlrev_b32 v{tmp}, 3, v{tmp}\nv_add_u32 v{d0}, v{d0}, v{tmp}")
    p(f"v_xor_b32 v{d1}, 64, v{d0}")

L_W1, L_WPHI, L_SCR, L_KVP = 0, 98304, 102400, 139264
W1BASE = {1: 0, 2: 32768, 0: 65536}
L_CS = 65536
L_WO, L_RED2 = 0, 65536
K3_NR = 10
def pos(s): return ((s + 8) % K3_NR)*16384
L_WD_W = 36864
LDS_BYTES = 160*1024

def roles(p):
    p(f"s_and_b32 s{S_X}, s2, 7\ns_lshr_b32 s{S_I}, s2, 3")
    p(f"s_lshr_b32 s24, s{S_X}, 1\ns_lshl_b32 s24, s24, 2\ns_lshr_b32 s23, s{S_I}, 3\ns_add_u32 s24, s24, s23")
    p(f"s_and_b32 s25, s{S_X}, 1\ns_lshl_b32 s25, s25, 3\ns_and_b32 s23, s{S_I}, 7\ns_add_u32 s25, s25, s23")
    p(f"s_lshl_b32 s26, s{S_X}, 2\ns_lshr_b32 s23, s{S_I}, 3\ns_add_u32 s26, s26, s23\ns_and_b32 s27, s{S_I}, 7")
    p(f"s_mul_i32 s23, s{S_I}, 37\ns_lshr_b32 s23, s23, 8")
    p(f"s_lshr_b32 s28, s{S_X}, 1\ns_lshl_b32 s28, s28, 2\ns_add_u32 s28, s28, s23")
    p(f"s_mul_i32 s23, s23, 7\ns_sub_u32 s29, s{S_I}, s23\ns_and_b32 s23, s{S_X}, 1\ns_mul_i32 s23, s23, 7\ns_add_u32 s29, s29, s23")
    p(f"s_cmp_ge_u32 s{S_I}, 28\ns_cselect_b32 s29, 14, s29")
    p("s_lshr_b32 s30, s2, 4")

def p0(p):
    vX, vW = 4, 5
    R_A, R_B, R_C = 8, 12, 16
    p(f"v_lshlrev_b32 v{vX}, 4, v1")
    DM = p.newlabel("DMAW"); JN = p.newlabel("P0J")
    p(f"s_cmp_ge_u32 s{S_WAVE}, 2\ns_cbranch_scc1 {DM}")
    p(f"s_lshl_b32 s31, s2, 3\ns_lshl_b32 s32, s{S_WAVE}, 2\ns_add_u32 s31, s31, s32\ns_lshl_b32 s32, s31, 10")
    p("v_and_b32 v8, 3, v1\nv_lshrrev_b32 v9, 2, v1\nv_lshlrev_b32 v10, 10, v8\nv_lshlrev_b32 v11, 4, v9\nv_add_u32 v10, v10, v11")
    p("s_waitcnt lgkmcnt(0)")
    srd(p, R_A, P_X, 2048*512*2)
    XI = 12
    srd(p, R_WS, P_WS, WS_SIZE)
    Z = p.newlabel("Z")
    p(f"s_and_b32 s35, s2, 15\ns_xor_b32 s37, s{S_WAVE}, 1\ns_or_b32 s35, s35, s37\ns_cmp_lg_u32 s35, 0\ns_cbranch_scc1 {Z}")
    p("v_mov_b32 v28, 0\nv_mov_b32 v29, 0\nv_mov_b32 v30, 0\nv_mov_b32 v31, 0")
    p(f"s_mul_i32 s35, s30, 4352\ns_add_u32 s35, s35, {WS_KV:#x}")
    for i in range(4): p(f"buffer_store_dwordx4 v[28:31], v{vX}, s[{R_WS}:{R_WS+3}], s35 offen offset:{i*1024} sc1")
    p("s_add_u32 s35, s35, 4096\ns_mov_b64 exec, 0xffff")
    p(f"buffer_store_dwordx4 v[28:31], v{vX}, s[{R_WS}:{R_WS+3}], s35 offen sc1")
    p(f"s_lshl_b32 s35, s30, 9\ns_add_u32 s35, s35, {WS_CNT:#x}\ns_mov_b32 exec_lo, -1")
    p(f"buffer_store_dwordx4 v[28:31], v{vX}, s[{R_WS}:{R_WS+3}], s35 offen sc1")
    p("s_mov_b64 exec, -1")
    p.label(Z)
    for i in range(4): p.vm(f"buffer_load_dwordx4 v[{XI+4*i}:{XI+4*i+3}], v10, s[{R_A}:{R_A+3}], s32 offen offset:{i*256}", "x")
    p(f"s_mov_b32 s59, {WS_EP:#x}\ns_load_dword s{S_TAG}, s[{P_WS}:{P_WS+1}], s59")
    p(f"v_lshlrev_b32 v9, 7, v9\nv_lshlrev_b32 v8, 4, v8\nv_add_u32 v8, v8, v9\ns_lshl_b32 s36, s{S_WAVE}, 6\ns_lshl_b32 s37, s2, 13\ns_add_u32 s36, s36, s37\ns_add_u32 s36, s36, {WS_XN:#x}")
    stamp(p, "p0 issue")
    p.wait(vm="x")
    stamp(p, "p0 x landed")
    B = 32
    for i in range(16): p(f"v_lshlrev_b32 v{B+2*i}, 16, v{XI+i}\nv_and_b32 v{B+2*i+1}, 0xffff0000, v{XI+i}")
    def tree(op_first, dst):
        for i in range(8): op_first(i)
        for w_ in (4, 2, 1):
            for i in range(w_): p(f"v_pk_add_f32 v[{64+2*i}:{65+2*i}], v[{64+2*i}:{65+2*i}], v[{64+2*(i+w_)}:{65+2*(i+w_)}]")
        p(f"v_add_f32 v{dst}, v64, v65")
    def row_reduce(r):
        p(f"v_add_f32_dpp v{r}, v{r}, v{r} row_ror:4 row_mask:0xf bank_mask:0xf\nv_add_f32_dpp v{r}, v{r}, v{r} row_ror:8 row_mask:0xf bank_mask:0xf")
        for sw in ("v_permlane16_swap_b32", "v_permlane32_swap_b32"):
            p(f"v_mov_b32 v{r+1}, v{r}\n{sw} v{r}, v{r+1}\nv_add_f32 v{r}, v{r}, v{r+1}")
    tree(lambda i: p(f"v_pk_add_f32 v[{64+2*i}:{65+2*i}], v[{B+4*i}:{B+4*i+1}], v[{B+4*i+2}:{B+4*i+3}]"), 80)
    row_reduce(80)
    p("v_mul_f32 v80, 0xbb000000, v80")
    for i in range(16): p(f"v_pk_add_f32 v[{B+2*i}:{B+2*i+1}], v[{B+2*i}:{B+2*i+1}], v[80:81] op_sel_hi:[1,0]")
    def sq(i):
        p(f"v_pk_mul_f32 v[{64+2*i}:{65+2*i}], v[{B+4*i}:{B+4*i+1}], v[{B+4*i}:{B+4*i+1}]")
    for i in range(8): sq(i)
    for i in range(8): p(f"v_pk_fma_f32 v[{64+2*i}:{65+2*i}], v[{B+4*i+2}:{B+4*i+3}], v[{B+4*i+2}:{B+4*i+3}], v[{64+2*i}:{65+2*i}]")
    tree(lambda i: None, 82)
    row_reduce(82)
    p("v_mov_b32 v84, 0x3727c5ac\nv_fmac_f32 v84, 0x3b000000, v82\nv_rsq_f32 v84, v84")
    for i in range(16): p(f"v_pk_mul_f32 v[{B+2*i}:{B+2*i+1}], v[{B+2*i}:{B+2*i+1}], v[84:85] op_sel_hi:[1,0]")
    for n in range(4):
        for i in range(4): p(f"v_cvt_pk_bf16_f32 v{XI+4*n+i}, v{B+8*n+2*i}, v{B+8*n+2*i+1}")
        if n == 2: p("s_add_u32 s36, s36, 4096")
        p.vm(f"buffer_store_dwordx4 v[{XI+4*n}:{XI+4*n+3}], v8, s[{R_WS}:{R_WS+3}], s36 offen offset:{(n%2)*2048} sc1", "xn")
    p("s_waitcnt vmcnt(0) lgkmcnt(0)"); p.vmq = []
    p(f"s_mul_i32 s{S_TAG}, s{S_TAG}, 0x9e3779b1\ns_add_u32 s{S_TAG}, s{S_TAG}, 1")
    p(f"s_lshl_b32 s58, s2, 1\ns_add_u32 s58, s58, s{S_WAVE}\ns_lshl_b32 s58, s58, 7\ns_add_u32 s58, s58, {WS_F1:#x}")
    p(f"v_mov_b32 v2, s{S_TAG}\nv_mov_b32 v3, 0\ns_mov_b64 exec, 1")
    p(f"buffer_store_dword v2, v3, s[{R_WS}:{R_WS+3}], s58 offen sc1\ns_mov_b64 exec, -1")
    stamp(p, "p0 flag")
    p(f"s_cmp_lg_u32 s{S_WAVE}, 0\ns_cbranch_scc1 {JN}")
    srd(p, R_C, P_WPHI, 32*16*16*2)
    p(f"s_lshl_b32 s35, s25, 10\ns_mov_b32 m0, {L_WPHI}")
    p(f"buffer_load_dwordx4 v{vX}, s[{R_C}:{R_C+3}], s35 offen lds")
    p(f"s_branch {JN}")
    p.label(DM)
    if CODEPF:
        CP = p.newlabel("CP")
        p(f"s_cmp_lg_u32 s{S_WAVE}, 3\ns_cbranch_scc1 {CP}")
        p(f"s_and_b32 s40, s62, 0xffffff80\ns_and_b32 s41, s63, 0xffff\ns_mov_b32 s42, L_codeend-{NAME}_kernel\ns_mov_b32 s43, 0x20000")
        p(f"s_mul_i32 s35, s{S_I}, {CODE_LINES_PER_WG}\nv_min_u32 v12, {CODE_LINES_PER_WG-1}, v1\nv_add_u32 v12, s35, v12\nv_lshlrev_b32 v12, 7, v12")
        p("buffer_load_dword v13, v12, s[40:43], 0 offen")
        p.label(CP)
    p("s_waitcnt lgkmcnt(0)")
    srd(p, R_B, P_WQKV, 512*1536*2)
    p(f"v_lshrrev_b32 v{vW}, 2, v1\nv_mul_u32_u24 v{vW}, 3072, v{vW}\nv_and_b32 v10, 3, v1\nv_lshlrev_b32 v10, 4, v10\nv_add_u32 v{vW}, v{vW}, v10")
    p(f"s_sub_u32 s32, s{S_WAVE}, 1\ns_lshl_b32 s33, s32, 10\ns_lshl_b32 s34, s25, 6\ns_add_u32 s33, s33, s34")
    p(f"s_sub_u32 s34, s{S_WAVE}, 2\ns_lshl_b32 s34, s34, 15")
    p("s_and_b32 s36, s24, 3\ns_lshl_b32 s36, s36, 1\ns_and_b32 s37, s25, 1\ns_add_u32 s36, s36, s37\ns_lshl_b32 s36, s36, 2")
    for ks in range(32):
        p(f"s_add_u32 s37, s36, {ks}\ns_and_b32 s37, s37, 31\ns_mul_i32 s38, s37, {16*3072}\ns_add_u32 s38, s38, s33\ns_lshl_b32 s39, s37, 10\ns_add_u32 m0, s39, s34")
        if ks >= PACE0: p(f"s_waitcnt vmcnt({PACE0-1})")
        p(f"buffer_load_dwordx4 v{vW}, s[{R_B}:{R_B+3}], s38 offen lds")
    p(f"s_mov_b32 s59, {WS_EP:#x}\ns_load_dword s{S_TAG}, s[{P_WS}:{P_WS+1}], s59")
    srd(p, R_WS, P_WS, WS_SIZE)
    p("s_waitcnt vmcnt(0) lgkmcnt(0)")
    p(f"s_mul_i32 s{S_TAG}, s{S_TAG}, 0x9e3779b1\ns_add_u32 s{S_TAG}, s{S_TAG}, 1")
    stamp(p, "p0 W1 landed")
    p.label(JN)
    p.vmq = []
    p("s_barrier")
    L = p.newlabel("PL"); D = p.newlabel("PD")
    p(f"s_cmp_lg_u32 s{S_WAVE}, 0\ns_cbranch_scc1 {D}")
    stamp(p, "p0 poll start")
    p(f"s_lshl_b32 s35, s24, 5\nv_add_u32 v2, s35, v1\ns_lshl_b32 s35, s25, 5\ns_add_u32 s35, s35, 1\nv_mov_b32 v3, s35\nv_cmp_gt_u32 vcc, 32, v1\nv_cndmask_b32 v2, v3, v2, vcc\nv_lshlrev_b32 v2, 7, v2")
    p(f"s_mov_b32 s58, {WS_F1:#x}\ns_mov_b32 s59, {SPIN}")
    p.label(L)
    p(f"buffer_load_dword v3, v2, s[{R_WS}:{R_WS+3}], s58 offen sc1\ns_waitcnt vmcnt(0)\nv_cmp_ne_u32 vcc, s{S_TAG}, v3\ns_cbranch_vccz {D}")
    if SLEEP: p(f"s_sleep {SLEEP}")
    p(f"s_sub_u32 s59, s59, 1\ns_cmp_lg_u32 s59, 0\ns_cbranch_scc1 {L}")
    p.label(D)
    p("s_barrier")
    stamp(p, "S1 passed")

def cs_loads(p):
    CSL = p.newlabel("CS")
    p(f"s_cmp_ge_u32 s2, 224\ns_cbranch_scc1 {CSL}")
    p(f"s_cmp_ge_u32 s2, 112\ns_cselect_b32 s35, 112, 0\ns_cselect_b32 s40, s{P_WU}, s{P_WG}\ns_cselect_b32 s41, s{P_WU+1}, s{P_WG+1}")
    p("s_sub_u32 s36, s2, s35")
    srd(p, 8, 40, 512*1792*2)
    p("s_lshr_b32 s37, s36, 2\ns_and_b32 s38, s36, 3")
    p(f"s_lshl_b32 s39, s38, 2\ns_add_u32 s39, s39, s{S_WAVE}\ns_mul_i32 s39, s39, {32*3584}\ns_lshl_b32 s40, s37, 7\ns_add_u32 s39, s39, s40")
    p("v_lshrrev_b32 v18, 3, v1\nv_mul_u32_u24 v18, 3584, v18\nv_bfe_u32 v19, v1, 4, 1\nv_lshlrev_b32 v19, 2, v19\nv_xor_b32 v19, v19, v1\nv_and_b32 v19, 7, v19\nv_lshlrev_b32 v19, 4, v19\nv_add_u32 v18, v18, v19")
    p(f"s_lshl_b32 s40, s{S_WAVE}, 12\ns_add_u32 s40, s40, {L_CS}")
    for n in range(4):
        p(f"s_add_u32 s41, s39, {n*8*3584}\ns_add_u32 m0, s40, {n*1024}")
        p(f"buffer_load_dwordx4 v18, s[8:11], s41 offen lds")
    p.label(CSL)

def cs_compute(p):
    CSL = p.newlabel("CS")
    p(f"s_cmp_ge_u32 s2, 224\ns_cbranch_scc1 {CSL}")
    p(f"s_lshl_b32 s40, s{S_WAVE}, 12\ns_add_u32 s40, s40, {L_CS}")
    tr_addr_swz128(p, 18, 19, 20)
    p("v_add_u32 v18, s40, v18\nv_add_u32 v19, s40, v19\nv_mov_b32 v20, 0x3f803f80\nv_mov_b32 v21, 0x3f803f80\nv_mov_b32 v22, 0x3f803f80\nv_mov_b32 v23, 0x3f803f80")
    for ks in range(2):
        for cg in range(2):
            r = 24 + 8*ks + 4*cg
            p(f"ds_read_b64_tr_b16 v[{r}:{r+1}], v{18+cg} offset:{ks*2048}")
            p(f"ds_read_b64_tr_b16 v[{r+2}:{r+3}], v{18+cg} offset:{ks*2048+1024}")
    p("s_waitcnt lgkmcnt(0)")
    for cg in range(2):
        for ks in range(2):
            r = 24 + 8*ks + 4*cg
            p(f"v_mfma_f32_32x32x16_bf16 v[{64+16*cg}:{79+16*cg}], v[20:23], v[{r}:{r+3}], {'0' if ks == 0 else f'v[{64+16*cg}:{79+16*cg}]'}")
    p(f"s_lshl_b32 s40, s{S_WAVE}, 8\ns_add_u32 s40, s40, {L_CS + 16384}\nv_lshlrev_b32 v18, 2, v1\nv_add_u32 v18, s40, v18")
    p("s_mov_b32 exec_hi, 0")
    p("ds_write_b32 v18, v64\nds_write_b32 v18, v80 offset:128")
    p("s_mov_b64 exec, -1\ns_waitcnt lgkmcnt(0)")
    p.label(CSL)

def cs_finish(p):
    CS2 = p.newlabel("CS")
    p(f"s_cmp_ge_u32 s2, 224\ns_cbranch_scc1 {CS2}\ns_cmp_lg_u32 s{S_WAVE}, 1\ns_cbranch_scc1 {CS2}")
    p(f"v_lshlrev_b32 v18, 2, v1\nv_add_u32 v18, {L_CS + 16384}, v18")
    for w in range(4): p(f"ds_read_b32 v{20+w}, v18 offset:{w*256}")
    p("s_waitcnt lgkmcnt(0)\nv_add_f32 v20, v20, v21\nv_add_f32 v22, v22, v23\nv_add_f32 v20, v20, v22")
    p("s_cmp_ge_u32 s2, 112\ns_cselect_b32 s36, 112, 0\ns_cselect_b32 s35, 1792, 0\ns_cselect_b32 s39, 8, 0\ns_sub_u32 s36, s2, s36")
    p("s_lshr_b32 s37, s36, 2\ns_and_b32 s38, s36, 3\ns_lshr_b32 s40, s39, 3\ns_lshl_b32 s41, s38, 1\ns_add_u32 s40, s40, s41\ns_mul_i32 s40, s40, 28\ns_add_u32 s40, s40, s37\ns_lshl_b32 s40, s40, 8")
    p(f"s_add_u32 s40, s40, {WS_CS:#x}\nv_and_b32 v18, 15, v1\nv_lshlrev_b32 v18, 4, v18\nv_lshrrev_b32 v19, 4, v1\nv_lshlrev_b32 v19, 2, v19\nv_add_u32 v18, v18, v19")
    p(f"buffer_store_dword v20, v18, s[{R_WS}:{R_WS+3}], s40 offen sc1")
    p("s_waitcnt vmcnt(0)")
    p("s_lshr_b32 s40, s37, 1\ns_and_b32 s37, s37, 1\ns_lshl_b32 s37, s37, 2\ns_add_u32 s37, s37, s38\ns_add_u32 s37, s37, s39")
    q0 = list(p.vmq)
    flag_store(p, F6, 40, 37, vt=(20, 21))
    p.vmq = q0
    p.label(CS2)

def p1(p):
    vX, vT, vT2, vP, vS = 4, 6, 7, 8, 9
    ACC, X, WF = 16, 64, 192
    R_A = 8
    p(f"s_lshl_b32 s31, s24, 2\ns_add_u32 s31, s31, s{S_WAVE}")
    p(f"s_lshl_b32 s32, s31, 15\ns_add_u32 s32, s32, {WS_XN:#x}\ns_add_u32 s33, s32, 4096")
    p("v_bfe_u32 v5, v1, 3, 2\nv_lshlrev_b32 v5, 13, v5\nv_lshrrev_b32 v10, 5, v1\nv_lshlrev_b32 v10, 7, v10\nv_add_u32 v5, v5, v10\nv_and_b32 v10, 7, v1\nv_lshlrev_b32 v10, 4, v10\nv_add_u32 v5, v5, v10")
    def xload(ks):
        p.vm(f"buffer_load_dwordx4 v[{X+4*ks}:{X+4*ks+3}], v5, s[{R_WS}:{R_WS+3}], s{32 + ks//16} offen offset:{(ks%16)*256} sc1", f"x{ks}")
    LEAD = 8
    for ks in range(LEAD): xload(ks)
    tr_addr(p, vT, 10, 64, 8)
    p(f"v_add_u32 v{vT2}, 0x10000, v{vT}")
    AK_, AV_, AQ_ = ACC + 16, ACC + 32, ACC
    def ent(ks, part, acc, first):
        off = (W1BASE[part] % 65536) + ks*1024
        return dict(acc=f"v[{acc}:{acc+15}]", B=f"v[{X+4*ks}:{X+4*ks+3}]", areg=(vT2 if part == 0 else vT), off=(off, off+256), C=("0" if first else f"v[{acc}:{acc+15}]"))
    mf = []
    for ks in range(32):
        e = ent(ks, 1, AK_, ks == 0); e["vm"] = f"x{ks}"; mf.append(e)
        mf.append(ent(ks, 2, AV_, ks == 0))
    stream(p, mf, WF, 8, 5, pend=[(lambda k=k: xload(k)) for k in range(LEAD, 32)], pend_every=2)
    stamp(p, "p1 pass A")
    srd(p, 12, P_WQKV, 512*1536*2)
    p(f"v_lshrrev_b32 v14, 2, v1\nv_mul_u32_u24 v14, 3072, v14\nv_and_b32 v10, 3, v1\nv_lshlrev_b32 v10, 4, v10\nv_add_u32 v14, v14, v10")
    p(f"s_mul_i32 s33, s{S_WAVE}, {8*16*3072}\ns_lshl_b32 s34, s25, 6\ns_add_u32 s33, s33, s34\ns_lshl_b32 s34, s{S_WAVE}, 13")
    for c in range(8):
        p(f"s_add_u32 s35, s33, {c*16*3072}\ns_add_u32 m0, s34, {W1BASE[0] + c*1024}")
        p.vm(f"buffer_load_dwordx4 v14, s[12:15], s35 offen lds", "wq")
    WP = 224
    p(f"v_lshrrev_b32 v{vP}, 5, v1\nv_lshlrev_b32 v{vP}, 2, v{vP}\nv_bfe_u32 v10, v1, 2, 2\nv_add_u32 v{vP}, v{vP}, v10\nv_lshlrev_b32 v{vP}, 5, v{vP}")
    p(f"v_and_b32 v10, 3, v1\nv_lshlrev_b32 v10, 3, v10\nv_add_u32 v{vP}, v{vP}, v10\nv_add_u32 v{vP}, {L_WPHI}, v{vP}")
    p(f"v_and_b32 v{vS}, 16, v1\nv_lshlrev_b32 v{vS}, 11, v{vS}\nv_lshlrev_b32 v10, 16, v{vS}\nv_or_b32 v{vS}, v{vS}, v10")
    for hd in range(2):
        p.ds(f"ds_read_b64_tr_b16 v[{WP+4*hd}:{WP+4*hd+1}], v{vP} offset:{512*hd}", "wp")
        p.ds(f"ds_read_b64_tr_b16 v[{WP+4*hd+2}:{WP+4*hd+3}], v{vP} offset:{512*hd+256}", "wp")
    vA, vR = 10, 11
    p(f"s_mul_i32 s35, s{S_WAVE}, 9216\ns_add_u32 s35, s35, {L_SCR}")
    p(f"v_and_b32 v{vA}, 31, v1\nv_mul_u32_u24 v{vA}, 72, v{vA}\nv_lshrrev_b32 v12, 5, v1\nv_lshlrev_b32 v12, 3, v12\nv_add_u32 v{vA}, v{vA}, v12\nv_add_u32 v{vA}, s35, v{vA}")
    tr_addr(p, vR, 12, 72, 8)
    p(f"v_add_u32 v{vR}, s35, v{vR}")
    KB, VB = 232, 240
    for i in range(8): p(f"v_cvt_pk_bf16_f32 v{KB+i}, v{AK_+2*i}, v{AK_+2*i+1}")
    p.wait(ds="wp")
    for i in range(8): p(f"v_xor_b32 v{WP+i}, v{WP+i}, v{vS}")
    PK = [WF, WF + 16]
    for hd in range(2):
        p(f"v_mfma_f32_32x32x16_bf16 v[{PK[hd]}:{PK[hd]+15}], v[{WP+4*hd}:{WP+4*hd+3}], v[{KB+4*hd}:{KB+4*hd+3}], 0")
    for i in range(8): p(f"v_cvt_pk_bf16_f32 v{VB+i}, v{AV_+2*i}, v{AV_+2*i+1}")
    p("v_mov_b32 v12, 0x3f803f80\nv_mov_b32 v13, 0x3f803f80")
    for hd in range(2):
        for q in range(2):
            p.ds(f"ds_write_b64 v{vA}, v[{VB+4*hd+2*q}:{VB+4*hd+2*q+1}] offset:{(2+hd)*2304 + 16*q}", "st")
            p.ds(f"ds_write_b64 v{vA}, v[12:13] offset:{(2+hd)*2304 + 32 + 16*q}", "st")
    p(f"s_mov_b32 s36, {LOG2E:#x}\ns_mov_b32 s37, {LOG2E:#x}")
    OK_ = 32
    blk = [(PK[hd] + 8*sg, OK_ + 8*hd + 4*sg) for hd in range(2) for sg in range(2)]
    for x in softmax_ops(blk, 36, 48): p(x)
    for hd in range(2):
        for sg in range(2):
            for q in range(2):
                r = OK_ + 8*hd + 4*sg + 2*q
                p.ds(f"ds_write_b64 v{vA}, v[{r}:{r+1}] offset:{hd*2304 + 32*sg + 16*q}", "st")
    stamp(p, "p1 k softmax")
    p.wait(ds="st")
    F = WF
    for hd in range(2):
        for s2 in range(2):
            f = F + 8*(2*hd + s2)
            for ab in range(2):
                off = (2*ab + hd)*2304 + s2*1152
                p.ds(f"ds_read_b64_tr_b16 v[{f+4*ab}:{f+4*ab+1}], v{vR} offset:{off}", f"kv{hd}")
                p.ds(f"ds_read_b64_tr_b16 v[{f+4*ab+2}:{f+4*ab+3}], v{vR} offset:{off+288}", f"kv{hd}")
    C = [32, 48]
    p(f"s_mul_i32 s35, s{S_WAVE}, 4352\ns_add_u32 s35, s35, {L_KVP}")
    p("v_and_b32 v12, 31, v1\nv_lshlrev_b32 v12, 4, v12\nv_lshrrev_b32 v13, 5, v1\nv_mul_u32_u24 v13, 272, v13\nv_add_u32 v12, v12, v13\nv_add_u32 v12, s35, v12")
    for hd in range(2):
        p.wait(ds=f"kv{hd}")
        for s2 in range(2):
            f = F + 8*(2*hd + s2)
            c = "0" if s2 == 0 else f"v[{C[hd]}:{C[hd]+15}]"
            p(f"v_mfma_f32_32x32x16_bf16 v[{C[hd]}:{C[hd]+15}], v[{f}:{f+3}], v[{f+4}:{f+7}], {c}")
    p("s_mov_b32 exec_lo, 0x1ffff\ns_mov_b32 exec_hi, 0x1ffff")
    for hd in range(2):
        for b in range(4):
            p.ds(f"ds_write_b128 v12, v[{C[hd]+4*b}:{C[hd]+4*b+3}] offset:{hd*2176 + b*544}", "kvp")
    p("s_mov_b64 exec, -1")
    p.wait(vm="wq", ds="kvp")
    p("s_barrier")
    p("v_lshlrev_b32 v12, 2, v0")
    p(f"s_mul_i32 s35, s25, 4352\ns_add_u32 s35, s35, {WS_KV:#x}")
    p(f"v_add_u32 v13, {L_KVP}, v12")
    for i in range(5):
        for w in range(4): p.ds(f"ds_read_b32 v{32+4*i+w}, v13 offset:{w*4352 + i*1024}", f"r{i}")
    for i in range(4):
        p.wait(ds=f"r{i}")
        r = 32 + 4*i
        p(f"v_add_f32 v{r}, v{r}, v{r+1}\nv_add_f32 v{r+2}, v{r+2}, v{r+3}\nv_add_f32 v{r}, v{r}, v{r+2}")
        p.vm(f"buffer_atomic_add_f32 v{r}, v12, s[{R_WS}:{R_WS+3}], s35 offen offset:{i*1024}", "at")
    p.wait(ds="r4")
    p("v_add_f32 v48, v48, v49\nv_add_f32 v50, v50, v51\nv_add_f32 v48, v48, v50")
    AT = p.newlabel("AT")
    p(f"s_cmp_lg_u32 s{S_WAVE}, 0\ns_cbranch_scc1 {AT}")
    p(f"s_add_u32 s35, s35, 4096\nbuffer_atomic_add_f32 v48, v12, s[{R_WS}:{R_WS+3}], s35 offen")
    p.label(AT)
    stamp(p, "p1 kv atomics issued")
    vWo, vWo2 = 14, 15
    wsrc_swz128(p, vWo, 10)
    p(f"v_add_u32 v{vWo2}, {8192-1024}, v{vWo}")
    srd(p, R_A, P_WO, 512*512*2)
    p(f"s_lshl_b32 s40, s{S_WAVE}, 17\ns_lshl_b32 s41, s27, 7\ns_add_u32 s40, s40, s41\ns_lshl_b32 s41, s{S_WAVE}, 14")
    def wo_load(k):
        def f():
            p(f"s_add_u32 s42, s40, {16*k*1024}\ns_add_u32 m0, s41, {L_WO + k*2048}")
            p.vm(f"buffer_load_dwordx4 v{vWo}, s[{R_A}:{R_A+3}], s42 offen lds", "wo")
            p.vm(f"buffer_load_dwordx4 v{vWo2}, s[{R_A}:{R_A+3}], s42 offen offset:1024 lds", "wo")
        return f
    def touches():
        T0 = p.newlabel("TC"); T3 = p.newlabel("TC")
        q0 = list(p.vmq)
        p(f"s_cmp_eq_u32 s{S_WAVE}, 0\ns_cbranch_scc1 {T0}\ns_cmp_eq_u32 s{S_WAVE}, 3\ns_cbranch_scc1 {T3}")
        p(f"s_cmp_eq_u32 s{S_WAVE}, 2\ns_cselect_b32 s50, s{P_WU}, s{P_WG}\ns_cselect_b32 s51, s{P_WU+1}, s{P_WG+1}")
        srd(p, 16, 50, 512*1792*2)
        p(f"v_lshrrev_b32 v13, 4, v1\nv_mul_u32_u24 v13, 3584, v13\nv_and_b32 v10, 15, v1\nv_min_u32 v10, 13, v10\nv_lshlrev_b32 v10, 7, v10\nv_add_u32 v13, v13, v10")
        p(f"s_lshl_b32 s52, s{S_I}, 4\ns_mul_i32 s52, s52, 3584\ns_and_b32 s50, s{S_X}, 1\ns_mul_i32 s50, s50, 1792\ns_add_u32 s52, s52, s50")
        for n in range(4):
            if n: p(f"s_add_u32 s52, s52, {4*3584}")
            p(f"buffer_load_dword v{250+n%2}, v13, s[16:19], s52 offen")
        p(f"s_branch {T0}")
        p.label(T3)
        srd(p, 16, P_WD, 1792*512*2)
        p(f"s_mul_i32 s52, s2, 56\nv_min_u32 v13, 55, v1\nv_add_u32 v13, s52, v13\nv_lshlrev_b32 v13, 7, v13")
        p("buffer_load_dword v252, v13, s[16:19], 0 offen")
        p.label(T0)
        p.vmq = q0
    mf = [ent(ks, 0, AQ_, ks == 0) for ks in range(32)]
    stream(p, mf, WF, 8, 5, pend=[wo_load(k) for k in range(8)] + ([touches] if TOUCH else []), pend_every=3)
    QB = 232
    for i in range(8): p(f"v_cvt_pk_bf16_f32 v{QB+i}, v{AQ_+2*i}, v{AQ_+2*i+1}")
    PQ = [64, 80]
    for hd in range(2):
        p(f"v_mfma_f32_32x32x16_bf16 v[{PQ[hd]}:{PQ[hd]+15}], v[{WP+4*hd}:{WP+4*hd+3}], v[{QB+4*hd}:{QB+4*hd+3}], 0")
    p("s_barrier")
    stamp(p, "p1 pass B")
    PHQ = 144
    blk = [(PQ[hd] + 8*sg, PHQ + 8*hd + 4*sg) for hd in range(2) for sg in range(2)]
    for x in softmax_ops(blk, 36, 160): p(x)
    stamp(p, "p1 q softmax")
    p.wait(vm="at")
    arrive(p, 0, 25, 16)
    stamp(p, "p1 kv flag")
    P3W.setup(p)
    def bulk2():
        cs_loads(p)
        SK0 = p.newlabel("SK")
        p(f"s_cmp_ge_u32 s29, 14\ns_cbranch_scc1 {SK0}")
        q0 = list(p.vmq)
        paced(p, [f for s_ in range(2) for f in P3W.loads(p, s_)])
        p.vmq = q0
        p.label(SK0)
    vK = 12
    p(f"v_and_b32 v{vK}, 31, v1\nv_min_u32 v{vK}, 16, v{vK}\nv_lshlrev_b32 v{vK}, 4, v{vK}\nv_lshrrev_b32 v13, 5, v1\nv_mul_u32_u24 v13, 272, v13\nv_add_u32 v{vK}, v{vK}, v13")
    wait_go(p, 0, 25, bulk=bulk2)
    stamp(p, "S2 passed")
    p(f"s_mul_i32 s35, s25, 4352\ns_add_u32 s35, s35, {WS_KV:#x}")
    AK = 64
    for hd in range(2):
        for s_ in range(2):
            for q in range(2):
                r = AK + 16*hd + 8*s_ + 4*q
                o = hd*2176 + (2*s_+q)*544
                p.vm(f"buffer_load_dwordx4 v[{r}:{r+3}], v{vK}, s[{R_WS}:{R_WS+3}], s35 offen offset:{o} sc1", f"kv{hd}")
    AB, ON = 96, 16
    for hd in range(2):
        p.wait(vm=f"kv{hd}")
        for s_ in range(2):
            for jj in range(4): p(f"v_cvt_pk_bf16_f32 v{AB+8*hd+4*s_+jj}, v{AK+16*hd+8*s_+2*jj}, v{AK+16*hd+8*s_+2*jj+1}")
        o = ON + 16*hd
        p(f"v_mfma_f32_32x32x16_bf16 v[{o}:{o+15}], v[{AB+8*hd}:{AB+8*hd+3}], v[{PHQ+8*hd}:{PHQ+8*hd+3}], 0")
        p(f"v_mfma_f32_32x32x16_bf16 v[{o}:{o+15}], v[{AB+8*hd+4}:{AB+8*hd+7}], v[{PHQ+8*hd+4}:{PHQ+8*hd+7}], v[{o}:{o+15}]")
    p(f"s_lshl_b32 s35, s31, 5\ns_lshl_b32 s36, s25, 1\ns_add_u32 s35, s35, s36\ns_lshl_b32 s35, s35, 10\ns_add_u32 s35, s35, {WS_OF:#x}")
    for hd in range(2):
        o = ON + 16*hd
        p(f"v_add_f32 v{o+8}, 0x358637bd, v{o+8}\nv_rcp_f32 v{o+8}, v{o+8}")
        for i in range(0, 8, 2): p(f"v_pk_mul_f32 v[{o+i}:{o+i+1}], v[{o+i}:{o+i+1}], v[{o+8}:{o+9}] op_sel_hi:[1,0]")
        for jj in range(4): p(f"v_cvt_pk_bf16_f32 v{112+4*hd+jj}, v{o+2*jj}, v{o+2*jj+1}")
        p.vm(f"buffer_store_dwordx4 v[{112+4*hd}:{115+4*hd}], v{vX}, s[{R_WS}:{R_WS+3}], s35 offen offset:{hd*1024} sc1", "of")
    p.wait(vm="of")
    arrive(p, 1, 24, 16)
    stamp(p, "p1 o flag")
    cs_compute(p)
    p("s_barrier")
    cs_finish(p)

def reduce_write(p, base, wavestride):
    p(f"s_mul_i32 s40, s{S_WAVE}, {wavestride}\ns_add_u32 s40, s40, {base}")
    p("v_and_b32 v10, 31, v1\nv_mul_u32_u24 v10, 272, v10\nv_lshrrev_b32 v11, 5, v1\nv_lshlrev_b32 v11, 4, v11\nv_add_u32 v10, v10, v11\nv_add_u32 v10, s40, v10")
    for cg in range(2):
        for tg in range(2):
            for b in range(4):
                a = 32*cg + 16*tg + 4*b
                p.ds(f"ds_write_b128 v10, a[{a}:{a+3}] offset:{tg*32*272 + cg*128 + b*32}", "red")
    p.wait(ds="red")
    p("s_barrier")

def reduce_read(p, base, wavestride, ps, dst):
    T = dst + 8
    for w in range(4):
        for hb in range(2):
            r = dst + 4*hb if w == 0 else T + 8*(w-1) + 4*hb
            off = base + w*wavestride + ps*32*272 + hb*16
            reg = (12, 13, 11)[off // 65536]
            p.ds(f"ds_read_b128 v[{r}:{r+3}], v{reg} offset:{off % 65536}", f"rr{ps}")

def reduce_sum(p, ps, dst):
    T = dst + 8
    p.wait(ds=f"rr{ps}")
    for i in range(0, 8, 2):
        p(f"v_pk_add_f32 v[{dst+i}:{dst+i+1}], v[{dst+i}:{dst+i+1}], v[{T+i}:{T+i+1}]")
        p(f"v_pk_add_f32 v[{T+8+i}:{T+8+i+1}], v[{T+8+i}:{T+8+i+1}], v[{T+16+i}:{T+16+i+1}]")
    for i in range(0, 8, 2):
        p(f"v_pk_add_f32 v[{dst+i}:{dst+i+1}], v[{dst+i}:{dst+i+1}], v[{T+8+i}:{T+8+i+1}]")

def add_residual(p, dst, res, tmp):
    for i in range(4): p(f"v_lshlrev_b32 v{tmp+2*i}, 16, v{res+i}\nv_and_b32 v{tmp+2*i+1}, 0xffff0000, v{res+i}")
    for i in range(0, 8, 2): p(f"v_pk_add_f32 v[{dst+i}:{dst+i+1}], v[{dst+i}:{dst+i+1}], v[{tmp+i}:{tmp+i+1}]")

def hf_addr(p, dst, tmp):
    p(f"v_bfe_u32 v{dst}, v0, 1, 2\nv_lshlrev_b32 v{dst}, 10, v{dst}\nv_and_b32 v{tmp}, 1, v0\nv_lshlrev_b32 v{tmp}, 9, v{tmp}\nv_add_u32 v{dst}, v{dst}, v{tmp}")
    p(f"v_lshrrev_b32 v{tmp}, 3, v0\nv_lshlrev_b32 v{tmp}, 4, v{tmp}\nv_add_u32 v{dst}, v{dst}, v{tmp}")

def red_addr(p):
    p("v_lshrrev_b32 v12, 3, v0\nv_mul_u32_u24 v12, 272, v12\nv_and_b32 v13, 7, v0\nv_lshlrev_b32 v13, 5, v13\nv_add_u32 v12, v12, v13\nv_add_u32 v13, 0x10000, v12\nv_add_u32 v11, 0x20000, v12")

class P3W:
    vG0, vG1, vU0, vU1 = 240, 241, 242, 243
    R_G, R_U = 12, 16
    @staticmethod
    def setup(p):
        v = P3W
        p(f"v_lshrrev_b32 v{v.vG0}, 3, v1\nv_mul_u32_u24 v{v.vG0}, 3584, v{v.vG0}")
        p(f"v_bfe_u32 v{v.vU1}, v1, 4, 1\nv_lshlrev_b32 v{v.vU1}, 2, v{v.vU1}\nv_xor_b32 v{v.vU1}, v{v.vU1}, v1\nv_and_b32 v{v.vU1}, 7, v{v.vU1}\nv_lshlrev_b32 v{v.vU1}, 4, v{v.vU1}")
        p(f"v_xor_b32 v{v.vU0}, 32, v{v.vU1}\nv_add_u32 v{v.vU0}, v{v.vU0}, v{v.vG0}\nv_add_u32 v{v.vG0}, v{v.vG0}, v{v.vU1}")
        p(f"v_add_u32 v{v.vG1}, {8*3584-1024}, v{v.vG0}\nv_add_u32 v{v.vU1}, {8*3584-1024}, v{v.vU0}")
        srd(p, v.R_G, P_WG, 512*1792*2)
        srd(p, v.R_U, P_WU, 512*1792*2, shift=2048)
        p(f"s_mul_i32 s44, s{S_WAVE}, {16*3584}\ns_lshl_b32 s45, s29, 8\ns_add_u32 s44, s44, s45\ns_lshl_b32 s45, s{S_WAVE}, 12")
    @staticmethod
    def loads(p, s):
        v = P3W
        line, c = divmod(s, 8)
        def f0():
            p(f"s_add_u32 s46, s44, {c*64*3584 + line*128}\ns_add_u32 m0, s45, {pos(s)}")
            p.vm(f"buffer_load_dwordx4 v{v.vG0}, s[{v.R_G}:{v.R_G+3}], s46 offen lds", f"s{s}")
        def f1(): p.vm(f"buffer_load_dwordx4 v{v.vG1}, s[{v.R_G}:{v.R_G+3}], s46 offen offset:1024 lds", f"s{s}")
        def f2(): p.vm(f"buffer_load_dwordx4 v{v.vU0}, s[{v.R_U}:{v.R_U+3}], s46 offen offset:2048 lds", f"s{s}")
        def f3(): p.vm(f"buffer_load_dwordx4 v{v.vU1}, s[{v.R_U}:{v.R_U+3}], s46 offen offset:3072 lds", f"s{s}")
        return [f0, f1, f2, f3]

P3_PRE = 8

HKEEP = 180
L_OF = 65536
def p2(p):
    vX, vT, vB = 4, 6, 7
    WA, BR, ACC = 192, 224, 16
    p(f"s_lshr_b32 s31, s26, 1")
    p(f"s_lshr_b32 s32, s{S_WAVE}, 1\ns_and_b32 s33, s{S_WAVE}, 1")
    tr_addr_swz128(p, vT, 8, 10)
    p(f"s_lshl_b32 s34, s33, 6\nv_xor_b32 v{vT}, s34, v{vT}")
    p(f"s_lshl_b32 s34, s32, 15\ns_add_u32 s34, s34, {L_OF}\nv_add_u32 v{vB}, s34, v{vX}")
    XR = 48
    p("v_and_b32 v9, 31, v1\nv_lshlrev_b32 v9, 10, v9\nv_lshrrev_b32 v10, 5, v1\nv_lshlrev_b32 v10, 3, v10\nv_add_u32 v9, v9, v10")
    p("s_lshl_b32 s34, s26, 16\ns_lshl_b32 s35, s32, 15\ns_add_u32 s34, s34, s35\ns_lshl_b32 s35, s27, 7\ns_add_u32 s34, s34, s35\ns_lshl_b32 s35, s33, 6\ns_add_u32 s34, s34, s35")
    srd(p, 8, P_X, 2048*512*2)
    for b_ in range(4): p.vm(f"buffer_load_dwordx2 v[{XR+2*b_}:{XR+2*b_+1}], v9, s[8:11], s34 offen offset:{16*b_}", "xr")
    p(f"s_lshl_b32 s35, s26, 16\ns_lshl_b32 s36, s{S_WAVE}, 11\ns_add_u32 s35, s35, s36\ns_add_u32 s35, s35, {WS_OF:#x}\ns_add_u32 s36, s36, {L_OF}")
    p.wait(vm="wo")
    wait_go(p, 1, 31)
    stamp(p, "S2b passed")
    for c in range(4):
        for tg in range(2):
            p(f"s_add_u32 s37, s35, {tg*32768 + c*8192}\ns_add_u32 m0, s36, {tg*32768 + c*8192}")
            p.vm(f"buffer_load_dwordx4 v{vX}, s[{R_WS}:{R_WS+3}], s37 offen sc1 lds", f"o{c}")
            p.vm(f"buffer_load_dwordx4 v{vX}, s[{R_WS}:{R_WS+3}], s37 offen offset:1024 sc1 lds", f"o{c}")
    uid = p.newlabel("t")
    def rd(k):
        if k % 8 == 0:
            p.wait(vm=f"o{k//8}"); p("s_barrier")
        a_ = WA + 4*(k % 6); bb = BR + 4*(k % 4)
        p.ds(f"ds_read_b64_tr_b16 v[{a_}:{a_+1}], v{vT} offset:{L_WO + k*2048}", f"{uid}{k}")
        p.ds(f"ds_read_b64_tr_b16 v[{a_+2}:{a_+3}], v{vT} offset:{L_WO + k*2048 + 1024}", f"{uid}{k}")
        p.ds(f"ds_read_b128 v[{bb}:{bb+3}], v{vB} offset:{k*1024}", f"{uid}{k}")
    L = 3
    for k in range(L): rd(k)
    for k in range(32):
        p.wait(ds=f"{uid}{k}")
        a_ = WA + 4*(k % 6); bb = BR + 4*(k % 4)
        p(f"v_mfma_f32_32x32x16_bf16 v[{ACC}:{ACC+15}], v[{a_}:{a_+3}], v[{bb}:{bb+3}], {'0' if k == 0 else f'v[{ACC}:{ACC+15}]'}")
        if k + L < 32: rd(k + L)
    stamp(p, "p2 main")
    p("s_barrier")
    p(f"s_lshl_b32 s34, s26, 1\ns_add_u32 s34, s34, s32")
    p(f"s_lshl_b32 s35, s34, 5\ns_lshl_b32 s36, s27, 2\ns_add_u32 s35, s35, s36\ns_lshl_b32 s36, s33, 1\ns_add_u32 s35, s35, s36\ns_lshl_b32 s35, s35, 10\ns_add_u32 s35, s35, {WS_HF:#x}")
    p(f"s_lshl_b32 s36, s34, 4\ns_lshl_b32 s37, s27, 1\ns_add_u32 s36, s36, s37\ns_add_u32 s36, s36, s33\ns_lshl_b32 s36, s36, 8\ns_add_u32 s36, s36, {WS_ST:#x}")
    p.wait(vm="xr")
    T = 64
    for i in range(8): p(f"v_lshlrev_b32 v{T+2*i}, 16, v{XR+i}\nv_and_b32 v{T+2*i+1}, 0xffff0000, v{XR+i}")
    for i in range(0, 16, 2): p(f"v_pk_add_f32 v[{ACC+i}:{ACC+i+1}], v[{ACC+i}:{ACC+i+1}], v[{T+i}:{T+i+1}]")
    for i in range(8): p(f"v_cvt_pk_bf16_f32 v{HKEEP+i}, v{ACC+2*i}, v{ACC+2*i+1}")
    for f in range(2):
        p.vm(f"buffer_store_dwordx4 v[{HKEEP+4*f}:{HKEEP+4*f+3}], v{vX}, s[{R_WS}:{R_WS+3}], s35 offen offset:{f*1024} sc1", "hst")
    for i in range(8): p(f"v_lshlrev_b32 v{T+2*i}, 16, v{HKEEP+i}\nv_and_b32 v{T+2*i+1}, 0xffff0000, v{HKEEP+i}")
    for i in range(4): p(f"v_pk_add_f32 v[{T+16+2*i}:{T+17+2*i}], v[{T+4*i}:{T+4*i+1}], v[{T+4*i+2}:{T+4*i+3}]")
    p(f"v_pk_add_f32 v[{T+16}:{T+17}], v[{T+16}:{T+17}], v[{T+18}:{T+19}]\nv_pk_add_f32 v[{T+20}:{T+21}], v[{T+20}:{T+21}], v[{T+22}:{T+23}]")
    p(f"v_pk_add_f32 v[{T+16}:{T+17}], v[{T+16}:{T+17}], v[{T+20}:{T+21}]\nv_add_f32 v{T+24}, v{T+16}, v{T+17}")
    p(f"v_mov_b32 v{T+25}, v{T+24}\nv_permlane32_swap_b32 v{T+24}, v{T+25}\nv_add_f32 v{T+24}, v{T+24}, v{T+25}")
    p(f"v_mul_f32 v{T+24}, 0x3d000000, v{T+24}\nv_sub_f32 v{T+26}, 0, v{T+24}")
    for i in range(0, 16, 2): p(f"v_pk_add_f32 v[{T+i}:{T+i+1}], v[{T+i}:{T+i+1}], v[{T+26}:{T+27}] op_sel_hi:[1,0]")
    p(f"v_pk_mul_f32 v[{T+16}:{T+17}], v[{T}:{T+1}], v[{T}:{T+1}]\nv_pk_mul_f32 v[{T+18}:{T+19}], v[{T+2}:{T+3}], v[{T+2}:{T+3}]")
    for i in range(4, 16, 4):
        p(f"v_pk_fma_f32 v[{T+16}:{T+17}], v[{T+i}:{T+i+1}], v[{T+i}:{T+i+1}], v[{T+16}:{T+17}]\nv_pk_fma_f32 v[{T+18}:{T+19}], v[{T+i+2}:{T+i+3}], v[{T+i+2}:{T+i+3}], v[{T+18}:{T+19}]")
    p(f"v_pk_add_f32 v[{T+16}:{T+17}], v[{T+16}:{T+17}], v[{T+18}:{T+19}]\nv_add_f32 v{T+25}, v{T+16}, v{T+17}")
    p(f"v_mov_b32 v{T+26}, v{T+25}\nv_permlane32_swap_b32 v{T+25}, v{T+26}\nv_add_f32 v{T+25}, v{T+25}, v{T+26}")
    p("v_lshlrev_b32 v10, 3, v1\ns_mov_b32 exec_hi, 0")
    p.vm(f"buffer_store_dwordx2 v[{T+24}:{T+25}], v10, s[{R_WS}:{R_WS+3}], s36 offen sc1", "hst")
    p("s_mov_b64 exec, -1")
    p.wait(vm="hst")
    arrive(p, 2, 31, 16)
    stamp(p, "p2 h flag")
    E = p.newlabel("EP")
    p(f"s_or_b32 s35, s2, s{S_WAVE}\ns_cmp_lg_u32 s35, 3\ns_cbranch_scc1 {E}")
    p(f"s_cmp_lg_u32 s2, 0\ns_cbranch_scc1 {E}")
    p(f"s_mov_b32 s36, {WS_EP:#x}\ns_load_dword s35, s[{P_WS}:{P_WS+1}], s36\ns_waitcnt lgkmcnt(0)\ns_add_u32 s35, s35, 1\nv_mov_b32 v2, s35\nv_mov_b32 v3, 0")
    p(f"s_mov_b64 exec, 1\nbuffer_store_dword v2, v3, s[{R_WS}:{R_WS+3}], s36 offen sc1\ns_mov_b64 exec, -1")
    p.label(E)

def p3(p):
    END = p.newlabel("P3END")
    p(f"s_cmp_ge_u32 s29, 14\ns_cbranch_scc1 {END}")
    v = P3W
    vX = 4
    WF, ACC, T = 192, 16, 224
    vL = [5, 6, 7, 8]; vC = [9, 10, 11, 12]
    p(f"s_lshl_b32 s31, s28, 2\ns_add_u32 s31, s31, s{S_WAVE}")
    a0 = vL[0]
    p(f"v_bfe_u32 v{a0}, v1, 4, 1\nv_lshlrev_b32 v13, 11, v{a0}")
    p(f"v_bfe_u32 v14, v1, 3, 1\nv_lshlrev_b32 v14, 1, v14\nv_add_u32 v14, v14, v{a0}\nv_lshlrev_b32 v14, 5, v14\nv_add_u32 v13, v13, v14")
    p(f"v_lshrrev_b32 v14, 5, v1\nv_lshlrev_b32 v14, 2, v14\nv_bfe_u32 v15, v1, 2, 2\nv_add_u32 v14, v14, v15\nv_lshlrev_b32 v14, 7, v14\nv_add_u32 v13, v13, v14")
    p(f"v_and_b32 v14, 3, v1\nv_lshlrev_b32 v14, 3, v14\nv_add_u32 v{a0}, v13, v14")
    for u in range(1, 4): p(f"v_xor_b32 v{vL[u]}, {u*32}, v{a0}")
    p(f"s_lshl_b32 s33, s31, 12\ns_add_u32 s33, s33, {WS_ST:#x}")
    p("v_and_b32 v15, 31, v1\nv_lshlrev_b32 v15, 3, v15\nv_lshrrev_b32 v14, 5, v1\nv_lshlrev_b32 v14, 11, v14\nv_add_u32 v15, v15, v14")
    p(f"s_lshl_b32 s34, s31, 15\ns_add_u32 s34, s34, {WS_HF:#x}")
    p(f"s_mul_i32 s36, s31, {112*1024}\ns_lshl_b32 s37, s29, 13\ns_add_u32 s36, s36, s37\ns_add_u32 s36, s36, {WS_HH:#x}")
    def bulk3():
        paced(p, [f for s_ in range(2, P3_PRE) for f in P3W.loads(p, s_)])
    wait_go(p, 2, 28, arr2=(F6, 29, 16), bulk=bulk3)
    stamp(p, "S3 passed")
    def hload(ks):
        if ks % 4 == 0: p(f"s_add_u32 s35, s34, {ks*1024}")
        p.vm(f"buffer_load_dwordx4 a[{4*ks}:{4*ks+3}], v{vX}, s[{R_WS}:{R_WS+3}], s35 offen offset:{(ks%4)*1024} sc1", f"h{ks}")
    LEAD = 8
    for ks in range(4): hload(ks)
    ST = 96
    for i in range(8): p.vm(f"buffer_load_dwordx2 v[{ST+2*i}:{ST+2*i+1}], v15, s[{R_WS}:{R_WS+3}], s33 offen offset:{i*256} sc1", "st")
    CSR = 128
    p("v_bfe_u32 v16, v1, 4, 2\nv_lshrrev_b32 v17, 1, v16\nv_lshlrev_b32 v17, 2, v17\nv_and_b32 v16, 1, v16\nv_add_u32 v16, v16, v17\nv_mul_u32_u24 v16, 7168, v16\nv_and_b32 v17, 15, v1\nv_lshlrev_b32 v17, 4, v17\nv_add_u32 v16, v16, v17")
    p(f"s_lshl_b32 s32, s29, 9\ns_add_u32 s32, s32, {WS_CS:#x}\ns_add_u32 s37, s32, 14336")
    for l_ in range(2):
        for qq in range(2):
            r = CSR + 8*l_ + 4*qq
            p.vm(f"buffer_load_dwordx4 v[{r}:{r+3}], v16, s[{R_WS}:{R_WS+3}], s{37 if qq else 32} offen offset:{l_*256} sc1", "cs")
    for ks in range(4, LEAD): hload(ks)
    AUG, BA, CGR = 160, 168, 176
    MEAN, RSTD, CG = T + 8, T + 9, T + 10
    prep = []; q_ = prep.append
    def Q(txt):
        for x in txt.split("\n"): q_(x)
    Q("v_cmp_gt_u32 vcc, 32, v1")
    for l_ in range(2):
        for u in range(4):
            c = CSR + 8*l_ + u; t = CSR + 8*l_ + 4 + u; fr = 4*l_ + u
            Q(f"v_add_f32 v{c}, v{c}, v{t}")
        for u in range(4): Q(f"v_mov_b32 v{CSR+8*l_+4+u}, v{CSR+8*l_+u}")
        for u in range(4): Q(f"v_permlane32_swap_b32 v{CSR+8*l_+u}, v{CSR+8*l_+4+u}")
        for u in range(4): Q(f"v_add_f32 v{CSR+8*l_+u}, v{CSR+8*l_+u}, v{CSR+8*l_+4+u}")
        for u in range(4): Q(f"v_cvt_pk_bf16_f32 v{CSR+8*l_+4+u}, v{CSR+8*l_+u}, v{CSR+8*l_+u}")
        for u in range(4): Q(f"v_and_b32 v{CSR+8*l_+4+u}, 0xffff0000, v{CSR+8*l_+4+u}")
        for u in range(4): Q(f"v_sub_f32 v{CSR+8*l_+4+u}, v{CSR+8*l_+u}, v{CSR+8*l_+4+u}")
        for u in range(4): Q(f"v_cvt_pk_bf16_f32 v{CSR+8*l_+4+u}, v{CSR+8*l_+u}, v{CSR+8*l_+4+u}")
        for u in range(4): Q(f"v_cndmask_b32 v{AUG+4*l_+u}, 0, v{CSR+8*l_+4+u}, vcc")
    Q(f"v_add_f32 v{MEAN}, v{ST}, v{ST+2}")
    for i in range(2, 8): Q(f"v_add_f32 v{MEAN}, v{MEAN}, v{ST+2*i}")
    Q(f"v_mov_b32 v{CG}, v{MEAN}\nv_nop\nv_permlane32_swap_b32 v{MEAN}, v{CG}\nv_add_f32 v{MEAN}, v{MEAN}, v{CG}\nv_mul_f32 v{MEAN}, 0x3d800000, v{MEAN}")
    for i in range(8): Q(f"v_sub_f32 v{ST+2*i}, v{ST+2*i}, v{MEAN}")
    Q(f"v_mul_f32 v{RSTD}, v{ST}, v{ST}")
    for i in range(1, 8): Q(f"v_fmac_f32 v{RSTD}, v{ST+2*i}, v{ST+2*i}")
    Q(f"v_mul_f32 v{RSTD}, 0x42000000, v{RSTD}")
    for i in range(8): Q(f"v_add_f32 v{RSTD}, v{RSTD}, v{ST+2*i+1}")
    Q(f"v_mov_b32 v{CG}, v{RSTD}\nv_nop\nv_permlane32_swap_b32 v{RSTD}, v{CG}\nv_add_f32 v{RSTD}, v{RSTD}, v{CG}")
    Q(f"v_mov_b32 v{CG}, 0x3727c5ac\nv_fmac_f32 v{CG}, 0x3b000000, v{RSTD}\nv_rsq_f32 v{RSTD}, v{CG}")
    Q(f"v_mul_f32 v{CGR}, 0xbfb8aa3b, v{RSTD}")
    Q(f"v_sub_f32 v{ST}, 0, v{MEAN}\nv_cvt_pk_bf16_f32 v{ST+1}, v{ST}, v{ST}\nv_and_b32 v{ST+2}, 0xffff0000, v{ST+1}\nv_sub_f32 v{ST+2}, v{ST}, v{ST+2}\nv_cvt_pk_bf16_f32 v{ST+2}, v{ST+2}, v{ST+2}")
    Q(f"v_cndmask_b32 v{BA}, 0, v{ST+1}, vcc\nv_cndmask_b32 v{BA+1}, 0, v{ST+2}, vcc\nv_mov_b32 v{BA+2}, 0\nv_mov_b32 v{BA+3}, 0\nv_mov_b32 v174, 0\nv_mov_b32 v175, 0")
    def rs_store():
        RSK = p.newlabel("RS")
        p(f"s_cmp_lg_u32 s29, 0\ns_cbranch_scc1 {RSK}")
        p(f"s_lshl_b32 s37, s31, 7\ns_add_u32 s37, s37, {WS_RS:#x}\nv_lshlrev_b32 v13, 2, v1\ns_mov_b32 exec_hi, 0")
        p(f"buffer_store_dword v{RSTD}, v13, s[{R_WS}:{R_WS+3}], s37 offen sc1\ns_mov_b64 exec, -1")
        p.label(RSK)
    A1 = [ACC + 16*u for u in range(4)]; A2 = [ACC + 64, ACC + 80, ACC + 96, ACC]
    def aug(acc, fr, add=False):
        p(f"v_mov_b32 v172, v{AUG+fr}\nv_mov_b32 v173, v{AUG+fr}")
        p(f"v_mfma_f32_32x32x16_bf16 v[{acc}:{acc+15}], v[172:175], v[{BA}:{BA+3}], {f'v[{acc}:{acc+15}]' if add else '0'}")
    ET = T; outsel = [0]
    def glu_ops(acc, off):
        L = []
        o = 232 + 4*(outsel[0] & 1); outsel[0] += 1
        for half in range(2):
            js = range(4*half, 4*half + 4)
            for j in js: L.append(f"v_mul_f32 v{ET+j%4}, v{CGR}, v{acc+j}")
            for j in js: L.append(f"v_exp_f32 v{ET+j%4}, v{ET+j%4}")
            for j in js: L.append(f"v_add_f32 v{ET+j%4}, 1.0, v{ET+j%4}")
            for j in js: L.append(f"v_rcp_f32 v{ET+j%4}, v{ET+j%4}")
            for j in js: L.append(f"v_mul_f32 v{ET+j%4}, v{acc+8+j}, v{ET+j%4}")
            for jj in range(2): L.append(f"v_cvt_pk_bf16_f32 v{o+2*half+jj}, v{ET+2*jj}, v{ET+2*jj+1}")
        L.append(("store", f"s_add_u32 s41, s36, {off}", f"buffer_store_dwordx4 v[{o}:{o+3}], v{vX}, s[{R_WS}:{R_WS+3}], s41 offen sc1"))
        return L
    def emit(x):
        if isinstance(x, tuple): p(x[1]); p.vm(x[2], "hh")
        else: p(x)
    cur = {"slot": None}
    ready = set()
    def mkpre(s_):
        def pre():
            if s_ not in ready:
                p.wait(vm=f"s{s_}"); p("s_barrier"); ready.add(s_)
            if cur["slot"] != s_:
                base = pos(s_)
                for u in cur["us"]: p(f"v_add_u32 v{vC[u]}, {base}, v{vL[u]}")
                cur["slot"] = s_
        return pre
    def entries(line, us, accs):
        cur["us"] = us; cur["slot"] = None
        mf = []
        for ks in range(32):
            s_ = 8*line + ks//4
            for u in us:
                mf.append(dict(acc=f"v[{accs[u]}:{accs[u]+15}]", B=f"a[{4*ks}:{4*ks+3}]", areg=vC[u], off=((ks % 4)*4096, (ks % 4)*4096 + 1024), pre=mkpre(s_), ks=ks, slot=s_))
        return mf
    stamp(p, "p3 setup")
    mf = entries(0, [0, 1, 2, 3], A1)
    for u in range(4): mf[u]["C"] = "0"
    nxt = {"h": LEAD, "s": P3_PRE}
    def post1(m):
        def f():
            if m["first"] and nxt["h"] < 32:
                hload(nxt["h"]); nxt["h"] += 1
        return f
    slotq = []
    def want_slots(cur_slot):
        while nxt["s"] < 16 and nxt["s"] - K3_NR + 2 <= cur_slot:
            slotq.extend(P3W.loads(p, nxt["s"])); nxt["s"] += 1
    for i, m in enumerate(mf):
        m["first"] = (i % 4 == 0)
        if i % 4 == 0: m["vm"] = f"h{m['ks']}"
        def post(m=m, i=i):
            if i % 4 == 0 and nxt["h"] < 32: hload(nxt["h"]); nxt["h"] += 1
            if i % 16 == 1: want_slots(m["slot"])
            if i % 4 == 2 and slotq: slotq.pop(0)()
            if i % 4 == 3 and slotq and nxt["h"] >= 32: slotq.pop(0)()
            if i >= 40:
                for _ in range(2):
                    if prep: p(prep.pop(0))
        m["post"] = post
    stream(p, mf, WF, 8, 6)
    while prep: p(prep.pop(0))
    rs_store()
    for u in range(4): aug(A1[u], u, add=True)
    stamp(p, "p3 pass1")
    for u in range(2): aug(A2[u], 4 + u)
    fill = []
    for u in range(4): fill += glu_ops(A1[u], u*1024)
    mf = entries(1, [0, 1], A2)
    for i, m in enumerate(mf):
        def post(m=m, i=i):
            if i % 8 == 1: want_slots(m["slot"])
            if slotq: slotq.pop(0)()
        m["post"] = post
    stream(p, mf, WF, 8, 6, fill=fill, emit=emit)
    assert nxt["s"] == 16 and not slotq and not fill
    stamp(p, "p3 pass2a")
    aug(A2[2], 6)
    fill = glu_ops(A2[0], 4*1024) + glu_ops(A2[1], 5*1024)
    stream(p, entries(1, [2], A2), WF, 8, 6, fill=fill, emit=emit)
    stamp(p, "p3 pass2b")
    aug(A2[3], 7)
    fill = glu_ops(A2[2], 6*1024)
    stream(p, entries(1, [3], A2), WF, 8, 6, fill=fill, emit=emit)
    p("s_barrier")
    stamp(p, "p3 pass2c")
    return END, glu_ops(A2[3], 7*1024), emit

def p4_setup(p):
    vWo, vWo2 = 244, 245
    wsrc_swz128(p, vWo, 246)
    p(f"v_add_u32 v{vWo2}, {8192-1024}, v{vWo}")
    srd(p, 8, P_WD, 1792*512*2)
    p(f"s_mul_i32 s47, s{S_WAVE}, {28*16*1024}\ns_lshl_b32 s48, s27, 7\ns_add_u32 s47, s47, s48\ns_mul_i32 s48, s{S_WAVE}, {L_WD_W}")
NWD = L_WD_W // 2048
def wd_load(p, k):
    def f():
        p(f"s_add_u32 s49, s47, {16*k*1024}\ns_add_u32 m0, s48, {(k % NWD)*2048}")
        p.vm(f"buffer_load_dwordx4 v244, s[8:11], s49 offen lds", f"d{k}")
        p.vm(f"buffer_load_dwordx4 v245, s[8:11], s49 offen offset:1024 lds", f"d{k}")
    return f

P4_PRE = 18
def p4(p):
    vX, vT0, vT1 = 4, 6, 7
    HB, WA = 64, 192
    RING = 8
    p(f"s_lshr_b32 s31, s26, 1")
    tr_addr_swz128(p, vT0, vT1, 10)
    p(f"v_add_u32 v{vT0}, s48, v{vT0}\nv_add_u32 v{vT1}, s48, v{vT1}")
    for i in range(64): p(f"v_accvgpr_write_b32 a{i}, 0")
    p(f"s_mul_i32 s33, s26, {2*112*1024}\ns_mul_i32 s34, s{S_WAVE}, {28*1024}\ns_add_u32 s33, s33, s34\ns_add_u32 s33, s33, {WS_HH:#x}\ns_add_u32 s34, s33, {112*1024}")
    def bulk4():
        paced(p, [wd_load(p, k) for k in range(P4_PRE)])
    wait_go(p, 3, 31, bulk=bulk4)
    stamp(p, "S4 passed")
    def hload(k):
        sl = k % RING
        def f0():
            if k % 4 == 0 and k: p("s_add_u32 s33, s33, 4096\ns_add_u32 s34, s34, 4096")
            p.vm(f"buffer_load_dwordx4 v[{HB+8*sl}:{HB+8*sl+3}], v{vX}, s[{R_WS}:{R_WS+3}], s33 offen offset:{(k%4)*1024} sc1", f"k{k}")
        def f1(): p.vm(f"buffer_load_dwordx4 v[{HB+8*sl+4}:{HB+8*sl+7}], v{vX}, s[{R_WS}:{R_WS+3}], s34 offen offset:{(k%4)*1024} sc1", f"k{k}")
        return [f0, f1]
    for k in range(RING - 1):
        for f in hload(k): f()
    p(f"s_lshr_b32 s36, s{S_WAVE}, 1\ns_lshl_b32 s35, s26, 1\ns_add_u32 s35, s35, s36\ns_lshl_b32 s35, s35, 7\ns_add_u32 s35, s35, {WS_RS:#x}\nv_and_b32 v9, 31, v1\nv_lshlrev_b32 v9, 2, v9")
    p.vm(f"buffer_load_dword v56, v9, s[{R_WS}:{R_WS+3}], s35 offen sc1", "rs")
    nd = [P4_PRE]
    mf = []
    for k in range(28):
        sl = k % RING
        for cg, vt in ((0, vT0), (1, vT1)):
            for tg in range(2):
                a_ = 32*cg + 16*tg; h = HB + 8*sl + 4*tg
                e = dict(acc=f"a[{a_}:{a_+15}]", B=f"v[{h}:{h+3}]", areg=vt, off=((k % NWD)*2048, (k % NWD)*2048 + 1024), vm=f"k{k}", share=(tg == 1))
                if cg == 0 and tg == 0: e["pre"] = (lambda k=k: p.wait(vm=f"d{k}"))
                def post(k=k, cg=cg, tg=tg):
                    n = k + RING - 1
                    if n < 28 and cg == 0: hload(n)[tg]()
                    if cg == 1 and tg == 0 and nd[0] < 28 and nd[0] - NWD < k - 1:
                        wd_load(p, nd[0])(); nd[0] += 1
                e["post"] = post
                mf.append(e)
    stream2(p, mf, WA, 6, 3)
    assert nd[0] == 28
    stamp(p, "p4 main")
    reduce_write(p, 0, L_WD_W)
    p(f"s_lshr_b32 s36, s{S_WAVE}, 1\ns_and_b32 s37, s{S_WAVE}, 1\ns_mul_i32 s38, s36, {32*272}\ns_lshl_b32 s39, s37, 7\ns_add_u32 s38, s38, s39")
    p("v_and_b32 v10, 31, v1\nv_mul_u32_u24 v10, 272, v10\nv_lshrrev_b32 v11, 5, v1\nv_lshlrev_b32 v11, 4, v11\nv_add_u32 v10, v10, v11\nv_add_u32 v10, s38, v10\nv_add_u32 v11, 0x10000, v10")
    D = 64
    for w in range(4):
        for b_ in range(4):
            off = w*L_WD_W + b_*32
            p.ds(f"ds_read_b128 v[{D+16*w+4*b_}:{D+16*w+4*b_+3}], v{10 if off < 65536 else 11} offset:{off % 65536}", f"rr{w}")
    p("v_and_b32 v9, 31, v1\nv_lshlrev_b32 v9, 10, v9\nv_lshrrev_b32 v12, 5, v1\nv_lshlrev_b32 v12, 4, v12\nv_add_u32 v9, v9, v12")
    p("s_lshl_b32 s32, s26, 16\ns_lshl_b32 s33, s36, 15\ns_add_u32 s32, s32, s33\ns_lshl_b32 s33, s27, 7\ns_add_u32 s32, s32, s33\ns_lshl_b32 s33, s37, 6\ns_add_u32 s32, s32, s33")
    srd(p, 12, P_OUT, 2048*512*2)
    T = 128
    for i in range(8): p(f"v_lshlrev_b32 v{T+2*i}, 16, v{HKEEP+i}\nv_and_b32 v{T+2*i+1}, 0xffff0000, v{HKEEP+i}")
    p.wait(vm="rs", ds="rr1")
    for i in range(0, 16, 2): p(f"v_pk_add_f32 v[{D+i}:{D+i+1}], v[{D+i}:{D+i+1}], v[{D+16+i}:{D+16+i+1}]")
    p.wait(ds="rr3")
    for i in range(0, 16, 2): p(f"v_pk_add_f32 v[{D+32+i}:{D+32+i+1}], v[{D+32+i}:{D+32+i+1}], v[{D+48+i}:{D+48+i+1}]")
    for i in range(0, 16, 2): p(f"v_pk_add_f32 v[{D+i}:{D+i+1}], v[{D+i}:{D+i+1}], v[{D+32+i}:{D+32+i+1}]")
    for i in range(0, 16, 2): p(f"v_pk_fma_f32 v[{D+i}:{D+i+1}], v[{D+i}:{D+i+1}], v[56:57], v[{T+i}:{T+i+1}] op_sel_hi:[1,0,1]")
    Q = 160
    for i in range(8): p(f"v_cvt_pk_bf16_f32 v{Q+i}, v{D+2*i}, v{D+2*i+1}")
    for m in range(2):
        p(f"v_permlane32_swap_b32 v{Q+4*m}, v{Q+4*m+2}\nv_permlane32_swap_b32 v{Q+4*m+1}, v{Q+4*m+3}")
    for m in range(2):
        p.vm(f"buffer_store_dwordx4 v[{Q+4*m}:{Q+4*m+3}], v9, s[12:15], s32 offen offset:{32*m}", "ost")

def mega():
    p = Prog()
    NSTAMP[0] = 0; STAMP_NAMES.clear()
    p("s_getpc_b64 s[62:63]")
    p("s_cmp_ge_u32 s2, 256\ns_cbranch_scc1 L_end")
    p("s_load_dwordx16 s[64:79], s[0:1], 0\ns_load_dwordx4 s[80:83], s[0:1], 64\ns_load_dwordx2 s[84:85], s[0:1], 80")
    p(f"v_and_b32 v1, 63, v0\nv_lshrrev_b32 v2, 6, v0\nv_readfirstlane_b32 s{S_WAVE}, v2")
    if STAMPS: p("v_mov_b32 v255, 0\ns_memrealtime s[96:97]\ns_waitcnt lgkmcnt(0)\nv_writelane_b32 v255, s96, 63")
    stamp(p, "entry")
    roles(p)
    p0(p)
    p1(p)
    p2(p)
    END, tail, emit = p3(p)
    for x in tail: emit(x)
    p.wait(vm="hh")
    arrive(p, 3, 28, 14)
    stamp(p, "p3 hh flag")
    qa = list(p.vmq)
    J = p.newlabel("J")
    p(f"s_branch {J}")
    p.label(END)
    p.label(J)
    p.vmq = []
    p4_setup(p)
    p4(p)
    if STAMPS:
        stamp(p, "p4 stores issued")
        p("s_waitcnt vmcnt(0)")
        stamp(p, "end")
        p("s_memrealtime s[96:97]\ns_waitcnt lgkmcnt(0)\nv_writelane_b32 v255, s96, 62")
        p(f"s_lshl_b32 s58, s2, 2\ns_add_u32 s58, s58, s{S_WAVE}\ns_lshl_b32 s58, s58, 8\ns_add_u32 s58, s58, {WS_DBG:#x}\nv_lshlrev_b32 v2, 2, v1")
        p(f"buffer_store_dword v255, v2, s[{R_WS}:{R_WS+3}], s58 offen")
    p.label("L_end")
    p("s_endpgm")
    p.label("L_codeend")
    return p

def build():
    p = mega()
    t, d = kernel_text(NAME + "_kernel", p, 256, 128, sgpr=100)
    print(f"mega: {p.count()} instrs, {p.nops if hasattr(p,'nops') else 0} nop states", file=sys.stderr)
    txt = f"; @launch grid=(256,1,1) block=(256,1,1) lds={LDS_BYTES}\n" + '.amdgcn_target "amdgcn-amd-amdhsa--gfx950"\n' + t
    txt += '.section .rodata,"a"\n.p2align 6\n' + d
    return txt

if __name__ == "__main__":
    for a_ in list(sys.argv):
        if a_.startswith("--set="):
            k_, v_ = a_[6:].split("="); globals()[k_] = int(v_); sys.argv.remove(a_)
    if "--stamps" in sys.argv:
        STAMPS = True; sys.argv.remove("--stamps")
    out = sys.argv[1] if len(sys.argv) > 1 else "mega.s"
    txt = build()
    open(out, "w").write(txt)
    if STAMPS: open(out + ".names", "w").write("\n".join(STAMP_NAMES))
```

```python
import sys
from dsl import Prog, kernel_text

NAME = "sequential_preLN__linear_kernel_hedgehog__glu_gated_glu__prompt"
WS_XN   = 0x000000
WS_OF   = 0x200000
WS_KV   = 0x400000
WS_HF   = 0x500000
WS_ST   = 0x700000
WS_HH   = 0x800000
WS_CS   = 0xF00000
WS_RS   = 0xF10000
WS_FL   = 0xF20000
WS_EP   = 0xF30000
WS_F1   = 0xF80000
WS_CNT  = 0xF90000
WS_FL2  = 0xFB0000
WS_GO   = 0xFA0000
WS_DBG  = 0xF40000
WS_SIZE = 0x1000000
assert True
F1, F2, F3, F4, F5, F6 = (WS_FL + i*4096 for i in range(6))
LOG2E = 0x3fb8aa3b
STAMPS = False
TOUCH = True
LINES = 1
DBGOUT = 0
BULK0 = 1
CODEPF = 1
CODE_LINES_PER_WG = 10
CODE_BYTES = 40960
PACE0 = 40
DELAY0 = 0
PACE = 40
SLEEP = 2
NSTAMP = [0]
SPIN = 1 << 18

S_WAVE, S_X, S_I, S_TAG = 20, 21, 22, 60
P_X, P_WQKV, P_WPHI, P_WO, P_WG, P_WU, P_WD, P_OUT, P_WS = 64, 66, 68, 70, 74, 76, 78, 80, 84
R_WS = 4

def srd(p, d, ptr, size, shift=0):
    if shift:
        p(f"s_sub_u32 s{d}, s{ptr}, {shift}\ns_subb_u32 s{d+1}, s{ptr+1}, 0\ns_and_b32 s{d+1}, s{d+1}, 0xffff")
    else:
        p(f"s_mov_b32 s{d}, s{ptr}\ns_and_b32 s{d+1}, s{ptr+1}, 0xffff")
    p(f"s_mov_b32 s{d+2}, {size + shift:#x}\ns_mov_b32 s{d+3}, 0x20000")

def stamp(p, name):
    if not STAMPS: return
    i = NSTAMP[0]; NSTAMP[0] += 1
    STAMP_NAMES.append(name)
    p(f"s_memtime s[98:99]\ns_waitcnt lgkmcnt(0)\nv_writelane_b32 v255, s98, {i}")
STAMP_NAMES = []

def flag_store(p, arr, sblock, sword, vt=(2, 3)):
    p(f"s_lshl_b32 s58, s{sblock}, 8\ns_lshl_b32 s59, s{sword}, 2\ns_add_u32 s58, s58, s59\ns_add_u32 s58, s58, {arr:#x}")
    p(f"v_mov_b32 v{vt[0]}, s{S_TAG}\nv_mov_b32 v{vt[1]}, 0")
    p("s_mov_b64 exec, 1")
    p.vm(f"buffer_store_dword v{vt[0]}, v{vt[1]}, s[{R_WS}:{R_WS+3}], s58 offen sc1", "flag")
    p("s_mov_b64 exec, -1")

def poll(p, arr, sblock, nwords=64, extra=None, vt=(2, 3), barrier=True, always=False, arr2=None):
    L = p.newlabel("PL"); D = p.newlabel("PD")
    if not always: p(f"s_cmp_lg_u32 s{S_WAVE}, 0\ns_cbranch_scc1 {D}")
    if arr2 is not None:
        p(f"s_lshl_b32 s55, s{arr2[1]}, 8\ns_add_u32 s55, s55, {arr2[0]:#x}\nv_and_b32 v18, 63, v0\nv_min_u32 v18, {arr2[2]-1}, v18\nv_lshlrev_b32 v18, 2, v18")
    p(f"s_lshl_b32 s58, s{sblock}, 8\ns_add_u32 s58, s58, {arr:#x}")
    p(f"v_and_b32 v{vt[0]}, 63, v0")
    if nwords < 64: p(f"v_min_u32 v{vt[0]}, {nwords-1}, v{vt[0]}")
    p(f"v_lshlrev_b32 v{vt[0]}, 2, v{vt[0]}")
    if extra is not None:
        pass
    p(f"s_mov_b32 s59, {SPIN}")
    p.label(L)
    p(f"buffer_load_dword v{vt[1]}, v{vt[0]}, s[{R_WS}:{R_WS+3}], s58 offen sc1")
    if extra is not None:
        p(f"v_mov_b32 v19, 0\nbuffer_load_dword v19, v19, s[{R_WS}:{R_WS+3}], s{extra} offen sc1")
    if arr2 is not None:
        p(f"buffer_load_dword v19, v18, s[{R_WS}:{R_WS+3}], s55 offen sc1")
    p("s_waitcnt vmcnt(0)")
    p(f"v_cmp_ne_u32 vcc, s{S_TAG}, v{vt[1]}")
    if extra is not None or arr2 is not None:
        p(f"v_cmp_ne_u32 s[56:57], s{S_TAG}, v19\ns_or_b64 vcc, vcc, s[56:57]")
    p(f"s_cbranch_vccz {D}")
    if SLEEP: p(f"s_sleep {SLEEP}")
    p(f"s_sub_u32 s59, s59, 1\ns_cmp_lg_u32 s59, 0\ns_cbranch_scc1 {L}")
    p.label(D)
    if barrier: p("s_barrier")

def paced(p, fns):
    for f in fns:
        n0 = len(p.vmq)
        f()
        if len(p.vmq) > PACE:
            p(f"s_waitcnt vmcnt({PACE})"); p.vmq = p.vmq[-PACE:]

def poll_with_bulk(p, bulk, *args, **kw):
    A = p.newlabel("BK"); B = p.newlabel("BK")
    q0 = list(p.vmq)
    p(f"s_cmp_eq_u32 s{S_WAVE}, 0\ns_cbranch_scc1 {A}")
    bulk()
    q1 = list(p.vmq)
    p.label(A)
    poll(p, *args, **kw)
    p(f"s_cmp_lg_u32 s{S_WAVE}, 0\ns_cbranch_scc1 {B}")
    p.vmq = list(q0)
    bulk()
    p.label(B)
    p.vmq = q1

def arrive(p, k, sblock, n):
    D = p.newlabel("AR")
    p("s_barrier")
    p(f"s_cmp_lg_u32 s{S_WAVE}, 0\ns_cbranch_scc1 {D}")
    p(f"s_lshl_b32 s58, s{sblock}, 9\ns_add_u32 s58, s58, {WS_CNT + k*128:#x}\nv_mov_b32 v2, 1\nv_mov_b32 v3, 0\ns_mov_b64 exec, 1")
    p(f"buffer_atomic_add v2, v3, s[{R_WS}:{R_WS+3}], s58 offen sc0 sc1\ns_waitcnt vmcnt(0)\nv_readfirstlane_b32 s59, v2\ns_mov_b64 exec, -1")
    p(f"s_cmp_lg_u32 s59, {n-1}\ns_cbranch_scc1 {D}")
    p(f"s_lshl_b32 s58, s{sblock}, 7\ns_add_u32 s58, s58, {WS_GO + k*2048:#x}\nv_mov_b32 v2, s{S_TAG}\ns_mov_b64 exec, 1")
    p(f"buffer_store_dword v2, v3, s[{R_WS}:{R_WS+3}], s58 offen sc1\ns_mov_b64 exec, -1")
    p.label(D)

def arrive_line(p, k, sblock, smember):
    D = p.newlabel("AR")
    p("s_barrier")
    p(f"s_cmp_lg_u32 s{S_WAVE}, 0\ns_cbranch_scc1 {D}")
    p(f"s_lshl_b32 s58, s{sblock}, 4\ns_add_u32 s58, s58, s{smember}\ns_lshl_b32 s58, s58, 7\ns_add_u32 s58, s58, {WS_FL2 + k*32768:#x}")
    p(f"v_mov_b32 v2, s{S_TAG}\nv_mov_b32 v3, 0\ns_mov_b64 exec, 1\nbuffer_store_dword v2, v3, s[{R_WS}:{R_WS+3}], s58 offen sc1\ns_mov_b64 exec, -1")
    p.label(D)

def wait_go(p, k, sblock, arr2=None, bulk=None, lines=0):
    A = p.newlabel("BK"); B = p.newlabel("BK"); L = p.newlabel("PL"); D = p.newlabel("PD")
    q0 = list(p.vmq)
    if BULK0 and bulk:
        bulk(); bulk = None
        q1 = list(p.vmq)
        p(f"s_cmp_lg_u32 s{S_WAVE}, 0\ns_cbranch_scc1 {D}")
    else:
        p(f"s_cmp_eq_u32 s{S_WAVE}, 0\ns_cbranch_scc1 {A}")
        if bulk:
            p("s_sleep 1")
            bulk()
        q1 = list(p.vmq)
        p(f"s_branch {D}")
    p.label(A)
    if lines:
        p(f"s_lshl_b32 s58, s{sblock}, 11\ns_add_u32 s58, s58, {WS_FL2 + k*32768:#x}\nv_min_u32 v2, {lines-1}, v1\nv_lshlrev_b32 v2, 7, v2\ns_mov_b32 s59, {SPIN}")
    else:
        p(f"s_lshl_b32 s58, s{sblock}, 7\ns_add_u32 s58, s58, {WS_GO + k*2048:#x}\nv_mov_b32 v2, 0\ns_mov_b32 s59, {SPIN}")
    if arr2 is not None:
        p(f"s_lshl_b32 s55, s{arr2[1]}, 8\ns_add_u32 s55, s55, {arr2[0]:#x}\nv_and_b32 v18, 63, v0\nv_min_u32 v18, {arr2[2]-1}, v18\nv_lshlrev_b32 v18, 2, v18")
    p.label(L)
    p(f"buffer_load_dword v3, v2, s[{R_WS}:{R_WS+3}], s58 offen sc1")
    if arr2 is not None: p(f"buffer_load_dword v19, v18, s[{R_WS}:{R_WS+3}], s55 offen sc1")
    p(f"s_waitcnt vmcnt(0)\nv_cmp_ne_u32 vcc, s{S_TAG}, v3")
    if arr2 is not None: p(f"v_cmp_ne_u32 s[56:57], s{S_TAG}, v19\ns_or_b64 vcc, vcc, s[56:57]")
    p(f"s_cbranch_vccz {D}")
    if SLEEP: p(f"s_sleep {SLEEP}")
    p(f"s_sub_u32 s59, s59, 1\ns_cmp_lg_u32 s59, 0\ns_cbranch_scc1 {L}")
    p.label(D)
    p("s_barrier")
    if bulk:
        p(f"s_cmp_lg_u32 s{S_WAVE}, 0\ns_cbranch_scc1 {B}")
        p.vmq = list(q0)
        bulk()
        p.label(B)
    p.vmq = q1

def wave_sum(p, regs, tmp):
    for ctl in ("quad_perm:[1,0,3,2]", "quad_perm:[2,3,0,1]", "row_half_mirror", "row_mirror"):
        for r in regs: p(f"v_add_f32_dpp v{r}, v{r}, v{r} {ctl} row_mask:0xf bank_mask:0xf")
    for sw in ("v_permlane16_swap_b32", "v_permlane32_swap_b32"):
        for r, t in zip(regs, tmp): p(f"v_mov_b32 v{t}, v{r}")
        for r, t in zip(regs, tmp): p(f"{sw} v{r}, v{t}")
        for r, t in zip(regs, tmp): p(f"v_add_f32 v{r}, v{r}, v{t}")

def tr_addr(p, dst, tmp, pitch, hrows):
    p(f"v_lshrrev_b32 v{dst}, 5, v1\nv_mul_u32_u24 v{dst}, {hrows}, v{dst}\nv_bfe_u32 v{tmp}, v1, 2, 2\nv_add_u32 v{dst}, v{dst}, v{tmp}\nv_mul_u32_u24 v{dst}, {pitch}, v{dst}")
    p(f"v_bfe_u32 v{tmp}, v1, 4, 1\nv_lshlrev_b32 v{tmp}, 5, v{tmp}\nv_add_u32 v{dst}, v{dst}, v{tmp}\nv_and_b32 v{tmp}, 3, v1\nv_lshlrev_b32 v{tmp}, 3, v{tmp}\nv_add_u32 v{dst}, v{dst}, v{tmp}")

def softmax_ops(blocks, sL, tmp):
    L = []; p = L.append
    n = len(blocks)
    M = [tmp + 4*i for i in range(n)]; T = [m + 1 for m in M]; S = [m + 2 for m in M]
    for (b, o), m in zip(blocks, M): p(f"v_max3_f32 v{m}, v{b}, v{b+1}, v{b+2}")
    for (b, o), m in zip(blocks, M): p(f"v_max3_f32 v{m}, v{m}, v{b+3}, v{b+4}")
    for (b, o), m in zip(blocks, M): p(f"v_max3_f32 v{m}, v{m}, v{b+5}, v{b+6}")
    for (b, o), m in zip(blocks, M): p(f"v_max_f32 v{m}, v{m}, v{b+7}")
    for m, t in zip(M, T): p(f"v_mov_b32 v{t}, v{m}")
    for m, t in zip(M, T): p(f"v_permlane32_swap_b32 v{m}, v{t}")
    for m, t in zip(M, T): p(f"v_max_f32 v{m}, v{m}, v{t}")
    for m in M: p(f"v_mul_f32 v{m}, s{sL}, v{m}")
    for (b, o), m in zip(blocks, M):
        for i in range(4):
            p(f"v_pk_fma_f32 v[{b+2*i}:{b+2*i+1}], v[{b+2*i}:{b+2*i+1}], s[{sL}:{sL+1}], v[{m}:{m+1}] op_sel_hi:[1,1,0] neg_lo:[0,0,1] neg_hi:[0,0,1]")
    for (b, o), m in zip(blocks, M):
        for i in range(8): p(f"v_exp_f32 v{b+i}, v{b+i}")
    for (b, o), s_ in zip(blocks, S): p(f"v_pk_add_f32 v[{s_}:{s_+1}], v[{b}:{b+1}], v[{b+2}:{b+3}]")
    for (b, o), m in zip(blocks, M): p(f"v_pk_add_f32 v[{m}:{m+1}], v[{b+4}:{b+5}], v[{b+6}:{b+7}]")
    for m, s_ in zip(M, S): p(f"v_pk_add_f32 v[{m}:{m+1}], v[{m}:{m+1}], v[{s_}:{s_+1}]")
    for m, t in zip(M, T): p(f"v_add_f32 v{m}, v{m}, v{t}")
    for m, t in zip(M, T): p(f"v_mov_b32 v{t}, v{m}")
    for m, t in zip(M, T): p(f"v_permlane32_swap_b32 v{m}, v{t}")
    for m, t in zip(M, T): p(f"v_add_f32 v{m}, v{m}, v{t}")
    for m in M: p(f"v_rcp_f32 v{m}, v{m}")
    for (b, o), m in zip(blocks, M):
        for i in range(4): p(f"v_pk_mul_f32 v[{b+2*i}:{b+2*i+1}], v[{b+2*i}:{b+2*i+1}], v[{m}:{m+1}] op_sel_hi:[1,0]")
    for (b, o), m in zip(blocks, M):
        for i in range(4): p(f"v_cvt_pk_bf16_f32 v{o+i}, v{b+2*i}, v{b+2*i+1}")
    return L

def stream(p, mf, ring, R, L, pend=None, fill=None, emit=None, fill_total=None, pend_every=1):
    pend = pend if pend is not None else []
    fill = fill if fill is not None else []
    emit = emit or p
    n = len(mf)
    uid = p.newlabel("t")
    def rd(i):
        m = mf[i]
        if m.get("pre"): m["pre"]()
        b = ring + 4*(i % R)
        p.ds(f"ds_read_b64_tr_b16 v[{b}:{b+1}], v{m['areg']} offset:{m['off'][0]}", f"{uid}_{i}")
        p.ds(f"ds_read_b64_tr_b16 v[{b+2}:{b+3}], v{m['areg']} offset:{m['off'][1]}", f"{uid}_{i}")
    for i in range(min(L, n)): rd(i)
    for i in range(n):
        m = mf[i]
        if m.get("before"): m["before"]()
        tags = [f"{uid}_{i}"] + ([f"{uid}_{i+1}"] if (i % 2 == 0 and i + 1 < n and i + 1 < i + L - 1) else [])
        p.wait(vm=m.get("vm"), ds=tags)
        b = ring + 4*(i % R)
        p(f"v_mfma_f32_32x32x16_bf16 {m['acc']}, v[{b}:{b+3}], {m['B']}, {m.get('C', m['acc'])}")
        if i + L < n: rd(i + L)
        if m.get("post"): m["post"]()
        if pend and i % pend_every == 0: pend.pop(0)()
        if fill:
            k = -(-len(fill) // max(n - i - 2, 1))
            for _ in range(min(k, len(fill))): emit(fill.pop(0))

def stream2(p, mf, ring, R, L, pend=None, pend_at=None):
    pend = pend if pend is not None else []
    uid = p.newlabel("t")
    frags = [i for i, m in enumerate(mf) if not m.get("share")]
    fidx = {}
    c = -1
    for i, m in enumerate(mf):
        if not m.get("share"): c += 1
        fidx[i] = c
    nf = len(frags)
    def rd(f):
        m = mf[frags[f]]
        if m.get("pre"): m["pre"]()
        b = ring + 4*(f % R)
        p.ds(f"ds_read_b64_tr_b16 v[{b}:{b+1}], v{m['areg']} offset:{m['off'][0]}", f"{uid}_{f}")
        p.ds(f"ds_read_b64_tr_b16 v[{b+2}:{b+3}], v{m['areg']} offset:{m['off'][1]}", f"{uid}_{f}")
    for f in range(min(L, nf)): rd(f)
    for i, m in enumerate(mf):
        f = fidx[i]
        p.wait(vm=m.get("vm"), ds=f"{uid}_{f}")
        b = ring + 4*(f % R)
        p(f"v_mfma_f32_32x32x16_bf16 {m['acc']}, v[{b}:{b+3}], {m['B']}, {m['acc']}")
        if not m.get("share") and f + L < nf: rd(f + L)
        if m.get("post"): m["post"]()

def interleave(p, ops, fns, every):
    fns = list(fns)
    for i, x in enumerate(ops):
        p(x)
        if fns and i % every == every - 1: fns.pop(0)()
    for f in fns: f()

def wsrc_swz128(p, dst, tmp):
    p(f"v_lshrrev_b32 v{dst}, 3, v1\nv_lshlrev_b32 v{dst}, 10, v{dst}")
    p(f"v_bfe_u32 v{tmp}, v1, 4, 1\nv_lshlrev_b32 v{tmp}, 2, v{tmp}\nv_xor_b32 v{tmp}, v{tmp}, v1\nv_and_b32 v{tmp}, 7, v{tmp}\nv_lshlrev_b32 v{tmp}, 4, v{tmp}")
    p(f"v_add_u32 v{dst}, v{dst}, v{tmp}")

def tr_addr_swz128(p, d0, d1, tmp):
    p(f"v_lshrrev_b32 v{d0}, 5, v1\nv_lshlrev_b32 v{d0}, 2, v{d0}\nv_bfe_u32 v{tmp}, v1, 2, 2\nv_add_u32 v{d0}, v{d0}, v{tmp}\nv_lshlrev_b32 v{d0}, 7, v{d0}")
    p(f"v_bfe_u32 v{tmp}, v1, 3, 1\nv_lshlrev_b32 v{tmp}, 6, v{tmp}\nv_add_u32 v{d0}, v{d0}, v{tmp}")
    p(f"v_bfe_u32 v{tmp}, v1, 4, 1\nv_lshlrev_b32 v{tmp}, 5, v{tmp}\nv_add_u32 v{d0}, v{d0}, v{tmp}")
    p(f"v_and_b32 v{tmp}, 3, v1\nv_lshlrev_b32 v{tmp}, 3, v{tmp}\nv_add_u32 v{d0}, v{d0}, v{tmp}")
    p(f"v_xor_b32 v{d1}, 64, v{d0}")

L_W1, L_WPHI, L_SCR, L_KVP = 0, 98304, 102400, 139264
W1BASE = {1: 0, 2: 32768, 0: 65536}
L_CS = 65536
L_WO, L_RED2 = 0, 65536
K3_NR = 10
def pos(s): return ((s + 8) % K3_NR)*16384
L_WD_W = 36864
LDS_BYTES = 160*1024

def roles(p):
    p(f"s_and_b32 s{S_X}, s2, 7\ns_lshr_b32 s{S_I}, s2, 3")
    p(f"s_lshr_b32 s24, s{S_X}, 1\ns_lshl_b32 s24, s24, 2\ns_lshr_b32 s23, s{S_I}, 3\ns_add_u32 s24, s24, s23")
    p(f"s_and_b32 s25, s{S_X}, 1\ns_lshl_b32 s25, s25, 3\ns_and_b32 s23, s{S_I}, 7\ns_add_u32 s25, s25, s23")
    p(f"s_lshl_b32 s26, s{S_X}, 2\ns_lshr_b32 s23, s{S_I}, 3\ns_add_u32 s26, s26, s23\ns_and_b32 s27, s{S_I}, 7")
    p(f"s_mul_i32 s23, s{S_I}, 37\ns_lshr_b32 s23, s23, 8")
    p(f"s_lshr_b32 s28, s{S_X}, 1\ns_lshl_b32 s28, s28, 2\ns_add_u32 s28, s28, s23")
    p(f"s_mul_i32 s23, s23, 7\ns_sub_u32 s29, s{S_I}, s23\ns_and_b32 s23, s{S_X}, 1\ns_mul_i32 s23, s23, 7\ns_add_u32 s29, s29, s23")
    p(f"s_cmp_ge_u32 s{S_I}, 28\ns_cselect_b32 s29, 14, s29")
    p("s_lshr_b32 s30, s2, 4")

def p0(p):
    vX, vW = 4, 5
    R_A, R_B, R_C = 8, 12, 16
    p(f"v_lshlrev_b32 v{vX}, 4, v1")
    DM = p.newlabel("DMAW"); JN = p.newlabel("P0J")
    p(f"s_cmp_ge_u32 s{S_WAVE}, 2\ns_cbranch_scc1 {DM}")
    p(f"s_lshl_b32 s31, s2, 3\ns_lshl_b32 s32, s{S_WAVE}, 2\ns_add_u32 s31, s31, s32\ns_lshl_b32 s32, s31, 10")
    p("v_and_b32 v8, 3, v1\nv_lshrrev_b32 v9, 2, v1\nv_lshlrev_b32 v10, 10, v8\nv_lshlrev_b32 v11, 4, v9\nv_add_u32 v10, v10, v11")
    p("s_waitcnt lgkmcnt(0)")
    srd(p, R_A, P_X, 2048*512*2)
    XI = 12
    srd(p, R_WS, P_WS, WS_SIZE)
    Z = p.newlabel("Z")
    p(f"s_and_b32 s35, s2, 15\ns_xor_b32 s37, s{S_WAVE}, 1\ns_or_b32 s35, s35, s37\ns_cmp_lg_u32 s35, 0\ns_cbranch_scc1 {Z}")
    p("v_mov_b32 v28, 0\nv_mov_b32 v29, 0\nv_mov_b32 v30, 0\nv_mov_b32 v31, 0")
    p(f"s_mul_i32 s35, s30, 4352\ns_add_u32 s35, s35, {WS_KV:#x}")
    for i in range(4): p(f"buffer_store_dwordx4 v[28:31], v{vX}, s[{R_WS}:{R_WS+3}], s35 offen offset:{i*1024} sc1")
    p("s_add_u32 s35, s35, 4096\ns_mov_b64 exec, 0xffff")
    p(f"buffer_store_dwordx4 v[28:31], v{vX}, s[{R_WS}:{R_WS+3}], s35 offen sc1")
    p(f"s_lshl_b32 s35, s30, 9\ns_add_u32 s35, s35, {WS_CNT:#x}\ns_mov_b32 exec_lo, -1")
    p(f"buffer_store_dwordx4 v[28:31], v{vX}, s[{R_WS}:{R_WS+3}], s35 offen sc1")
    p("s_mov_b64 exec, -1")
    p.label(Z)
    for i in range(4): p.vm(f"buffer_load_dwordx4 v[{XI+4*i}:{XI+4*i+3}], v10, s[{R_A}:{R_A+3}], s32 offen offset:{i*256}", "x")
    p(f"s_mov_b32 s59, {WS_EP:#x}\ns_load_dword s{S_TAG}, s[{P_WS}:{P_WS+1}], s59")
    p(f"v_lshlrev_b32 v9, 7, v9\nv_lshlrev_b32 v8, 4, v8\nv_add_u32 v8, v8, v9\ns_lshl_b32 s36, s{S_WAVE}, 6\ns_lshl_b32 s37, s2, 13\ns_add_u32 s36, s36, s37\ns_add_u32 s36, s36, {WS_XN:#x}")
    stamp(p, "p0 issue")
    p.wait(vm="x")
    stamp(p, "p0 x landed")
    B = 32
    for i in range(16): p(f"v_lshlrev_b32 v{B+2*i}, 16, v{XI+i}\nv_and_b32 v{B+2*i+1}, 0xffff0000, v{XI+i}")
    def tree(op_first, dst):
        for i in range(8): op_first(i)
        for w_ in (4, 2, 1):
            for i in range(w_): p(f"v_pk_add_f32 v[{64+2*i}:{65+2*i}], v[{64+2*i}:{65+2*i}], v[{64+2*(i+w_)}:{65+2*(i+w_)}]")
        p(f"v_add_f32 v{dst}, v64, v65")
    def row_reduce(r):
        p(f"v_add_f32_dpp v{r}, v{r}, v{r} row_ror:4 row_mask:0xf bank_mask:0xf\nv_add_f32_dpp v{r}, v{r}, v{r} row_ror:8 row_mask:0xf bank_mask:0xf")
        for sw in ("v_permlane16_swap_b32", "v_permlane32_swap_b32"):
            p(f"v_mov_b32 v{r+1}, v{r}\n{sw} v{r}, v{r+1}\nv_add_f32 v{r}, v{r}, v{r+1}")
    tree(lambda i: p(f"v_pk_add_f32 v[{64+2*i}:{65+2*i}], v[{B+4*i}:{B+4*i+1}], v[{B+4*i+2}:{B+4*i+3}]"), 80)
    row_reduce(80)
    p("v_mul_f32 v80, 0xbb000000, v80")
    for i in range(16): p(f"v_pk_add_f32 v[{B+2*i}:{B+2*i+1}], v[{B+2*i}:{B+2*i+1}], v[80:81] op_sel_hi:[1,0]")
    def sq(i):
        p(f"v_pk_mul_f32 v[{64+2*i}:{65+2*i}], v[{B+4*i}:{B+4*i+1}], v[{B+4*i}:{B+4*i+1}]")
    for i in range(8): sq(i)
    for i in range(8): p(f"v_pk_fma_f32 v[{64+2*i}:{65+2*i}], v[{B+4*i+2}:{B+4*i+3}], v[{B+4*i+2}:{B+4*i+3}], v[{64+2*i}:{65+2*i}]")
    tree(lambda i: None, 82)
    row_reduce(82)
    p("v_mov_b32 v84, 0x3727c5ac\nv_fmac_f32 v84, 0x3b000000, v82\nv_rsq_f32 v84, v84")
    for i in range(16): p(f"v_pk_mul_f32 v[{B+2*i}:{B+2*i+1}], v[{B+2*i}:{B+2*i+1}], v[84:85] op_sel_hi:[1,0]")
    for n in range(4):
        for i in range(4): p(f"v_cvt_pk_bf16_f32 v{XI+4*n+i}, v{B+8*n+2*i}, v{B+8*n+2*i+1}")
        if n == 2: p("s_add_u32 s36, s36, 4096")
        p.vm(f"buffer_store_dwordx4 v[{XI+4*n}:{XI+4*n+3}], v8, s[{R_WS}:{R_WS+3}], s36 offen offset:{(n%2)*2048} sc1", "xn")
    p("s_waitcnt vmcnt(0) lgkmcnt(0)"); p.vmq = []
    p(f"s_mul_i32 s{S_TAG}, s{S_TAG}, 0x9e3779b1\ns_add_u32 s{S_TAG}, s{S_TAG}, 1")
    p(f"s_lshl_b32 s58, s2, 1\ns_add_u32 s58, s58, s{S_WAVE}\ns_lshl_b32 s58, s58, 7\ns_add_u32 s58, s58, {WS_F1:#x}")
    p(f"v_mov_b32 v2, s{S_TAG}\nv_mov_b32 v3, 0\ns_mov_b64 exec, 1")
    p(f"buffer_store_dword v2, v3, s[{R_WS}:{R_WS+3}], s58 offen sc1\ns_mov_b64 exec, -1")
    stamp(p, "p0 flag")
    p(f"s_cmp_lg_u32 s{S_WAVE}, 0\ns_cbranch_scc1 {JN}")
    srd(p, R_C, P_WPHI, 32*16*16*2)
    p(f"s_lshl_b32 s35, s25, 10\ns_mov_b32 m0, {L_WPHI}")
    p(f"buffer_load_dwordx4 v{vX}, s[{R_C}:{R_C+3}], s35 offen lds")
    p(f"s_branch {JN}")
    p.label(DM)
    if CODEPF:
        CP = p.newlabel("CP")
        p(f"s_cmp_lg_u32 s{S_WAVE}, 3\ns_cbranch_scc1 {CP}")
        p(f"s_and_b32 s40, s62, 0xffffff80\ns_and_b32 s41, s63, 0xffff\ns_mov_b32 s42, L_codeend-{NAME}_kernel\ns_mov_b32 s43, 0x20000")
        p(f"s_mul_i32 s35, s{S_I}, {CODE_LINES_PER_WG}\nv_min_u32 v12, {CODE_LINES_PER_WG-1}, v1\nv_add_u32 v12, s35, v12\nv_lshlrev_b32 v12, 7, v12")
        p("buffer_load_dword v13, v12, s[40:43], 0 offen")
        p.label(CP)
    p("s_waitcnt lgkmcnt(0)")
    srd(p, R_B, P_WQKV, 512*1536*2)
    p(f"v_lshrrev_b32 v{vW}, 2, v1\nv_mul_u32_u24 v{vW}, 3072, v{vW}\nv_and_b32 v10, 3, v1\nv_lshlrev_b32 v10, 4, v10\nv_add_u32 v{vW}, v{vW}, v10")
    p(f"s_sub_u32 s32, s{S_WAVE}, 1\ns_lshl_b32 s33, s32, 10\ns_lshl_b32 s34, s25, 6\ns_add_u32 s33, s33, s34")
    p(f"s_sub_u32 s34, s{S_WAVE}, 2\ns_lshl_b32 s34, s34, 15")
    p("s_and_b32 s36, s24, 3\ns_lshl_b32 s36, s36, 1\ns_and_b32 s37, s25, 1\ns_add_u32 s36, s36, s37\ns_lshl_b32 s36, s36, 2")
    for ks in range(32):
        p(f"s_add_u32 s37, s36, {ks}\ns_and_b32 s37, s37, 31\ns_mul_i32 s38, s37, {16*3072}\ns_add_u32 s38, s38, s33\ns_lshl_b32 s39, s37, 10\ns_add_u32 m0, s39, s34")
        if ks >= PACE0: p(f"s_waitcnt vmcnt({PACE0-1})")
        p(f"buffer_load_dwordx4 v{vW}, s[{R_B}:{R_B+3}], s38 offen lds")
    p(f"s_mov_b32 s59, {WS_EP:#x}\ns_load_dword s{S_TAG}, s[{P_WS}:{P_WS+1}], s59")
    srd(p, R_WS, P_WS, WS_SIZE)
    p("s_waitcnt vmcnt(0) lgkmcnt(0)")
    p(f"s_mul_i32 s{S_TAG}, s{S_TAG}, 0x9e3779b1\ns_add_u32 s{S_TAG}, s{S_TAG}, 1")
    stamp(p, "p0 W1 landed")
    p.label(JN)
    p.vmq = []
    p("s_barrier")
    L = p.newlabel("PL"); D = p.newlabel("PD")
    p(f"s_cmp_lg_u32 s{S_WAVE}, 0\ns_cbranch_scc1 {D}")
    stamp(p, "p0 poll start")
    p(f"s_lshl_b32 s35, s24, 5\nv_add_u32 v2, s35, v1\ns_lshl_b32 s35, s25, 5\ns_add_u32 s35, s35, 1\nv_mov_b32 v3, s35\nv_cmp_gt_u32 vcc, 32, v1\nv_cndmask_b32 v2, v3, v2, vcc\nv_lshlrev_b32 v2, 7, v2")
    p(f"s_mov_b32 s58, {WS_F1:#x}\ns_mov_b32 s59, {SPIN}")
    p.label(L)
    p(f"buffer_load_dword v3, v2, s[{R_WS}:{R_WS+3}], s58 offen sc1\ns_waitcnt vmcnt(0)\nv_cmp_ne_u32 vcc, s{S_TAG}, v3\ns_cbranch_vccz {D}")
    if SLEEP: p(f"s_sleep {SLEEP}")
    p(f"s_sub_u32 s59, s59, 1\ns_cmp_lg_u32 s59, 0\ns_cbranch_scc1 {L}")
    p.label(D)
    p("s_barrier")
    stamp(p, "S1 passed")

def touch(p, n):
    if not TOUCH: return
    T0 = p.newlabel("TC"); T3 = p.newlabel("TC"); TW = p.newlabel("TC")
    p(f"s_cmp_eq_u32 s{S_WAVE}, 0\ns_cbranch_scc1 {TW}\ns_cmp_eq_u32 s{S_WAVE}, 3\ns_cbranch_scc1 {T3}")
    p(f"s_cmp_eq_u32 s{S_WAVE}, 2\ns_cselect_b32 s52, s{P_WU}, s{P_WG}\ns_cselect_b32 s53, s{P_WU+1}, s{P_WG+1}")
    srd(p, 48, 52, 512*1792*2)
    p(f"v_lshrrev_b32 v253, 4, v1\nv_mul_u32_u24 v253, 3584, v253\nv_and_b32 v254, 15, v1\nv_min_u32 v254, 13, v254\nv_lshlrev_b32 v254, 7, v254\nv_add_u32 v253, v253, v254")
    p(f"s_lshl_b32 s52, s{S_I}, 4\ns_add_u32 s52, s52, {4*n}\ns_mul_i32 s52, s52, 3584\ns_and_b32 s53, s{S_X}, 1\ns_mul_i32 s53, s53, 1792\ns_add_u32 s52, s52, s53")
    p(f"buffer_load_dword v250, v253, s[48:51], s52 offen")
    p(f"s_branch {T0}")
    p.label(T3)
    srd(p, 48, P_WD, 1792*512*2)
    p(f"s_mul_i32 s52, s2, 56\ns_add_u32 s52, s52, {14*n}\nv_min_u32 v253, 13, v1\nv_add_u32 v253, s52, v253\nv_lshlrev_b32 v253, 7, v253")
    p("buffer_load_dword v250, v253, s[48:51], 0 offen")
    p(f"s_branch {T0}")
    p.label(TW)
    p(f"v_mov_b32 v253, 0\ns_mov_b32 s52, {WS_EP:#x}\ns_mov_b64 exec, 1\nbuffer_load_dword v250, v253, s[{R_WS}:{R_WS+3}], s52 offen\ns_mov_b64 exec, -1")
    p.label(T0)
    p.vmq.append("tch")

def cs_loads(p):
    CSL = p.newlabel("CS")
    p(f"s_cmp_ge_u32 s2, 224\ns_cbranch_scc1 {CSL}")
    p(f"s_cmp_ge_u32 s2, 112\ns_cselect_b32 s35, 112, 0\ns_cselect_b32 s40, s{P_WU}, s{P_WG}\ns_cselect_b32 s41, s{P_WU+1}, s{P_WG+1}")
    p("s_sub_u32 s36, s2, s35")
    srd(p, 8, 40, 512*1792*2)
    p("s_lshr_b32 s37, s36, 2\ns_and_b32 s38, s36, 3")
    p(f"s_lshl_b32 s39, s38, 2\ns_add_u32 s39, s39, s{S_WAVE}\ns_mul_i32 s39, s39, {32*3584}\ns_lshl_b32 s40, s37, 7\ns_add_u32 s39, s39, s40")
    p("v_lshrrev_b32 v18, 3, v1\nv_mul_u32_u24 v18, 3584, v18\nv_bfe_u32 v19, v1, 4, 1\nv_lshlrev_b32 v19, 2, v19\nv_xor_b32 v19, v19, v1\nv_and_b32 v19, 7, v19\nv_lshlrev_b32 v19, 4, v19\nv_add_u32 v18, v18, v19")
    p(f"s_lshl_b32 s40, s{S_WAVE}, 12\ns_add_u32 s40, s40, {L_CS}")
    for n in range(4):
        p(f"s_add_u32 s41, s39, {n*8*3584}\ns_add_u32 m0, s40, {n*1024}")
        p(f"buffer_load_dwordx4 v18, s[8:11], s41 offen lds")
    p.label(CSL)

def cs_compute(p):
    CSL = p.newlabel("CS")
    p(f"s_cmp_ge_u32 s2, 224\ns_cbranch_scc1 {CSL}")
    p(f"s_lshl_b32 s40, s{S_WAVE}, 12\ns_add_u32 s40, s40, {L_CS}")
    tr_addr_swz128(p, 18, 19, 20)
    p("v_add_u32 v18, s40, v18\nv_add_u32 v19, s40, v19\nv_mov_b32 v20, 0x3f803f80\nv_mov_b32 v21, 0x3f803f80\nv_mov_b32 v22, 0x3f803f80\nv_mov_b32 v23, 0x3f803f80")
    for ks in range(2):
        for cg in range(2):
            r = 24 + 8*ks + 4*cg
            p(f"ds_read_b64_tr_b16 v[{r}:{r+1}], v{18+cg} offset:{ks*2048}")
            p(f"ds_read_b64_tr_b16 v[{r+2}:{r+3}], v{18+cg} offset:{ks*2048+1024}")
    p("s_waitcnt lgkmcnt(0)")
    for cg in range(2):
        for ks in range(2):
            r = 24 + 8*ks + 4*cg
            p(f"v_mfma_f32_32x32x16_bf16 v[{64+16*cg}:{79+16*cg}], v[20:23], v[{r}:{r+3}], {'0' if ks == 0 else f'v[{64+16*cg}:{79+16*cg}]'}")
    p(f"s_lshl_b32 s40, s{S_WAVE}, 8\ns_add_u32 s40, s40, {L_CS + 16384}\nv_lshlrev_b32 v18, 2, v1\nv_add_u32 v18, s40, v18")
    p("s_mov_b32 exec_hi, 0")
    p("ds_write_b32 v18, v64\nds_write_b32 v18, v80 offset:128")
    p("s_mov_b64 exec, -1\ns_waitcnt lgkmcnt(0)")
    p.label(CSL)

def cs_finish(p):
    CS2 = p.newlabel("CS")
    p(f"s_cmp_ge_u32 s2, 224\ns_cbranch_scc1 {CS2}\ns_cmp_lg_u32 s{S_WAVE}, 1\ns_cbranch_scc1 {CS2}")
    p(f"v_lshlrev_b32 v18, 2, v1\nv_add_u32 v18, {L_CS + 16384}, v18")
    for w in range(4): p(f"ds_read_b32 v{20+w}, v18 offset:{w*256}")
    p("s_waitcnt lgkmcnt(0)\nv_add_f32 v20, v20, v21\nv_add_f32 v22, v22, v23\nv_add_f32 v20, v20, v22")
    p("s_cmp_ge_u32 s2, 112\ns_cselect_b32 s36, 112, 0\ns_cselect_b32 s35, 1792, 0\ns_cselect_b32 s39, 8, 0\ns_sub_u32 s36, s2, s36")
    p("s_lshr_b32 s37, s36, 2\ns_and_b32 s38, s36, 3\ns_lshr_b32 s40, s39, 3\ns_lshl_b32 s41, s38, 1\ns_add_u32 s40, s40, s41\ns_mul_i32 s40, s40, 28\ns_add_u32 s40, s40, s37\ns_lshl_b32 s40, s40, 8")
    p(f"s_add_u32 s40, s40, {WS_CS:#x}\nv_and_b32 v18, 15, v1\nv_lshlrev_b32 v18, 4, v18\nv_lshrrev_b32 v19, 4, v1\nv_lshlrev_b32 v19, 2, v19\nv_add_u32 v18, v18, v19")
    p(f"buffer_store_dword v20, v18, s[{R_WS}:{R_WS+3}], s40 offen sc1")
    p("s_waitcnt vmcnt(0)")
    p("s_lshr_b32 s40, s37, 1\ns_and_b32 s37, s37, 1\ns_lshl_b32 s37, s37, 2\ns_add_u32 s37, s37, s38\ns_add_u32 s37, s37, s39")
    q0 = list(p.vmq)
    flag_store(p, F6, 40, 37, vt=(20, 21))
    p.vmq = q0
    p.label(CS2)

def p1(p):
    vX, vT, vT2, vP, vS = 4, 6, 7, 8, 9
    ACC, X, WF = 16, 64, 192
    R_A = 8
    p(f"s_lshl_b32 s31, s24, 2\ns_add_u32 s31, s31, s{S_WAVE}")
    p(f"s_lshl_b32 s32, s31, 15\ns_add_u32 s32, s32, {WS_XN:#x}\ns_add_u32 s33, s32, 4096")
    p("v_bfe_u32 v5, v1, 3, 2\nv_lshlrev_b32 v5, 13, v5\nv_lshrrev_b32 v10, 5, v1\nv_lshlrev_b32 v10, 7, v10\nv_add_u32 v5, v5, v10\nv_and_b32 v10, 7, v1\nv_lshlrev_b32 v10, 4, v10\nv_add_u32 v5, v5, v10")
    def xload(ks):
        p.vm(f"buffer_load_dwordx4 v[{X+4*ks}:{X+4*ks+3}], v5, s[{R_WS}:{R_WS+3}], s{32 + ks//16} offen offset:{(ks%16)*256} sc1", f"x{ks}")
    LEAD = 8
    for ks in range(LEAD): xload(ks)
    tr_addr(p, vT, 10, 64, 8)
    p(f"v_add_u32 v{vT2}, 0x10000, v{vT}")
    AK_, AV_, AQ_ = ACC + 16, ACC + 32, ACC
    def ent(ks, part, acc, first):
        off = (W1BASE[part] % 65536) + ks*1024
        return dict(acc=f"v[{acc}:{acc+15}]", B=f"v[{X+4*ks}:{X+4*ks+3}]", areg=(vT2 if part == 0 else vT), off=(off, off+256), C=("0" if first else f"v[{acc}:{acc+15}]"))
    mf = []
    for ks in range(32):
        e = ent(ks, 1, AK_, ks == 0); e["vm"] = f"x{ks}"; mf.append(e)
        mf.append(ent(ks, 2, AV_, ks == 0))
    stream(p, mf, WF, 8, 5, pend=[(lambda k=k: xload(k)) for k in range(LEAD, 32)], pend_every=2)
    stamp(p, "p1 pass A")
    srd(p, 12, P_WQKV, 512*1536*2)
    p(f"v_lshrrev_b32 v14, 2, v1\nv_mul_u32_u24 v14, 3072, v14\nv_and_b32 v10, 3, v1\nv_lshlrev_b32 v10, 4, v10\nv_add_u32 v14, v14, v10")
    p(f"s_mul_i32 s33, s{S_WAVE}, {8*16*3072}\ns_lshl_b32 s34, s25, 6\ns_add_u32 s33, s33, s34\ns_lshl_b32 s34, s{S_WAVE}, 13")
    for c in range(8):
        p(f"s_add_u32 s35, s33, {c*16*3072}\ns_add_u32 m0, s34, {W1BASE[0] + c*1024}")
        p.vm(f"buffer_load_dwordx4 v14, s[12:15], s35 offen lds", "wq")
    touch(p, 1)
    WP = 224
    p(f"v_lshrrev_b32 v{vP}, 5, v1\nv_lshlrev_b32 v{vP}, 2, v{vP}\nv_bfe_u32 v10, v1, 2, 2\nv_add_u32 v{vP}, v{vP}, v10\nv_lshlrev_b32 v{vP}, 5, v{vP}")
    p(f"v_and_b32 v10, 3, v1\nv_lshlrev_b32 v10, 3, v10\nv_add_u32 v{vP}, v{vP}, v10\nv_add_u32 v{vP}, {L_WPHI}, v{vP}")
    p(f"v_and_b32 v{vS}, 16, v1\nv_lshlrev_b32 v{vS}, 11, v{vS}\nv_lshlrev_b32 v10, 16, v{vS}\nv_or_b32 v{vS}, v{vS}, v10")
    for hd in range(2):
        p.ds(f"ds_read_b64_tr_b16 v[{WP+4*hd}:{WP+4*hd+1}], v{vP} offset:{512*hd}", "wp")
        p.ds(f"ds_read_b64_tr_b16 v[{WP+4*hd+2}:{WP+4*hd+3}], v{vP} offset:{512*hd+256}", "wp")
    vA, vR = 10, 11
    p(f"s_mul_i32 s35, s{S_WAVE}, 9216\ns_add_u32 s35, s35, {L_SCR}")
    p(f"v_and_b32 v{vA}, 31, v1\nv_mul_u32_u24 v{vA}, 72, v{vA}\nv_lshrrev_b32 v12, 5, v1\nv_lshlrev_b32 v12, 3, v12\nv_add_u32 v{vA}, v{vA}, v12\nv_add_u32 v{vA}, s35, v{vA}")
    tr_addr(p, vR, 12, 72, 8)
    p(f"v_add_u32 v{vR}, s35, v{vR}")
    KB, VB = 232, 240
    for i in range(8): p(f"v_cvt_pk_bf16_f32 v{KB+i}, v{AK_+2*i}, v{AK_+2*i+1}")
    p.wait(ds="wp")
    for i in range(8): p(f"v_xor_b32 v{WP+i}, v{WP+i}, v{vS}")
    PK = [WF, WF + 16]
    for hd in range(2):
        p(f"v_mfma_f32_32x32x16_bf16 v[{PK[hd]}:{PK[hd]+15}], v[{WP+4*hd}:{WP+4*hd+3}], v[{KB+4*hd}:{KB+4*hd+3}], 0")
    for i in range(8): p(f"v_cvt_pk_bf16_f32 v{VB+i}, v{AV_+2*i}, v{AV_+2*i+1}")
    p("v_mov_b32 v12, 0x3f803f80\nv_mov_b32 v13, 0x3f803f80")
    for hd in range(2):
        for q in range(2):
            p.ds(f"ds_write_b64 v{vA}, v[{VB+4*hd+2*q}:{VB+4*hd+2*q+1}] offset:{(2+hd)*2304 + 16*q}", "st")
            p.ds(f"ds_write_b64 v{vA}, v[12:13] offset:{(2+hd)*2304 + 32 + 16*q}", "st")
    p(f"s_mov_b32 s36, {LOG2E:#x}\ns_mov_b32 s37, {LOG2E:#x}")
    OK_ = 32
    blk = [(PK[hd] + 8*sg, OK_ + 8*hd + 4*sg) for hd in range(2) for sg in range(2)]
    for x in softmax_ops(blk, 36, 48): p(x)
    for hd in range(2):
        for sg in range(2):
            for q in range(2):
                r = OK_ + 8*hd + 4*sg + 2*q
                p.ds(f"ds_write_b64 v{vA}, v[{r}:{r+1}] offset:{hd*2304 + 32*sg + 16*q}", "st")
    stamp(p, "p1 k softmax")
    p.wait(ds="st")
    F = WF
    for hd in range(2):
        for s2 in range(2):
            f = F + 8*(2*hd + s2)
            for ab in range(2):
                off = (2*ab + hd)*2304 + s2*1152
                p.ds(f"ds_read_b64_tr_b16 v[{f+4*ab}:{f+4*ab+1}], v{vR} offset:{off}", f"kv{hd}")
                p.ds(f"ds_read_b64_tr_b16 v[{f+4*ab+2}:{f+4*ab+3}], v{vR} offset:{off+288}", f"kv{hd}")
    C = [32, 48]
    p(f"s_mul_i32 s35, s{S_WAVE}, 4352\ns_add_u32 s35, s35, {L_KVP}")
    p("v_and_b32 v12, 31, v1\nv_lshlrev_b32 v12, 4, v12\nv_lshrrev_b32 v13, 5, v1\nv_mul_u32_u24 v13, 272, v13\nv_add_u32 v12, v12, v13\nv_add_u32 v12, s35, v12")
    for hd in range(2):
        p.wait(ds=f"kv{hd}")
        for s2 in range(2):
            f = F + 8*(2*hd + s2)
            c = "0" if s2 == 0 else f"v[{C[hd]}:{C[hd]+15}]"
            p(f"v_mfma_f32_32x32x16_bf16 v[{C[hd]}:{C[hd]+15}], v[{f}:{f+3}], v[{f+4}:{f+7}], {c}")
    p("s_mov_b32 exec_lo, 0x1ffff\ns_mov_b32 exec_hi, 0x1ffff")
    for hd in range(2):
        for b in range(4):
            p.ds(f"ds_write_b128 v12, v[{C[hd]+4*b}:{C[hd]+4*b+3}] offset:{hd*2176 + b*544}", "kvp")
    p("s_mov_b64 exec, -1")
    p.wait(vm="wq", ds="kvp")
    p("s_barrier")
    p("v_lshlrev_b32 v12, 2, v0")
    p(f"s_mul_i32 s35, s25, 4352\ns_add_u32 s35, s35, {WS_KV:#x}")
    p(f"v_add_u32 v13, {L_KVP}, v12")
    for i in range(5):
        for w in range(4): p.ds(f"ds_read_b32 v{32+4*i+w}, v13 offset:{w*4352 + i*1024}", f"r{i}")
    for i in range(4):
        p.wait(ds=f"r{i}")
        r = 32 + 4*i
        p(f"v_add_f32 v{r}, v{r}, v{r+1}\nv_add_f32 v{r+2}, v{r+2}, v{r+3}\nv_add_f32 v{r}, v{r}, v{r+2}")
        p.vm(f"buffer_atomic_add_f32 v{r}, v12, s[{R_WS}:{R_WS+3}], s35 offen offset:{i*1024}", "at")
    p.wait(ds="r4")
    p("v_add_f32 v48, v48, v49\nv_add_f32 v50, v50, v51\nv_add_f32 v48, v48, v50")
    AT = p.newlabel("AT")
    p(f"s_cmp_lg_u32 s{S_WAVE}, 0\ns_cbranch_scc1 {AT}")
    p(f"s_add_u32 s35, s35, 4096\nbuffer_atomic_add_f32 v48, v12, s[{R_WS}:{R_WS+3}], s35 offen")
    p.label(AT)
    stamp(p, "p1 kv atomics issued")
    vWo, vWo2 = 14, 15
    wsrc_swz128(p, vWo, 10)
    p(f"v_add_u32 v{vWo2}, {8192-1024}, v{vWo}")
    srd(p, R_A, P_WO, 512*512*2)
    p(f"s_lshl_b32 s40, s{S_WAVE}, 17\ns_lshl_b32 s41, s27, 7\ns_add_u32 s40, s40, s41\ns_lshl_b32 s41, s{S_WAVE}, 14")
    def wo_load(k):
        def f():
            p(f"s_add_u32 s42, s40, {16*k*1024}\ns_add_u32 m0, s41, {L_WO + k*2048}")
            p.vm(f"buffer_load_dwordx4 v{vWo}, s[{R_A}:{R_A+3}], s42 offen lds", "wo")
            p.vm(f"buffer_load_dwordx4 v{vWo2}, s[{R_A}:{R_A+3}], s42 offen offset:1024 lds", "wo")
        return f
    mf = [ent(ks, 0, AQ_, ks == 0) for ks in range(32)]
    stream(p, mf, WF, 8, 5, pend=[wo_load(k) for k in range(8)] + ([lambda: touch(p, 0)] if TOUCH else []), pend_every=3)
    QB = 232
    for i in range(8): p(f"v_cvt_pk_bf16_f32 v{QB+i}, v{AQ_+2*i}, v{AQ_+2*i+1}")
    PQ = [64, 80]
    for hd in range(2):
        p(f"v_mfma_f32_32x32x16_bf16 v[{PQ[hd]}:{PQ[hd]+15}], v[{WP+4*hd}:{WP+4*hd+3}], v[{QB+4*hd}:{QB+4*hd+3}], 0")
    p("s_barrier")
    stamp(p, "p1 pass B")
    PHQ = 144
    blk = [(PQ[hd] + 8*sg, PHQ + 8*hd + 4*sg) for hd in range(2) for sg in range(2)]
    for x in softmax_ops(blk, 36, 160): p(x)
    stamp(p, "p1 q softmax")
    p.wait(vm="at")
    arrive(p, 0, 25, 16)
    stamp(p, "p1 kv flag")
    P3W.setup(p)
    def bulk2():
        cs_loads(p)
        SK0 = p.newlabel("SK")
        p(f"s_cmp_ge_u32 s29, 14\ns_cbranch_scc1 {SK0}")
        q0 = list(p.vmq)
        paced(p, [f for s_ in range(2) for f in P3W.loads(p, s_)])
        p.vmq = q0
        p.label(SK0)
    vK = 12
    p(f"v_and_b32 v{vK}, 31, v1\nv_min_u32 v{vK}, 16, v{vK}\nv_lshlrev_b32 v{vK}, 4, v{vK}\nv_lshrrev_b32 v13, 5, v1\nv_mul_u32_u24 v13, 272, v13\nv_add_u32 v{vK}, v{vK}, v13")
    wait_go(p, 0, 25, bulk=bulk2)
    stamp(p, "S2 passed")
    p(f"s_mul_i32 s35, s25, 4352\ns_add_u32 s35, s35, {WS_KV:#x}")
    AK = 64
    for hd in range(2):
        for s_ in range(2):
            for q in range(2):
                r = AK + 16*hd + 8*s_ + 4*q
                o = hd*2176 + (2*s_+q)*544
                p.vm(f"buffer_load_dwordx4 v[{r}:{r+3}], v{vK}, s[{R_WS}:{R_WS+3}], s35 offen offset:{o} sc1", f"kv{hd}")
    touch(p, 2)
    AB, ON = 96, 16
    for hd in range(2):
        p.wait(vm=f"kv{hd}")
        for s_ in range(2):
            for jj in range(4): p(f"v_cvt_pk_bf16_f32 v{AB+8*hd+4*s_+jj}, v{AK+16*hd+8*s_+2*jj}, v{AK+16*hd+8*s_+2*jj+1}")
        o = ON + 16*hd
        p(f"v_mfma_f32_32x32x16_bf16 v[{o}:{o+15}], v[{AB+8*hd}:{AB+8*hd+3}], v[{PHQ+8*hd}:{PHQ+8*hd+3}], 0")
        p(f"v_mfma_f32_32x32x16_bf16 v[{o}:{o+15}], v[{AB+8*hd+4}:{AB+8*hd+7}], v[{PHQ+8*hd+4}:{PHQ+8*hd+7}], v[{o}:{o+15}]")
    p(f"s_lshl_b32 s35, s31, 5\ns_lshl_b32 s36, s25, 1\ns_add_u32 s35, s35, s36\ns_lshl_b32 s35, s35, 10\ns_add_u32 s35, s35, {WS_OF:#x}")
    for hd in range(2):
        o = ON + 16*hd
        p(f"v_add_f32 v{o+8}, 0x358637bd, v{o+8}\nv_rcp_f32 v{o+8}, v{o+8}")
        for i in range(0, 8, 2): p(f"v_pk_mul_f32 v[{o+i}:{o+i+1}], v[{o+i}:{o+i+1}], v[{o+8}:{o+9}] op_sel_hi:[1,0]")
        for jj in range(4): p(f"v_cvt_pk_bf16_f32 v{112+4*hd+jj}, v{o+2*jj}, v{o+2*jj+1}")
        p.vm(f"buffer_store_dwordx4 v[{112+4*hd}:{115+4*hd}], v{vX}, s[{R_WS}:{R_WS+3}], s35 offen offset:{hd*1024} sc1", "of")
    p.wait(vm="of")
    if LINES: arrive_line(p, 0, 24, 25)
    else: arrive(p, 1, 24, 16)
    stamp(p, "p1 o flag")
    cs_compute(p)
    p("s_barrier")
    cs_finish(p)
    touch(p, 3)

def reduce_write(p, base, wavestride):
    p(f"s_mul_i32 s40, s{S_WAVE}, {wavestride}\ns_add_u32 s40, s40, {base}")
    p("v_and_b32 v10, 31, v1\nv_mul_u32_u24 v10, 272, v10\nv_lshrrev_b32 v11, 5, v1\nv_lshlrev_b32 v11, 4, v11\nv_add_u32 v10, v10, v11\nv_add_u32 v10, s40, v10")
    for cg in range(2):
        for tg in range(2):
            for b in range(4):
                a = 32*cg + 16*tg + 4*b
                p.ds(f"ds_write_b128 v10, a[{a}:{a+3}] offset:{tg*32*272 + cg*128 + b*32}", "red")
    p.wait(ds="red")
    p("s_barrier")

def reduce_read(p, base, wavestride, ps, dst):
    T = dst + 8
    for w in range(4):
        for hb in range(2):
            r = dst + 4*hb if w == 0 else T + 8*(w-1) + 4*hb
            off = base + w*wavestride + ps*32*272 + hb*16
            reg = (12, 13, 11)[off // 65536]
            p.ds(f"ds_read_b128 v[{r}:{r+3}], v{reg} offset:{off % 65536}", f"rr{ps}")

def reduce_sum(p, ps, dst):
    T = dst + 8
    p.wait(ds=f"rr{ps}")
    for i in range(0, 8, 2):
        p(f"v_pk_add_f32 v[{dst+i}:{dst+i+1}], v[{dst+i}:{dst+i+1}], v[{T+i}:{T+i+1}]")
        p(f"v_pk_add_f32 v[{T+8+i}:{T+8+i+1}], v[{T+8+i}:{T+8+i+1}], v[{T+16+i}:{T+16+i+1}]")
    for i in range(0, 8, 2):
        p(f"v_pk_add_f32 v[{dst+i}:{dst+i+1}], v[{dst+i}:{dst+i+1}], v[{T+8+i}:{T+8+i+1}]")

def add_residual(p, dst, res, tmp):
    for i in range(4): p(f"v_lshlrev_b32 v{tmp+2*i}, 16, v{res+i}\nv_and_b32 v{tmp+2*i+1}, 0xffff0000, v{res+i}")
    for i in range(0, 8, 2): p(f"v_pk_add_f32 v[{dst+i}:{dst+i+1}], v[{dst+i}:{dst+i+1}], v[{tmp+i}:{tmp+i+1}]")

def hf_addr(p, dst, tmp):
    p(f"v_bfe_u32 v{dst}, v0, 1, 2\nv_lshlrev_b32 v{dst}, 10, v{dst}\nv_and_b32 v{tmp}, 1, v0\nv_lshlrev_b32 v{tmp}, 9, v{tmp}\nv_add_u32 v{dst}, v{dst}, v{tmp}")
    p(f"v_lshrrev_b32 v{tmp}, 3, v0\nv_lshlrev_b32 v{tmp}, 4, v{tmp}\nv_add_u32 v{dst}, v{dst}, v{tmp}")

def red_addr(p):
    p("v_lshrrev_b32 v12, 3, v0\nv_mul_u32_u24 v12, 272, v12\nv_and_b32 v13, 7, v0\nv_lshlrev_b32 v13, 5, v13\nv_add_u32 v12, v12, v13\nv_add_u32 v13, 0x10000, v12\nv_add_u32 v11, 0x20000, v12")

class P3W:
    vG0, vG1, vU0, vU1 = 240, 241, 242, 243
    R_G, R_U = 12, 16
    @staticmethod
    def setup(p):
        v = P3W
        p(f"v_lshrrev_b32 v{v.vG0}, 3, v1\nv_mul_u32_u24 v{v.vG0}, 3584, v{v.vG0}")
        p(f"v_bfe_u32 v{v.vU1}, v1, 4, 1\nv_lshlrev_b32 v{v.vU1}, 2, v{v.vU1}\nv_xor_b32 v{v.vU1}, v{v.vU1}, v1\nv_and_b32 v{v.vU1}, 7, v{v.vU1}\nv_lshlrev_b32 v{v.vU1}, 4, v{v.vU1}")
        p(f"v_xor_b32 v{v.vU0}, 32, v{v.vU1}\nv_add_u32 v{v.vU0}, v{v.vU0}, v{v.vG0}\nv_add_u32 v{v.vG0}, v{v.vG0}, v{v.vU1}")
        p(f"v_add_u32 v{v.vG1}, {8*3584-1024}, v{v.vG0}\nv_add_u32 v{v.vU1}, {8*3584-1024}, v{v.vU0}")
        srd(p, v.R_G, P_WG, 512*1792*2)
        srd(p, v.R_U, P_WU, 512*1792*2, shift=2048)
        p(f"s_mul_i32 s44, s{S_WAVE}, {16*3584}\ns_lshl_b32 s45, s29, 8\ns_add_u32 s44, s44, s45\ns_lshl_b32 s45, s{S_WAVE}, 12")
    @staticmethod
    def loads(p, s):
        v = P3W
        line, c = divmod(s, 8)
        def f0():
            p(f"s_add_u32 s46, s44, {c*64*3584 + line*128}\ns_add_u32 m0, s45, {pos(s)}")
            p.vm(f"buffer_load_dwordx4 v{v.vG0}, s[{v.R_G}:{v.R_G+3}], s46 offen lds", f"s{s}")
        def f1(): p.vm(f"buffer_load_dwordx4 v{v.vG1}, s[{v.R_G}:{v.R_G+3}], s46 offen offset:1024 lds", f"s{s}")
        def f2(): p.vm(f"buffer_load_dwordx4 v{v.vU0}, s[{v.R_U}:{v.R_U+3}], s46 offen offset:2048 lds", f"s{s}")
        def f3(): p.vm(f"buffer_load_dwordx4 v{v.vU1}, s[{v.R_U}:{v.R_U+3}], s46 offen offset:3072 lds", f"s{s}")
        return [f0, f1, f2, f3]

P3_PRE = 8

HKEEP = 180
L_OF = 65536
def p2(p):
    vX, vT, vB = 4, 6, 7
    WA, BR, ACC = 192, 224, 16
    p(f"s_lshr_b32 s31, s26, 1")
    p(f"s_lshr_b32 s32, s{S_WAVE}, 1\ns_and_b32 s33, s{S_WAVE}, 1")
    tr_addr_swz128(p, vT, 8, 10)
    p(f"s_lshl_b32 s34, s33, 6\nv_xor_b32 v{vT}, s34, v{vT}")
    p(f"s_lshl_b32 s34, s32, 15\ns_add_u32 s34, s34, {L_OF}\nv_add_u32 v{vB}, s34, v{vX}")
    XR = 48
    p("v_and_b32 v9, 31, v1\nv_lshlrev_b32 v9, 10, v9\nv_lshrrev_b32 v10, 5, v1\nv_lshlrev_b32 v10, 3, v10\nv_add_u32 v9, v9, v10")
    p("s_lshl_b32 s34, s26, 16\ns_lshl_b32 s35, s32, 15\ns_add_u32 s34, s34, s35\ns_lshl_b32 s35, s27, 7\ns_add_u32 s34, s34, s35\ns_lshl_b32 s35, s33, 6\ns_add_u32 s34, s34, s35")
    srd(p, 8, P_X, 2048*512*2)
    for b_ in range(4): p.vm(f"buffer_load_dwordx2 v[{XR+2*b_}:{XR+2*b_+1}], v9, s[8:11], s34 offen offset:{16*b_}", "xr")
    p(f"s_lshl_b32 s35, s26, 16\ns_lshl_b32 s36, s{S_WAVE}, 11\ns_add_u32 s35, s35, s36\ns_add_u32 s35, s35, {WS_OF:#x}\ns_add_u32 s36, s36, {L_OF}")
    p.wait(vm="wo")
    if LINES: wait_go(p, 0, 31, lines=16)
    else: wait_go(p, 1, 31)
    stamp(p, "S2b passed")
    for c in range(4):
        for tg in range(2):
            p(f"s_add_u32 s37, s35, {tg*32768 + c*8192}\ns_add_u32 m0, s36, {tg*32768 + c*8192}")
            p.vm(f"buffer_load_dwordx4 v{vX}, s[{R_WS}:{R_WS+3}], s37 offen sc1 lds", f"o{c}")
            p.vm(f"buffer_load_dwordx4 v{vX}, s[{R_WS}:{R_WS+3}], s37 offen offset:1024 sc1 lds", f"o{c}")
    uid = p.newlabel("t")
    def rd(k):
        if k % 8 == 0:
            p.wait(vm=f"o{k//8}"); p("s_barrier")
        a_ = WA + 4*(k % 6); bb = BR + 4*(k % 4)
        p.ds(f"ds_read_b64_tr_b16 v[{a_}:{a_+1}], v{vT} offset:{L_WO + k*2048}", f"{uid}{k}")
        p.ds(f"ds_read_b64_tr_b16 v[{a_+2}:{a_+3}], v{vT} offset:{L_WO + k*2048 + 1024}", f"{uid}{k}")
        p.ds(f"ds_read_b128 v[{bb}:{bb+3}], v{vB} offset:{k*1024}", f"{uid}{k}")
    L = 3
    for k in range(L): rd(k)
    for k in range(32):
        p.wait(ds=f"{uid}{k}")
        a_ = WA + 4*(k % 6); bb = BR + 4*(k % 4)
        p(f"v_mfma_f32_32x32x16_bf16 v[{ACC}:{ACC+15}], v[{a_}:{a_+3}], v[{bb}:{bb+3}], {'0' if k == 0 else f'v[{ACC}:{ACC+15}]'}")
        if k + L < 32: rd(k + L)
    stamp(p, "p2 main")
    p("s_barrier")
    p(f"s_lshl_b32 s34, s26, 1\ns_add_u32 s34, s34, s32")
    p(f"s_lshl_b32 s35, s34, 5\ns_lshl_b32 s36, s27, 2\ns_add_u32 s35, s35, s36\ns_lshl_b32 s36, s33, 1\ns_add_u32 s35, s35, s36\ns_lshl_b32 s35, s35, 10\ns_add_u32 s35, s35, {WS_HF:#x}")
    p(f"s_lshl_b32 s36, s34, 4\ns_lshl_b32 s37, s27, 1\ns_add_u32 s36, s36, s37\ns_add_u32 s36, s36, s33\ns_lshl_b32 s36, s36, 8\ns_add_u32 s36, s36, {WS_ST:#x}")
    p.wait(vm="xr")
    T = 64
    for i in range(8): p(f"v_lshlrev_b32 v{T+2*i}, 16, v{XR+i}\nv_and_b32 v{T+2*i+1}, 0xffff0000, v{XR+i}")
    for i in range(0, 16, 2): p(f"v_pk_add_f32 v[{ACC+i}:{ACC+i+1}], v[{ACC+i}:{ACC+i+1}], v[{T+i}:{T+i+1}]")
    for i in range(8): p(f"v_cvt_pk_bf16_f32 v{HKEEP+i}, v{ACC+2*i}, v{ACC+2*i+1}")
    for f in range(2):
        p.vm(f"buffer_store_dwordx4 v[{HKEEP+4*f}:{HKEEP+4*f+3}], v{vX}, s[{R_WS}:{R_WS+3}], s35 offen offset:{f*1024} sc1", "hst")
    for i in range(8): p(f"v_lshlrev_b32 v{T+2*i}, 16, v{HKEEP+i}\nv_and_b32 v{T+2*i+1}, 0xffff0000, v{HKEEP+i}")
    for i in range(4): p(f"v_pk_add_f32 v[{T+16+2*i}:{T+17+2*i}], v[{T+4*i}:{T+4*i+1}], v[{T+4*i+2}:{T+4*i+3}]")
    p(f"v_pk_add_f32 v[{T+16}:{T+17}], v[{T+16}:{T+17}], v[{T+18}:{T+19}]\nv_pk_add_f32 v[{T+20}:{T+21}], v[{T+20}:{T+21}], v[{T+22}:{T+23}]")
    p(f"v_pk_add_f32 v[{T+16}:{T+17}], v[{T+16}:{T+17}], v[{T+20}:{T+21}]\nv_add_f32 v{T+24}, v{T+16}, v{T+17}")
    p(f"v_mov_b32 v{T+25}, v{T+24}\nv_permlane32_swap_b32 v{T+24}, v{T+25}\nv_add_f32 v{T+24}, v{T+24}, v{T+25}")
    p(f"v_mul_f32 v{T+24}, 0x3d000000, v{T+24}\nv_sub_f32 v{T+26}, 0, v{T+24}")
    for i in range(0, 16, 2): p(f"v_pk_add_f32 v[{T+i}:{T+i+1}], v[{T+i}:{T+i+1}], v[{T+26}:{T+27}] op_sel_hi:[1,0]")
    p(f"v_pk_mul_f32 v[{T+16}:{T+17}], v[{T}:{T+1}], v[{T}:{T+1}]\nv_pk_mul_f32 v[{T+18}:{T+19}], v[{T+2}:{T+3}], v[{T+2}:{T+3}]")
    for i in range(4, 16, 4):
        p(f"v_pk_fma_f32 v[{T+16}:{T+17}], v[{T+i}:{T+i+1}], v[{T+i}:{T+i+1}], v[{T+16}:{T+17}]\nv_pk_fma_f32 v[{T+18}:{T+19}], v[{T+i+2}:{T+i+3}], v[{T+i+2}:{T+i+3}], v[{T+18}:{T+19}]")
    p(f"v_pk_add_f32 v[{T+16}:{T+17}], v[{T+16}:{T+17}], v[{T+18}:{T+19}]\nv_add_f32 v{T+25}, v{T+16}, v{T+17}")
    p(f"v_mov_b32 v{T+26}, v{T+25}\nv_permlane32_swap_b32 v{T+25}, v{T+26}\nv_add_f32 v{T+25}, v{T+25}, v{T+26}")
    p("v_lshlrev_b32 v10, 3, v1\ns_mov_b32 exec_hi, 0")
    p.vm(f"buffer_store_dwordx2 v[{T+24}:{T+25}], v10, s[{R_WS}:{R_WS+3}], s36 offen sc1", "hst")
    p("s_mov_b64 exec, -1")
    p.wait(vm="hst")
    if LINES:
        p("s_and_b32 s35, s26, 1\ns_lshl_b32 s35, s35, 3\ns_add_u32 s35, s35, s27")
        arrive_line(p, 1, 31, 35)
    else: arrive(p, 2, 31, 16)
    stamp(p, "p2 h flag")
    E = p.newlabel("EP")
    p(f"s_or_b32 s35, s2, s{S_WAVE}\ns_cmp_lg_u32 s35, 3\ns_cbranch_scc1 {E}")
    p(f"s_cmp_lg_u32 s2, 0\ns_cbranch_scc1 {E}")
    p(f"s_mov_b32 s36, {WS_EP:#x}\ns_load_dword s35, s[{P_WS}:{P_WS+1}], s36\ns_waitcnt lgkmcnt(0)\ns_add_u32 s35, s35, 1\nv_mov_b32 v2, s35\nv_mov_b32 v3, 0")
    p(f"s_mov_b64 exec, 1\nbuffer_store_dword v2, v3, s[{R_WS}:{R_WS+3}], s36 offen sc1\ns_mov_b64 exec, -1")
    p.label(E)

def p3(p):
    END = p.newlabel("P3END")
    p(f"s_cmp_ge_u32 s29, 14\ns_cbranch_scc1 {END}")
    v = P3W
    vX = 4
    WF, ACC, T = 192, 16, 224
    vL = [5, 6, 7, 8]; vC = [9, 10, 11, 12]
    p(f"s_lshl_b32 s31, s28, 2\ns_add_u32 s31, s31, s{S_WAVE}")
    a0 = vL[0]
    p(f"v_bfe_u32 v{a0}, v1, 4, 1\nv_lshlrev_b32 v13, 11, v{a0}")
    p(f"v_bfe_u32 v14, v1, 3, 1\nv_lshlrev_b32 v14, 1, v14\nv_add_u32 v14, v14, v{a0}\nv_lshlrev_b32 v14, 5, v14\nv_add_u32 v13, v13, v14")
    p(f"v_lshrrev_b32 v14, 5, v1\nv_lshlrev_b32 v14, 2, v14\nv_bfe_u32 v15, v1, 2, 2\nv_add_u32 v14, v14, v15\nv_lshlrev_b32 v14, 7, v14\nv_add_u32 v13, v13, v14")
    p(f"v_and_b32 v14, 3, v1\nv_lshlrev_b32 v14, 3, v14\nv_add_u32 v{a0}, v13, v14")
    for u in range(1, 4): p(f"v_xor_b32 v{vL[u]}, {u*32}, v{a0}")
    p(f"s_lshl_b32 s33, s31, 12\ns_add_u32 s33, s33, {WS_ST:#x}")
    p("v_and_b32 v15, 31, v1\nv_lshlrev_b32 v15, 3, v15\nv_lshrrev_b32 v14, 5, v1\nv_lshlrev_b32 v14, 11, v14\nv_add_u32 v15, v15, v14")
    p(f"s_lshl_b32 s34, s31, 15\ns_add_u32 s34, s34, {WS_HF:#x}")
    p(f"s_mul_i32 s36, s31, {112*1024}\ns_lshl_b32 s37, s29, 13\ns_add_u32 s36, s36, s37\ns_add_u32 s36, s36, {WS_HH:#x}")
    def bulk3():
        paced(p, [f for s_ in range(2, P3_PRE) for f in P3W.loads(p, s_)])
    if LINES: wait_go(p, 1, 28, arr2=(F6, 29, 16), bulk=bulk3, lines=16)
    else: wait_go(p, 2, 28, arr2=(F6, 29, 16), bulk=bulk3)
    stamp(p, "S3 passed")
    def hload(ks):
        if ks % 4 == 0: p(f"s_add_u32 s35, s34, {ks*1024}")
        p.vm(f"buffer_load_dwordx4 a[{4*ks}:{4*ks+3}], v{vX}, s[{R_WS}:{R_WS+3}], s35 offen offset:{(ks%4)*1024} sc1", f"h{ks}")
    LEAD = 8
    for ks in range(4): hload(ks)
    ST = 96
    for i in range(8): p.vm(f"buffer_load_dwordx2 v[{ST+2*i}:{ST+2*i+1}], v15, s[{R_WS}:{R_WS+3}], s33 offen offset:{i*256} sc1", "st")
    CSR = 128
    p("v_bfe_u32 v16, v1, 4, 2\nv_lshrrev_b32 v17, 1, v16\nv_lshlrev_b32 v17, 2, v17\nv_and_b32 v16, 1, v16\nv_add_u32 v16, v16, v17\nv_mul_u32_u24 v16, 7168, v16\nv_and_b32 v17, 15, v1\nv_lshlrev_b32 v17, 4, v17\nv_add_u32 v16, v16, v17")
    p(f"s_lshl_b32 s32, s29, 9\ns_add_u32 s32, s32, {WS_CS:#x}\ns_add_u32 s37, s32, 14336")
    for l_ in range(2):
        for qq in range(2):
            r = CSR + 8*l_ + 4*qq
            p.vm(f"buffer_load_dwordx4 v[{r}:{r+3}], v16, s[{R_WS}:{R_WS+3}], s{37 if qq else 32} offen offset:{l_*256} sc1", "cs")
    for ks in range(4, LEAD): hload(ks)
    AUG, BA, CGR = 160, 168, 176
    MEAN, RSTD, CG = T + 8, T + 9, T + 10
    prep = []; q_ = prep.append
    def Q(txt):
        for x in txt.split("\n"): q_(x)
    Q("v_cmp_gt_u32 vcc, 32, v1")
    prep2 = []
    for l_ in range(2):
        if l_ == 1: q_ = prep2.append
        for u in range(4):
            c = CSR + 8*l_ + u; t = CSR + 8*l_ + 4 + u; fr = 4*l_ + u
            Q(f"v_add_f32 v{c}, v{c}, v{t}")
        for u in range(4): Q(f"v_mov_b32 v{CSR+8*l_+4+u}, v{CSR+8*l_+u}")
        for u in range(4): Q(f"v_permlane32_swap_b32 v{CSR+8*l_+u}, v{CSR+8*l_+4+u}")
        for u in range(4): Q(f"v_add_f32 v{CSR+8*l_+u}, v{CSR+8*l_+u}, v{CSR+8*l_+4+u}")
        for u in range(4): Q(f"v_cvt_pk_bf16_f32 v{CSR+8*l_+4+u}, v{CSR+8*l_+u}, v{CSR+8*l_+u}")
        for u in range(4): Q(f"v_and_b32 v{CSR+8*l_+4+u}, 0xffff0000, v{CSR+8*l_+4+u}")
        for u in range(4): Q(f"v_sub_f32 v{CSR+8*l_+4+u}, v{CSR+8*l_+u}, v{CSR+8*l_+4+u}")
        for u in range(4): Q(f"v_cvt_pk_bf16_f32 v{CSR+8*l_+4+u}, v{CSR+8*l_+u}, v{CSR+8*l_+4+u}")
        for u in range(4): Q(f"v_cndmask_b32 v{AUG+4*l_+u}, 0, v{CSR+8*l_+4+u}, vcc")
    q_ = prep.append
    Q(f"v_add_f32 v{MEAN}, v{ST}, v{ST+2}")
    for i in range(2, 8): Q(f"v_add_f32 v{MEAN}, v{MEAN}, v{ST+2*i}")
    Q(f"v_mov_b32 v{CG}, v{MEAN}\nv_nop\nv_permlane32_swap_b32 v{MEAN}, v{CG}\nv_add_f32 v{MEAN}, v{MEAN}, v{CG}\nv_mul_f32 v{MEAN}, 0x3d800000, v{MEAN}")
    for i in range(8): Q(f"v_sub_f32 v{ST+2*i}, v{ST+2*i}, v{MEAN}")
    Q(f"v_mul_f32 v{RSTD}, v{ST}, v{ST}")
    for i in range(1, 8): Q(f"v_fmac_f32 v{RSTD}, v{ST+2*i}, v{ST+2*i}")
    Q(f"v_mul_f32 v{RSTD}, 0x42000000, v{RSTD}")
    for i in range(8): Q(f"v_add_f32 v{RSTD}, v{RSTD}, v{ST+2*i+1}")
    Q(f"v_mov_b32 v{CG}, v{RSTD}\nv_nop\nv_permlane32_swap_b32 v{RSTD}, v{CG}\nv_add_f32 v{RSTD}, v{RSTD}, v{CG}")
    Q(f"v_mov_b32 v{CG}, 0x3727c5ac\nv_fmac_f32 v{CG}, 0x3b000000, v{RSTD}\nv_rsq_f32 v{RSTD}, v{CG}")
    Q(f"v_mul_f32 v{CGR}, 0xbfb8aa3b, v{RSTD}")
    Q(f"v_sub_f32 v{ST}, 0, v{MEAN}\nv_cvt_pk_bf16_f32 v{ST+1}, v{ST}, v{ST}\nv_and_b32 v{ST+2}, 0xffff0000, v{ST+1}\nv_sub_f32 v{ST+2}, v{ST}, v{ST+2}\nv_cvt_pk_bf16_f32 v{ST+2}, v{ST+2}, v{ST+2}")
    Q(f"v_cndmask_b32 v{BA}, 0, v{ST+1}, vcc\nv_cndmask_b32 v{BA+1}, 0, v{ST+2}, vcc\nv_mov_b32 v{BA+2}, 0\nv_mov_b32 v{BA+3}, 0\nv_mov_b32 v174, 0\nv_mov_b32 v175, 0")
    def rs_store():
        RSK = p.newlabel("RS")
        p(f"s_cmp_lg_u32 s29, 0\ns_cbranch_scc1 {RSK}")
        p(f"s_lshl_b32 s37, s31, 7\ns_add_u32 s37, s37, {WS_RS:#x}\nv_lshlrev_b32 v13, 2, v1\ns_mov_b32 exec_hi, 0")
        p(f"buffer_store_dword v{RSTD}, v13, s[{R_WS}:{R_WS+3}], s37 offen sc1\ns_mov_b64 exec, -1")
        p.label(RSK)
    A1 = [ACC + 16*u for u in range(4)]; A2 = [ACC + 64, ACC + 80, ACC + 96, ACC]
    def aug(acc, fr, add=False):
        p(f"v_mov_b32 v172, v{AUG+fr}\nv_mov_b32 v173, v{AUG+fr}")
        p(f"v_mfma_f32_32x32x16_bf16 v[{acc}:{acc+15}], v[172:175], v[{BA}:{BA+3}], {f'v[{acc}:{acc+15}]' if add else '0'}")
    ET = T; outsel = [0]
    def glu_ops(acc, off):
        L = []
        o = 232 + 4*(outsel[0] & 1); outsel[0] += 1
        for half in range(2):
            js = range(4*half, 4*half + 4)
            for j in js: L.append(f"v_mul_f32 v{ET+j%4}, v{CGR}, v{acc+j}")
            for j in js: L.append(f"v_exp_f32 v{ET+j%4}, v{ET+j%4}")
            for j in js: L.append(f"v_add_f32 v{ET+j%4}, 1.0, v{ET+j%4}")
            for j in js: L.append(f"v_rcp_f32 v{ET+j%4}, v{ET+j%4}")
            for j in js: L.append(f"v_mul_f32 v{ET+j%4}, v{acc+8+j}, v{ET+j%4}")
            for jj in range(2): L.append(f"v_cvt_pk_bf16_f32 v{o+2*half+jj}, v{ET+2*jj}, v{ET+2*jj+1}")
        L.append(("store", f"s_add_u32 s41, s36, {off}", f"buffer_store_dwordx4 v[{o}:{o+3}], v{vX}, s[{R_WS}:{R_WS+3}], s41 offen sc1"))
        return L
    def emit(x):
        if isinstance(x, tuple): p(x[1]); p.vm(x[2], "hh")
        else: p(x)
    cur = {"slot": None}
    ready = set()
    def mkpre(s_):
        def pre():
            if s_ not in ready:
                p.wait(vm=f"s{s_}"); p("s_barrier"); ready.add(s_)
            if cur["slot"] != s_:
                base = pos(s_)
                for u in cur["us"]: p(f"v_add_u32 v{vC[u]}, {base}, v{vL[u]}")
                cur["slot"] = s_
        return pre
    def entries(line, us, accs):
        cur["us"] = us; cur["slot"] = None
        mf = []
        for ks in range(32):
            s_ = 8*line + ks//4
            for u in us:
                mf.append(dict(acc=f"v[{accs[u]}:{accs[u]+15}]", B=f"a[{4*ks}:{4*ks+3}]", areg=vC[u], off=((ks % 4)*4096, (ks % 4)*4096 + 1024), pre=mkpre(s_), ks=ks, slot=s_))
        return mf
    stamp(p, "p3 setup")
    mf = entries(0, [0, 1, 2, 3], A1)
    for u in range(4): mf[u]["C"] = "0"
    nxt = {"h": LEAD, "s": P3_PRE}
    def post1(m):
        def f():
            if m["first"] and nxt["h"] < 32:
                hload(nxt["h"]); nxt["h"] += 1
        return f
    slotq = []
    def want_slots(cur_slot, limit=99):
        while nxt["s"] < 16 and nxt["s"] - K3_NR + 2 <= cur_slot and limit > 0:
            slotq.extend(P3W.loads(p, nxt["s"])); nxt["s"] += 1; limit -= 1
    for i, m in enumerate(mf):
        if i % 4 == 0: m["vm"] = f"h{m['ks']}"
        def post(m=m, i=i):
            if i % 4 == 0 and nxt["h"] < 32: hload(nxt["h"]); nxt["h"] += 1
            if nxt["h"] >= 32 and i % 2 == 1:
                if not slotq and nxt["s"] < min(16, P3_PRE + P3_MID): want_slots(m["slot"], 1)
                if slotq: slotq.pop(0)()
            if i >= 36:
                for _ in range(1 + (i & 1)):
                    if prep: p(prep.pop(0))
        m["post"] = post
    stream(p, mf, WF, 8, 6)
    while prep: p(prep.pop(0))
    rs_store()
    for u in range(4): aug(A1[u], u, add=True)
    stamp(p, "p3 pass1")
    fill = list(prep2)
    for u in range(3): fill += glu_ops(A1[u], u*1024)
    mf = entries(1, [0, 1], A2)
    for u in range(2): mf[u]["C"] = "0"
    for i, m in enumerate(mf):
        def post(m=m, i=i):
            if not slotq: want_slots(m["slot"], 1)
            if slotq: slotq.pop(0)()
        m["post"] = post
    stream(p, mf, WF, 8, 6, fill=fill, emit=emit)
    assert nxt["s"] == 16 and not slotq and not fill
    for u in range(2): aug(A2[u], 4 + u, add=True)
    stamp(p, "p3 pass2a")
    aug(A2[2], 6)
    fill = glu_ops(A1[3], 3*1024) + glu_ops(A2[0], 4*1024)
    stream(p, entries(1, [2], A2), WF, 8, 6, fill=fill, emit=emit)
    stamp(p, "p3 pass2b")
    aug(A2[3], 7)
    fill = glu_ops(A2[1], 5*1024) + glu_ops(A2[2], 6*1024)
    stream(p, entries(1, [3], A2), WF, 8, 6, fill=fill, emit=emit)
    p("s_barrier")
    stamp(p, "p3 pass2c")
    return END, glu_ops(A2[3], 7*1024), emit

def p4_setup(p):
    vWo, vWo2 = 244, 245
    wsrc_swz128(p, vWo, 246)
    p(f"v_add_u32 v{vWo2}, {8192-1024}, v{vWo}")
    srd(p, 8, P_WD, 1792*512*2)
    p(f"s_mul_i32 s47, s{S_WAVE}, {28*16*1024}\ns_lshl_b32 s48, s27, 7\ns_add_u32 s47, s47, s48\ns_mul_i32 s48, s{S_WAVE}, {L_WD_W}")
NWD = L_WD_W // 2048
def wd_load(p, k):
    def f():
        p(f"s_add_u32 s49, s47, {16*k*1024}\ns_add_u32 m0, s48, {(k % NWD)*2048}")
        p.vm(f"buffer_load_dwordx4 v244, s[8:11], s49 offen lds", f"d{k}")
        p.vm(f"buffer_load_dwordx4 v245, s[8:11], s49 offen offset:1024 lds", f"d{k}")
    return f

P3_MID = 3
P4_PRE = 18
def p4(p):
    vX, vT0, vT1 = 4, 6, 7
    HB, WA = 64, 192
    RING = 8
    p(f"s_lshr_b32 s31, s26, 1")
    tr_addr_swz128(p, vT0, vT1, 10)
    p(f"v_add_u32 v{vT0}, s48, v{vT0}\nv_add_u32 v{vT1}, s48, v{vT1}")
    for i in range(64): p(f"v_accvgpr_write_b32 a{i}, 0")
    p(f"s_mul_i32 s33, s26, {2*112*1024}\ns_mul_i32 s34, s{S_WAVE}, {28*1024}\ns_add_u32 s33, s33, s34\ns_add_u32 s33, s33, {WS_HH:#x}\ns_add_u32 s34, s33, {112*1024}")
    def bulk4():
        paced(p, [wd_load(p, k) for k in range(P4_PRE)])
    if LINES: wait_go(p, 2, 31, bulk=bulk4, lines=14)
    else: wait_go(p, 3, 31, bulk=bulk4)
    stamp(p, "S4 passed")
    def hload(k):
        sl = k % RING
        def f0():
            if k % 4 == 0 and k: p("s_add_u32 s33, s33, 4096\ns_add_u32 s34, s34, 4096")
            p.vm(f"buffer_load_dwordx4 v[{HB+8*sl}:{HB+8*sl+3}], v{vX}, s[{R_WS}:{R_WS+3}], s33 offen offset:{(k%4)*1024} sc1", f"k{k}")
        def f1(): p.vm(f"buffer_load_dwordx4 v[{HB+8*sl+4}:{HB+8*sl+7}], v{vX}, s[{R_WS}:{R_WS+3}], s34 offen offset:{(k%4)*1024} sc1", f"k{k}")
        return [f0, f1]
    for k in range(RING - 1):
        for f in hload(k): f()
    p(f"s_lshr_b32 s36, s{S_WAVE}, 1\ns_lshl_b32 s35, s26, 1\ns_add_u32 s35, s35, s36\ns_lshl_b32 s35, s35, 7\ns_add_u32 s35, s35, {WS_RS:#x}\nv_and_b32 v9, 31, v1\nv_lshlrev_b32 v9, 2, v9")
    p.vm(f"buffer_load_dword v56, v9, s[{R_WS}:{R_WS+3}], s35 offen sc1", "rs")
    nd = [P4_PRE]
    mf = []
    for k in range(28):
        sl = k % RING
        for cg, vt in ((0, vT0), (1, vT1)):
            for tg in range(2):
                a_ = 32*cg + 16*tg; h = HB + 8*sl + 4*tg
                e = dict(acc=f"a[{a_}:{a_+15}]", B=f"v[{h}:{h+3}]", areg=vt, off=((k % NWD)*2048, (k % NWD)*2048 + 1024), vm=f"k{k}", share=(tg == 1))
                if cg == 0 and tg == 0: e["pre"] = (lambda k=k: p.wait(vm=f"d{k}"))
                def post(k=k, cg=cg, tg=tg):
                    n = k + RING - 1
                    if n < 28 and cg == 0: hload(n)[tg]()
                    if cg == 1 and tg == 0 and nd[0] < 28 and nd[0] - NWD < k - 1:
                        wd_load(p, nd[0])(); nd[0] += 1
                e["post"] = post
                mf.append(e)
    stream2(p, mf, WA, 6, 3)
    assert nd[0] == 28
    stamp(p, "p4 main")
    reduce_write(p, 0, L_WD_W)
    p(f"s_lshr_b32 s36, s{S_WAVE}, 1\ns_and_b32 s37, s{S_WAVE}, 1\ns_mul_i32 s38, s36, {32*272}\ns_lshl_b32 s39, s37, 7\ns_add_u32 s38, s38, s39")
    p("v_and_b32 v10, 31, v1\nv_mul_u32_u24 v10, 272, v10\nv_lshrrev_b32 v11, 5, v1\nv_lshlrev_b32 v11, 4, v11\nv_add_u32 v10, v10, v11\nv_add_u32 v10, s38, v10\nv_add_u32 v11, 0x10000, v10")
    D = 64
    for w in range(4):
        for b_ in range(4):
            off = w*L_WD_W + b_*32
            p.ds(f"ds_read_b128 v[{D+16*w+4*b_}:{D+16*w+4*b_+3}], v{10 if off < 65536 else 11} offset:{off % 65536}", f"rr{w}")
    p("v_and_b32 v9, 31, v1\nv_lshlrev_b32 v9, 10, v9\nv_lshrrev_b32 v12, 5, v1\nv_lshlrev_b32 v12, 4, v12\nv_add_u32 v9, v9, v12")
    p("s_lshl_b32 s32, s26, 16\ns_lshl_b32 s33, s36, 15\ns_add_u32 s32, s32, s33\ns_lshl_b32 s33, s27, 7\ns_add_u32 s32, s32, s33\ns_lshl_b32 s33, s37, 6\ns_add_u32 s32, s32, s33")
    srd(p, 12, P_OUT, 2048*512*2)
    T = 128
    for i in range(8): p(f"v_lshlrev_b32 v{T+2*i}, 16, v{HKEEP+i}\nv_and_b32 v{T+2*i+1}, 0xffff0000, v{HKEEP+i}")
    p.wait(vm="rs", ds="rr1")
    for i in range(0, 16, 2): p(f"v_pk_add_f32 v[{D+i}:{D+i+1}], v[{D+i}:{D+i+1}], v[{D+16+i}:{D+16+i+1}]")
    p.wait(ds="rr3")
    for i in range(0, 16, 2): p(f"v_pk_add_f32 v[{D+32+i}:{D+32+i+1}], v[{D+32+i}:{D+32+i+1}], v[{D+48+i}:{D+48+i+1}]")
    for i in range(0, 16, 2): p(f"v_pk_add_f32 v[{D+i}:{D+i+1}], v[{D+i}:{D+i+1}], v[{D+32+i}:{D+32+i+1}]")
    for i in range(0, 16, 2): p(f"v_pk_fma_f32 v[{D+i}:{D+i+1}], v[{D+i}:{D+i+1}], v[56:57], v[{T+i}:{T+i+1}] op_sel_hi:[1,0,1]")
    Q = 160
    for i in range(8): p(f"v_cvt_pk_bf16_f32 v{Q+i}, v{D+2*i}, v{D+2*i+1}")
    for m in range(2):
        p(f"v_permlane32_swap_b32 v{Q+4*m}, v{Q+4*m+2}\nv_permlane32_swap_b32 v{Q+4*m+1}, v{Q+4*m+3}")
    for m in range(2):
        p.vm(f"buffer_store_dwordx4 v[{Q+4*m}:{Q+4*m+3}], v9, s[12:15], s32 offen offset:{32*m}", "ost")

def mega():
    p = Prog()
    NSTAMP[0] = 0; STAMP_NAMES.clear()
    p("s_getpc_b64 s[62:63]")
    p("s_cmp_ge_u32 s2, 256\ns_cbranch_scc1 L_end")
    p("s_load_dwordx16 s[64:79], s[0:1], 0\ns_load_dwordx4 s[80:83], s[0:1], 64\ns_load_dwordx2 s[84:85], s[0:1], 80")
    p(f"v_and_b32 v1, 63, v0\nv_lshrrev_b32 v2, 6, v0\nv_readfirstlane_b32 s{S_WAVE}, v2")
    if STAMPS: p("v_mov_b32 v255, 0\ns_memrealtime s[96:97]\ns_waitcnt lgkmcnt(0)\nv_writelane_b32 v255, s96, 63")
    stamp(p, "entry")
    roles(p)
    p0(p)
    p1(p)
    p2(p)
    END, tail, emit = p3(p)
    for x in tail: emit(x)
    p.wait(vm="hh")
    if LINES: arrive_line(p, 2, 28, 29)
    else: arrive(p, 3, 28, 14)
    stamp(p, "p3 hh flag")
    qa = list(p.vmq)
    J = p.newlabel("J")
    p(f"s_branch {J}")
    p.label(END)
    p.label(J)
    p.vmq = []
    p4_setup(p)
    p4(p)
    if STAMPS:
        stamp(p, "p4 stores issued")
        p("s_waitcnt vmcnt(0)")
        stamp(p, "end")
        p("s_memrealtime s[96:97]\ns_waitcnt lgkmcnt(0)\nv_writelane_b32 v255, s96, 62")
        p(f"s_lshl_b32 s58, s2, 2\ns_add_u32 s58, s58, s{S_WAVE}\ns_lshl_b32 s58, s58, 8\ns_add_u32 s58, s58, {WS_DBG:#x}\nv_lshlrev_b32 v2, 2, v1")
        p(f"buffer_store_dword v255, v2, s[{R_WS}:{R_WS+3}], s58 offen")
        if DBGOUT:
            sel = ["S1 passed", "p1 pass A", "p1 kv atomics issued", "p1 q softmax", "S2 passed", "p1 o flag", "S2b passed", "p2 h flag", "S3 passed", "p3 pass1", "p3 pass2c", "S4 passed", "p4 main", "end"]
            p("s_mov_b32 s40, s82\ns_and_b32 s41, s83, 0xffff\ns_mov_b32 s42, 256\ns_mov_b32 s43, 0x20000")
            p("v_readlane_b32 s50, v255, 0")
            for j_, nm_ in enumerate(sel):
                i_ = STAMP_NAMES.index(nm_)
                p(f"v_readlane_b32 s51, v255, {i_}\ns_nop 3\ns_sub_u32 s51, s51, s50\nv_writelane_b32 v254, s51, {j_}")
            p("v_readlane_b32 s51, v255, 63\ns_nop 3\ns_not_b32 s51, s51\nv_writelane_b32 v254, s51, 14")
            p("v_readlane_b32 s51, v255, 62\ns_nop 3\nv_writelane_b32 v254, s51, 15")
            p("v_lshlrev_b32 v2, 2, v1\ns_mov_b64 exec, 0xffff\nbuffer_atomic_umax v254, v2, s[40:43], 0 offen\ns_mov_b64 exec, -1")
    p.label("L_end")
    p("s_endpgm")
    p.label("L_codeend")
    return p

def build():
    p = mega()
    t, d = kernel_text(NAME + "_kernel", p, 256, 128, sgpr=100)
    print(f"mega: {p.count()} instrs, {p.nops if hasattr(p,'nops') else 0} nop states", file=sys.stderr)
    txt = f"; @launch grid=(256,1,1) block=(256,1,1) lds={LDS_BYTES}\n" + '.amdgcn_target "amdgcn-amd-amdhsa--gfx950"\n' + t
    txt += '.section .rodata,"a"\n.p2align 6\n' + d
    return txt

if __name__ == "__main__":
    for a_ in list(sys.argv):
        if a_.startswith("--set="):
            k_, v_ = a_[6:].split("="); globals()[k_] = int(v_); sys.argv.remove(a_)
    if "--stamps" in sys.argv:
        STAMPS = True; sys.argv.remove("--stamps")
    out = sys.argv[1] if len(sys.argv) > 1 else "mega.s"
    txt = build()
    open(out, "w").write(txt)
    if STAMPS: open(out + ".names", "w").write("\n".join(STAMP_NAMES))
```

```python
import sys
from dsl import Prog, kernel_text

NAME = "sequential_preLN__linear_kernel_hedgehog__glu_gated_glu__prompt"
WS_XN   = 0x000000
WS_OF   = 0x200000
WS_KV   = 0x400000
WS_HF   = 0x500000
WS_ST   = 0x700000
WS_HH   = 0x800000
WS_CS   = 0xF00000
WS_RS   = 0xF10000
WS_FL   = 0xF20000
WS_EP   = 0xF30000
WS_F1   = 0xF80000
WS_CNT  = 0xF90000
WS_FL2  = 0xFB0000
WS_GO   = 0xFA0000
WS_DBG  = 0xF40000
WS_SIZE = 0x1000000
assert True
F1, F2, F3, F4, F5, F6 = (WS_FL + i*4096 for i in range(6))
LOG2E = 0x3fb8aa3b
STAMPS = False
TOUCH = True
LINES = 1
PADTO = 0
DBGOUT = 0
BULK0 = 1
CODEPF = 1
CODE_LINES_PER_WG = 10
CODE_BYTES = 40960
PACE0 = 40
DELAY0 = 0
PACE = 40
SLEEP = 2
NSTAMP = [0]
SPIN = 1 << 18

S_WAVE, S_X, S_I, S_TAG = 20, 21, 22, 60
P_X, P_WQKV, P_WPHI, P_WO, P_WG, P_WU, P_WD, P_OUT, P_WS = 64, 66, 68, 70, 74, 76, 78, 80, 84
R_WS = 4

def srd(p, d, ptr, size, shift=0):
    if shift:
        p(f"s_sub_u32 s{d}, s{ptr}, {shift}\ns_subb_u32 s{d+1}, s{ptr+1}, 0\ns_and_b32 s{d+1}, s{d+1}, 0xffff")
    else:
        p(f"s_mov_b32 s{d}, s{ptr}\ns_and_b32 s{d+1}, s{ptr+1}, 0xffff")
    p(f"s_mov_b32 s{d+2}, {size + shift:#x}\ns_mov_b32 s{d+3}, 0x20000")

def stamp(p, name):
    if not STAMPS: return
    i = NSTAMP[0]; NSTAMP[0] += 1
    STAMP_NAMES.append(name)
    p(f"s_memtime s[98:99]\ns_waitcnt lgkmcnt(0)\nv_writelane_b32 v255, s98, {i}")
STAMP_NAMES = []

def flag_store(p, arr, sblock, sword, vt=(2, 3)):
    p(f"s_lshl_b32 s58, s{sblock}, 8\ns_lshl_b32 s59, s{sword}, 2\ns_add_u32 s58, s58, s59\ns_add_u32 s58, s58, {arr:#x}")
    p(f"v_mov_b32 v{vt[0]}, s{S_TAG}\nv_mov_b32 v{vt[1]}, 0")
    p("s_mov_b64 exec, 1")
    p.vm(f"buffer_store_dword v{vt[0]}, v{vt[1]}, s[{R_WS}:{R_WS+3}], s58 offen sc1", "flag")
    p("s_mov_b64 exec, -1")

def poll(p, arr, sblock, nwords=64, extra=None, vt=(2, 3), barrier=True, always=False, arr2=None):
    L = p.newlabel("PL"); D = p.newlabel("PD")
    if not always: p(f"s_cmp_lg_u32 s{S_WAVE}, 0\ns_cbranch_scc1 {D}")
    if arr2 is not None:
        p(f"s_lshl_b32 s55, s{arr2[1]}, 8\ns_add_u32 s55, s55, {arr2[0]:#x}\nv_and_b32 v18, 63, v0\nv_min_u32 v18, {arr2[2]-1}, v18\nv_lshlrev_b32 v18, 2, v18")
    p(f"s_lshl_b32 s58, s{sblock}, 8\ns_add_u32 s58, s58, {arr:#x}")
    p(f"v_and_b32 v{vt[0]}, 63, v0")
    if nwords < 64: p(f"v_min_u32 v{vt[0]}, {nwords-1}, v{vt[0]}")
    p(f"v_lshlrev_b32 v{vt[0]}, 2, v{vt[0]}")
    if extra is not None:
        pass
    p(f"s_mov_b32 s59, {SPIN}")
    p.label(L)
    p(f"buffer_load_dword v{vt[1]}, v{vt[0]}, s[{R_WS}:{R_WS+3}], s58 offen sc1")
    if extra is not None:
        p(f"v_mov_b32 v19, 0\nbuffer_load_dword v19, v19, s[{R_WS}:{R_WS+3}], s{extra} offen sc1")
    if arr2 is not None:
        p(f"buffer_load_dword v19, v18, s[{R_WS}:{R_WS+3}], s55 offen sc1")
    p("s_waitcnt vmcnt(0)")
    p(f"v_cmp_ne_u32 vcc, s{S_TAG}, v{vt[1]}")
    if extra is not None or arr2 is not None:
        p(f"v_cmp_ne_u32 s[56:57], s{S_TAG}, v19\ns_or_b64 vcc, vcc, s[56:57]")
    p(f"s_cbranch_vccz {D}")
    if SLEEP: p(f"s_sleep {SLEEP}")
    p(f"s_sub_u32 s59, s59, 1\ns_cmp_lg_u32 s59, 0\ns_cbranch_scc1 {L}")
    p.label(D)
    if barrier: p("s_barrier")

def paced(p, fns):
    for f in fns:
        n0 = len(p.vmq)
        f()
        if len(p.vmq) > PACE:
            p(f"s_waitcnt vmcnt({PACE})"); p.vmq = p.vmq[-PACE:]

def poll_with_bulk(p, bulk, *args, **kw):
    A = p.newlabel("BK"); B = p.newlabel("BK")
    q0 = list(p.vmq)
    p(f"s_cmp_eq_u32 s{S_WAVE}, 0\ns_cbranch_scc1 {A}")
    bulk()
    q1 = list(p.vmq)
    p.label(A)
    poll(p, *args, **kw)
    p(f"s_cmp_lg_u32 s{S_WAVE}, 0\ns_cbranch_scc1 {B}")
    p.vmq = list(q0)
    bulk()
    p.label(B)
    p.vmq = q1

def arrive(p, k, sblock, n):
    D = p.newlabel("AR")
    p("s_barrier")
    p(f"s_cmp_lg_u32 s{S_WAVE}, 0\ns_cbranch_scc1 {D}")
    p(f"s_lshl_b32 s58, s{sblock}, 9\ns_add_u32 s58, s58, {WS_CNT + k*128:#x}\nv_mov_b32 v2, 1\nv_mov_b32 v3, 0\ns_mov_b64 exec, 1")
    p(f"buffer_atomic_add v2, v3, s[{R_WS}:{R_WS+3}], s58 offen sc0 sc1\ns_waitcnt vmcnt(0)\nv_readfirstlane_b32 s59, v2\ns_mov_b64 exec, -1")
    p(f"s_cmp_lg_u32 s59, {n-1}\ns_cbranch_scc1 {D}")
    p(f"s_lshl_b32 s58, s{sblock}, 7\ns_add_u32 s58, s58, {WS_GO + k*2048:#x}\nv_mov_b32 v2, s{S_TAG}\ns_mov_b64 exec, 1")
    p(f"buffer_store_dword v2, v3, s[{R_WS}:{R_WS+3}], s58 offen sc1\ns_mov_b64 exec, -1")
    p.label(D)

def arrive_line(p, k, sblock, smember):
    D = p.newlabel("AR")
    p("s_barrier")
    p(f"s_cmp_lg_u32 s{S_WAVE}, 0\ns_cbranch_scc1 {D}")
    p(f"s_lshl_b32 s58, s{sblock}, 4\ns_add_u32 s58, s58, s{smember}\ns_lshl_b32 s58, s58, 7\ns_add_u32 s58, s58, {WS_FL2 + k*32768:#x}")
    p(f"v_mov_b32 v2, s{S_TAG}\nv_mov_b32 v3, 0\ns_mov_b64 exec, 1\nbuffer_store_dword v2, v3, s[{R_WS}:{R_WS+3}], s58 offen sc1\ns_mov_b64 exec, -1")
    p.label(D)

def wait_go(p, k, sblock, arr2=None, bulk=None, lines=0):
    A = p.newlabel("BK"); B = p.newlabel("BK"); L = p.newlabel("PL"); D = p.newlabel("PD")
    q0 = list(p.vmq)
    if BULK0 and bulk:
        bulk(); bulk = None
        q1 = list(p.vmq)
        p(f"s_cmp_lg_u32 s{S_WAVE}, 0\ns_cbranch_scc1 {D}")
    else:
        p(f"s_cmp_eq_u32 s{S_WAVE}, 0\ns_cbranch_scc1 {A}")
        if bulk:
            p("s_sleep 1")
            bulk()
        q1 = list(p.vmq)
        p(f"s_branch {D}")
    p.label(A)
    if lines:
        p(f"s_lshl_b32 s58, s{sblock}, 11\ns_add_u32 s58, s58, {WS_FL2 + k*32768:#x}\nv_min_u32 v2, {lines-1}, v1\nv_lshlrev_b32 v2, 7, v2\ns_mov_b32 s59, {SPIN}")
    else:
        p(f"s_lshl_b32 s58, s{sblock}, 7\ns_add_u32 s58, s58, {WS_GO + k*2048:#x}\nv_mov_b32 v2, 0\ns_mov_b32 s59, {SPIN}")
    if arr2 is not None:
        p(f"s_lshl_b32 s55, s{arr2[1]}, 8\ns_add_u32 s55, s55, {arr2[0]:#x}\nv_and_b32 v18, 63, v0\nv_min_u32 v18, {arr2[2]-1}, v18\nv_lshlrev_b32 v18, 2, v18")
    p.label(L)
    p(f"buffer_load_dword v3, v2, s[{R_WS}:{R_WS+3}], s58 offen sc1")
    if arr2 is not None: p(f"buffer_load_dword v19, v18, s[{R_WS}:{R_WS+3}], s55 offen sc1")
    p(f"s_waitcnt vmcnt(0)\nv_cmp_ne_u32 vcc, s{S_TAG}, v3")
    if arr2 is not None: p(f"v_cmp_ne_u32 s[56:57], s{S_TAG}, v19\ns_or_b64 vcc, vcc, s[56:57]")
    p(f"s_cbranch_vccz {D}")
    if SLEEP: p(f"s_sleep {SLEEP}")
    p(f"s_sub_u32 s59, s59, 1\ns_cmp_lg_u32 s59, 0\ns_cbranch_scc1 {L}")
    p.label(D)
    p("s_barrier")
    if bulk:
        p(f"s_cmp_lg_u32 s{S_WAVE}, 0\ns_cbranch_scc1 {B}")
        p.vmq = list(q0)
        bulk()
        p.label(B)
    p.vmq = q1

def wave_sum(p, regs, tmp):
    for ctl in ("quad_perm:[1,0,3,2]", "quad_perm:[2,3,0,1]", "row_half_mirror", "row_mirror"):
        for r in regs: p(f"v_add_f32_dpp v{r}, v{r}, v{r} {ctl} row_mask:0xf bank_mask:0xf")
    for sw in ("v_permlane16_swap_b32", "v_permlane32_swap_b32"):
        for r, t in zip(regs, tmp): p(f"v_mov_b32 v{t}, v{r}")
        for r, t in zip(regs, tmp): p(f"{sw} v{r}, v{t}")
        for r, t in zip(regs, tmp): p(f"v_add_f32 v{r}, v{r}, v{t}")

def tr_addr(p, dst, tmp, pitch, hrows):
    p(f"v_lshrrev_b32 v{dst}, 5, v1\nv_mul_u32_u24 v{dst}, {hrows}, v{dst}\nv_bfe_u32 v{tmp}, v1, 2, 2\nv_add_u32 v{dst}, v{dst}, v{tmp}\nv_mul_u32_u24 v{dst}, {pitch}, v{dst}")
    p(f"v_bfe_u32 v{tmp}, v1, 4, 1\nv_lshlrev_b32 v{tmp}, 5, v{tmp}\nv_add_u32 v{dst}, v{dst}, v{tmp}\nv_and_b32 v{tmp}, 3, v1\nv_lshlrev_b32 v{tmp}, 3, v{tmp}\nv_add_u32 v{dst}, v{dst}, v{tmp}")

def softmax_ops(blocks, sL, tmp):
    L = []; p = L.append
    n = len(blocks)
    M = [tmp + 4*i for i in range(n)]; T = [m + 1 for m in M]; S = [m + 2 for m in M]
    for (b, o), m in zip(blocks, M): p(f"v_max3_f32 v{m}, v{b}, v{b+1}, v{b+2}")
    for (b, o), m in zip(blocks, M): p(f"v_max3_f32 v{m}, v{m}, v{b+3}, v{b+4}")
    for (b, o), m in zip(blocks, M): p(f"v_max3_f32 v{m}, v{m}, v{b+5}, v{b+6}")
    for (b, o), m in zip(blocks, M): p(f"v_max_f32 v{m}, v{m}, v{b+7}")
    for m, t in zip(M, T): p(f"v_mov_b32 v{t}, v{m}")
    for m, t in zip(M, T): p(f"v_permlane32_swap_b32 v{m}, v{t}")
    for m, t in zip(M, T): p(f"v_max_f32 v{m}, v{m}, v{t}")
    for m in M: p(f"v_mul_f32 v{m}, s{sL}, v{m}")
    for (b, o), m in zip(blocks, M):
        for i in range(4):
            p(f"v_pk_fma_f32 v[{b+2*i}:{b+2*i+1}], v[{b+2*i}:{b+2*i+1}], s[{sL}:{sL+1}], v[{m}:{m+1}] op_sel_hi:[1,1,0] neg_lo:[0,0,1] neg_hi:[0,0,1]")
    for (b, o), m in zip(blocks, M):
        for i in range(8): p(f"v_exp_f32 v{b+i}, v{b+i}")
    for (b, o), s_ in zip(blocks, S): p(f"v_pk_add_f32 v[{s_}:{s_+1}], v[{b}:{b+1}], v[{b+2}:{b+3}]")
    for (b, o), m in zip(blocks, M): p(f"v_pk_add_f32 v[{m}:{m+1}], v[{b+4}:{b+5}], v[{b+6}:{b+7}]")
    for m, s_ in zip(M, S): p(f"v_pk_add_f32 v[{m}:{m+1}], v[{m}:{m+1}], v[{s_}:{s_+1}]")
    for m, t in zip(M, T): p(f"v_add_f32 v{m}, v{m}, v{t}")
    for m, t in zip(M, T): p(f"v_mov_b32 v{t}, v{m}")
    for m, t in zip(M, T): p(f"v_permlane32_swap_b32 v{m}, v{t}")
    for m, t in zip(M, T): p(f"v_add_f32 v{m}, v{m}, v{t}")
    for m in M: p(f"v_rcp_f32 v{m}, v{m}")
    for (b, o), m in zip(blocks, M):
        for i in range(4): p(f"v_pk_mul_f32 v[{b+2*i}:{b+2*i+1}], v[{b+2*i}:{b+2*i+1}], v[{m}:{m+1}] op_sel_hi:[1,0]")
    for (b, o), m in zip(blocks, M):
        for i in range(4): p(f"v_cvt_pk_bf16_f32 v{o+i}, v{b+2*i}, v{b+2*i+1}")
    return L

def stream(p, mf, ring, R, L, pend=None, fill=None, emit=None, fill_total=None, pend_every=1):
    pend = pend if pend is not None else []
    fill = fill if fill is not None else []
    emit = emit or p
    n = len(mf)
    uid = p.newlabel("t")
    def rd(i):
        m = mf[i]
        if m.get("pre"): m["pre"]()
        b = ring + 4*(i % R)
        p.ds(f"ds_read_b64_tr_b16 v[{b}:{b+1}], v{m['areg']} offset:{m['off'][0]}", f"{uid}_{i}")
        p.ds(f"ds_read_b64_tr_b16 v[{b+2}:{b+3}], v{m['areg']} offset:{m['off'][1]}", f"{uid}_{i}")
    for i in range(min(L, n)): rd(i)
    for i in range(n):
        m = mf[i]
        if m.get("before"): m["before"]()
        tags = [f"{uid}_{i}"] + ([f"{uid}_{i+1}"] if (i % 2 == 0 and i + 1 < n and i + 1 < i + L - 1) else [])
        p.wait(vm=m.get("vm"), ds=tags)
        b = ring + 4*(i % R)
        p(f"v_mfma_f32_32x32x16_bf16 {m['acc']}, v[{b}:{b+3}], {m['B']}, {m.get('C', m['acc'])}")
        if i + L < n: rd(i + L)
        if m.get("post"): m["post"]()
        if pend and i % pend_every == 0: pend.pop(0)()
        if fill:
            k = -(-len(fill) // max(n - i - 2, 1))
            for _ in range(min(k, len(fill))): emit(fill.pop(0))

def stream2(p, mf, ring, R, L, pend=None, pend_at=None):
    pend = pend if pend is not None else []
    uid = p.newlabel("t")
    frags = [i for i, m in enumerate(mf) if not m.get("share")]
    fidx = {}
    c = -1
    for i, m in enumerate(mf):
        if not m.get("share"): c += 1
        fidx[i] = c
    nf = len(frags)
    def rd(f):
        m = mf[frags[f]]
        if m.get("pre"): m["pre"]()
        b = ring + 4*(f % R)
        p.ds(f"ds_read_b64_tr_b16 v[{b}:{b+1}], v{m['areg']} offset:{m['off'][0]}", f"{uid}_{f}")
        p.ds(f"ds_read_b64_tr_b16 v[{b+2}:{b+3}], v{m['areg']} offset:{m['off'][1]}", f"{uid}_{f}")
    for f in range(min(L, nf)): rd(f)
    for i, m in enumerate(mf):
        f = fidx[i]
        p.wait(vm=m.get("vm"), ds=f"{uid}_{f}")
        b = ring + 4*(f % R)
        p(f"v_mfma_f32_32x32x16_bf16 {m['acc']}, v[{b}:{b+3}], {m['B']}, {m['acc']}")
        if not m.get("share") and f + L < nf: rd(f + L)
        if m.get("post"): m["post"]()

def interleave(p, ops, fns, every):
    fns = list(fns)
    for i, x in enumerate(ops):
        p(x)
        if fns and i % every == every - 1: fns.pop(0)()
    for f in fns: f()

def wsrc_swz128(p, dst, tmp):
    p(f"v_lshrrev_b32 v{dst}, 3, v1\nv_lshlrev_b32 v{dst}, 10, v{dst}")
    p(f"v_bfe_u32 v{tmp}, v1, 4, 1\nv_lshlrev_b32 v{tmp}, 2, v{tmp}\nv_xor_b32 v{tmp}, v{tmp}, v1\nv_and_b32 v{tmp}, 7, v{tmp}\nv_lshlrev_b32 v{tmp}, 4, v{tmp}")
    p(f"v_add_u32 v{dst}, v{dst}, v{tmp}")

def tr_addr_swz128(p, d0, d1, tmp):
    p(f"v_lshrrev_b32 v{d0}, 5, v1\nv_lshlrev_b32 v{d0}, 2, v{d0}\nv_bfe_u32 v{tmp}, v1, 2, 2\nv_add_u32 v{d0}, v{d0}, v{tmp}\nv_lshlrev_b32 v{d0}, 7, v{d0}")
    p(f"v_bfe_u32 v{tmp}, v1, 3, 1\nv_lshlrev_b32 v{tmp}, 6, v{tmp}\nv_add_u32 v{d0}, v{d0}, v{tmp}")
    p(f"v_bfe_u32 v{tmp}, v1, 4, 1\nv_lshlrev_b32 v{tmp}, 5, v{tmp}\nv_add_u32 v{d0}, v{d0}, v{tmp}")
    p(f"v_and_b32 v{tmp}, 3, v1\nv_lshlrev_b32 v{tmp}, 3, v{tmp}\nv_add_u32 v{d0}, v{d0}, v{tmp}")
    p(f"v_xor_b32 v{d1}, 64, v{d0}")

L_W1, L_WPHI, L_SCR, L_KVP = 0, 98304, 102400, 139264
W1BASE = {1: 0, 2: 32768, 0: 65536}
L_CS = 65536
L_WO, L_RED2 = 0, 65536
K3_NR = 10
def pos(s): return ((s + 8) % K3_NR)*16384
L_WD_W = 36864
LDS_BYTES = 160*1024

def roles(p):
    p(f"s_and_b32 s{S_X}, s2, 7\ns_lshr_b32 s{S_I}, s2, 3")
    p(f"s_lshr_b32 s24, s{S_X}, 1\ns_lshl_b32 s24, s24, 2\ns_lshr_b32 s23, s{S_I}, 3\ns_add_u32 s24, s24, s23")
    p(f"s_and_b32 s25, s{S_X}, 1\ns_lshl_b32 s25, s25, 3\ns_and_b32 s23, s{S_I}, 7\ns_add_u32 s25, s25, s23")
    p(f"s_lshl_b32 s26, s{S_X}, 2\ns_lshr_b32 s23, s{S_I}, 3\ns_add_u32 s26, s26, s23\ns_and_b32 s27, s{S_I}, 7")
    p(f"s_mul_i32 s23, s{S_I}, 37\ns_lshr_b32 s23, s23, 8")
    p(f"s_lshr_b32 s28, s{S_X}, 1\ns_lshl_b32 s28, s28, 2\ns_add_u32 s28, s28, s23")
    p(f"s_mul_i32 s23, s23, 7\ns_sub_u32 s29, s{S_I}, s23\ns_and_b32 s23, s{S_X}, 1\ns_mul_i32 s23, s23, 7\ns_add_u32 s29, s29, s23")
    p(f"s_cmp_ge_u32 s{S_I}, 28\ns_cselect_b32 s29, 14, s29")
    p("s_lshr_b32 s30, s2, 4")

def p0(p):
    vX, vW = 4, 5
    R_A, R_B, R_C = 8, 12, 16
    p(f"v_lshlrev_b32 v{vX}, 4, v1")
    DM = p.newlabel("DMAW"); JN = p.newlabel("P0J")
    p(f"s_cmp_ge_u32 s{S_WAVE}, 2\ns_cbranch_scc1 {DM}")
    p(f"s_lshl_b32 s31, s2, 3\ns_lshl_b32 s32, s{S_WAVE}, 2\ns_add_u32 s31, s31, s32\ns_lshl_b32 s32, s31, 10")
    p("v_and_b32 v8, 3, v1\nv_lshrrev_b32 v9, 2, v1\nv_lshlrev_b32 v10, 10, v8\nv_lshlrev_b32 v11, 4, v9\nv_add_u32 v10, v10, v11")
    p("s_waitcnt lgkmcnt(0)")
    srd(p, R_A, P_X, 2048*512*2)
    XI = 12
    srd(p, R_WS, P_WS, WS_SIZE)
    Z = p.newlabel("Z")
    p(f"s_and_b32 s35, s2, 15\ns_xor_b32 s37, s{S_WAVE}, 1\ns_or_b32 s35, s35, s37\ns_cmp_lg_u32 s35, 0\ns_cbranch_scc1 {Z}")
    p("v_mov_b32 v28, 0\nv_mov_b32 v29, 0\nv_mov_b32 v30, 0\nv_mov_b32 v31, 0")
    p(f"s_mul_i32 s35, s30, 4352\ns_add_u32 s35, s35, {WS_KV:#x}")
    for i in range(4): p(f"buffer_store_dwordx4 v[28:31], v{vX}, s[{R_WS}:{R_WS+3}], s35 offen offset:{i*1024} sc1")
    p("s_add_u32 s35, s35, 4096\ns_mov_b64 exec, 0xffff")
    p(f"buffer_store_dwordx4 v[28:31], v{vX}, s[{R_WS}:{R_WS+3}], s35 offen sc1")
    p(f"s_lshl_b32 s35, s30, 9\ns_add_u32 s35, s35, {WS_CNT:#x}\ns_mov_b32 exec_lo, -1")
    p(f"buffer_store_dwordx4 v[28:31], v{vX}, s[{R_WS}:{R_WS+3}], s35 offen sc1")
    p("s_mov_b64 exec, -1")
    p.label(Z)
    for i in range(4): p.vm(f"buffer_load_dwordx4 v[{XI+4*i}:{XI+4*i+3}], v10, s[{R_A}:{R_A+3}], s32 offen offset:{i*256}", "x")
    p(f"s_mov_b32 s59, {WS_EP:#x}\ns_load_dword s{S_TAG}, s[{P_WS}:{P_WS+1}], s59")
    p(f"v_lshlrev_b32 v9, 7, v9\nv_lshlrev_b32 v8, 4, v8\nv_add_u32 v8, v8, v9\ns_lshl_b32 s36, s{S_WAVE}, 6\ns_lshl_b32 s37, s2, 13\ns_add_u32 s36, s36, s37\ns_add_u32 s36, s36, {WS_XN:#x}")
    stamp(p, "p0 issue")
    p.wait(vm="x")
    stamp(p, "p0 x landed")
    B = 32
    for i in range(16): p(f"v_lshlrev_b32 v{B+2*i}, 16, v{XI+i}\nv_and_b32 v{B+2*i+1}, 0xffff0000, v{XI+i}")
    def tree(op_first, dst):
        for i in range(8): op_first(i)
        for w_ in (4, 2, 1):
            for i in range(w_): p(f"v_pk_add_f32 v[{64+2*i}:{65+2*i}], v[{64+2*i}:{65+2*i}], v[{64+2*(i+w_)}:{65+2*(i+w_)}]")
        p(f"v_add_f32 v{dst}, v64, v65")
    def row_reduce(r):
        p(f"v_add_f32_dpp v{r}, v{r}, v{r} row_ror:4 row_mask:0xf bank_mask:0xf\nv_add_f32_dpp v{r}, v{r}, v{r} row_ror:8 row_mask:0xf bank_mask:0xf")
        for sw in ("v_permlane16_swap_b32", "v_permlane32_swap_b32"):
            p(f"v_mov_b32 v{r+1}, v{r}\n{sw} v{r}, v{r+1}\nv_add_f32 v{r}, v{r}, v{r+1}")
    tree(lambda i: p(f"v_pk_add_f32 v[{64+2*i}:{65+2*i}], v[{B+4*i}:{B+4*i+1}], v[{B+4*i+2}:{B+4*i+3}]"), 80)
    row_reduce(80)
    p("v_mul_f32 v80, 0xbb000000, v80")
    for i in range(16): p(f"v_pk_add_f32 v[{B+2*i}:{B+2*i+1}], v[{B+2*i}:{B+2*i+1}], v[80:81] op_sel_hi:[1,0]")
    def sq(i):
        p(f"v_pk_mul_f32 v[{64+2*i}:{65+2*i}], v[{B+4*i}:{B+4*i+1}], v[{B+4*i}:{B+4*i+1}]")
    for i in range(8): sq(i)
    for i in range(8): p(f"v_pk_fma_f32 v[{64+2*i}:{65+2*i}], v[{B+4*i+2}:{B+4*i+3}], v[{B+4*i+2}:{B+4*i+3}], v[{64+2*i}:{65+2*i}]")
    tree(lambda i: None, 82)
    row_reduce(82)
    p("v_mov_b32 v84, 0x3727c5ac\nv_fmac_f32 v84, 0x3b000000, v82\nv_rsq_f32 v84, v84")
    for i in range(16): p(f"v_pk_mul_f32 v[{B+2*i}:{B+2*i+1}], v[{B+2*i}:{B+2*i+1}], v[84:85] op_sel_hi:[1,0]")
    for n in range(4):
        for i in range(4): p(f"v_cvt_pk_bf16_f32 v{XI+4*n+i}, v{B+8*n+2*i}, v{B+8*n+2*i+1}")
        if n == 2: p("s_add_u32 s36, s36, 4096")
        p.vm(f"buffer_store_dwordx4 v[{XI+4*n}:{XI+4*n+3}], v8, s[{R_WS}:{R_WS+3}], s36 offen offset:{(n%2)*2048} sc1", "xn")
    p("s_waitcnt vmcnt(0) lgkmcnt(0)"); p.vmq = []
    p(f"s_mul_i32 s{S_TAG}, s{S_TAG}, 0x9e3779b1\ns_add_u32 s{S_TAG}, s{S_TAG}, 1")
    p(f"s_lshl_b32 s58, s2, 1\ns_add_u32 s58, s58, s{S_WAVE}\ns_lshl_b32 s58, s58, 7\ns_add_u32 s58, s58, {WS_F1:#x}")
    p(f"v_mov_b32 v2, s{S_TAG}\nv_mov_b32 v3, 0\ns_mov_b64 exec, 1")
    p(f"buffer_store_dword v2, v3, s[{R_WS}:{R_WS+3}], s58 offen sc1\ns_mov_b64 exec, -1")
    stamp(p, "p0 flag")
    p(f"s_cmp_lg_u32 s{S_WAVE}, 0\ns_cbranch_scc1 {JN}")
    srd(p, R_C, P_WPHI, 32*16*16*2)
    p(f"s_lshl_b32 s35, s25, 10\ns_mov_b32 m0, {L_WPHI}")
    p(f"buffer_load_dwordx4 v{vX}, s[{R_C}:{R_C+3}], s35 offen lds")
    p(f"s_branch {JN}")
    p.label(DM)
    if CODEPF:
        CP = p.newlabel("CP")
        p(f"s_cmp_lg_u32 s{S_WAVE}, 3\ns_cbranch_scc1 {CP}")
        p(f"s_and_b32 s40, s62, 0xffffff80\ns_and_b32 s41, s63, 0xffff\ns_mov_b32 s42, L_codeend-{NAME}_kernel\ns_mov_b32 s43, 0x20000")
        p(f"s_mul_i32 s35, s{S_I}, {CODE_LINES_PER_WG}\nv_min_u32 v12, {CODE_LINES_PER_WG-1}, v1\nv_add_u32 v12, s35, v12\nv_lshlrev_b32 v12, 7, v12")
        p("buffer_load_dword v13, v12, s[40:43], 0 offen")
        p.label(CP)
    p("s_waitcnt lgkmcnt(0)")
    srd(p, R_B, P_WQKV, 512*1536*2)
    p(f"v_lshrrev_b32 v{vW}, 2, v1\nv_mul_u32_u24 v{vW}, 3072, v{vW}\nv_and_b32 v10, 3, v1\nv_lshlrev_b32 v10, 4, v10\nv_add_u32 v{vW}, v{vW}, v10")
    p(f"s_sub_u32 s32, s{S_WAVE}, 1\ns_lshl_b32 s33, s32, 10\ns_lshl_b32 s34, s25, 6\ns_add_u32 s33, s33, s34")
    p(f"s_sub_u32 s34, s{S_WAVE}, 2\ns_lshl_b32 s34, s34, 15")
    p("s_and_b32 s36, s24, 3\ns_lshl_b32 s36, s36, 1\ns_and_b32 s37, s25, 1\ns_add_u32 s36, s36, s37\ns_lshl_b32 s36, s36, 2")
    for ks in range(32):
        p(f"s_add_u32 s37, s36, {ks}\ns_and_b32 s37, s37, 31\ns_mul_i32 s38, s37, {16*3072}\ns_add_u32 s38, s38, s33\ns_lshl_b32 s39, s37, 10\ns_add_u32 m0, s39, s34")
        if ks >= PACE0: p(f"s_waitcnt vmcnt({PACE0-1})")
        p(f"buffer_load_dwordx4 v{vW}, s[{R_B}:{R_B+3}], s38 offen lds")
    p(f"s_mov_b32 s59, {WS_EP:#x}\ns_load_dword s{S_TAG}, s[{P_WS}:{P_WS+1}], s59")
    srd(p, R_WS, P_WS, WS_SIZE)
    p("s_waitcnt vmcnt(0) lgkmcnt(0)")
    p(f"s_mul_i32 s{S_TAG}, s{S_TAG}, 0x9e3779b1\ns_add_u32 s{S_TAG}, s{S_TAG}, 1")
    stamp(p, "p0 W1 landed")
    p.label(JN)
    p.vmq = []
    p("s_barrier")
    L = p.newlabel("PL"); D = p.newlabel("PD")
    p(f"s_cmp_lg_u32 s{S_WAVE}, 0\ns_cbranch_scc1 {D}")
    stamp(p, "p0 poll start")
    p(f"s_lshl_b32 s35, s24, 5\nv_add_u32 v2, s35, v1\ns_lshl_b32 s35, s25, 5\ns_add_u32 s35, s35, 1\nv_mov_b32 v3, s35\nv_cmp_gt_u32 vcc, 32, v1\nv_cndmask_b32 v2, v3, v2, vcc\nv_lshlrev_b32 v2, 7, v2")
    p(f"s_mov_b32 s58, {WS_F1:#x}\ns_mov_b32 s59, {SPIN}")
    p.label(L)
    p(f"buffer_load_dword v3, v2, s[{R_WS}:{R_WS+3}], s58 offen sc1\ns_waitcnt vmcnt(0)\nv_cmp_ne_u32 vcc, s{S_TAG}, v3\ns_cbranch_vccz {D}")
    if SLEEP: p(f"s_sleep {SLEEP}")
    p(f"s_sub_u32 s59, s59, 1\ns_cmp_lg_u32 s59, 0\ns_cbranch_scc1 {L}")
    p.label(D)
    p("s_barrier")
    stamp(p, "S1 passed")

def touch(p, n):
    if not TOUCH: return
    T0 = p.newlabel("TC"); T3 = p.newlabel("TC"); TW = p.newlabel("TC")
    p(f"s_cmp_eq_u32 s{S_WAVE}, 0\ns_cbranch_scc1 {TW}\ns_cmp_eq_u32 s{S_WAVE}, 3\ns_cbranch_scc1 {T3}")
    p(f"s_cmp_eq_u32 s{S_WAVE}, 2\ns_cselect_b32 s52, s{P_WU}, s{P_WG}\ns_cselect_b32 s53, s{P_WU+1}, s{P_WG+1}")
    srd(p, 48, 52, 512*1792*2)
    p(f"v_lshrrev_b32 v253, 4, v1\nv_mul_u32_u24 v253, 3584, v253\nv_and_b32 v254, 15, v1\nv_min_u32 v254, 13, v254\nv_lshlrev_b32 v254, 7, v254\nv_add_u32 v253, v253, v254")
    p(f"s_lshl_b32 s52, s{S_I}, 4\ns_add_u32 s52, s52, {4*n}\ns_mul_i32 s52, s52, 3584\ns_and_b32 s53, s{S_X}, 1\ns_mul_i32 s53, s53, 1792\ns_add_u32 s52, s52, s53")
    p(f"buffer_load_dword v250, v253, s[48:51], s52 offen")
    p(f"s_branch {T0}")
    p.label(T3)
    srd(p, 48, P_WD, 1792*512*2)
    p(f"s_mul_i32 s52, s2, 56\ns_add_u32 s52, s52, {14*n}\nv_min_u32 v253, 13, v1\nv_add_u32 v253, s52, v253\nv_lshlrev_b32 v253, 7, v253")
    p("buffer_load_dword v250, v253, s[48:51], 0 offen")
    p(f"s_branch {T0}")
    p.label(TW)
    p(f"v_mov_b32 v253, 0\ns_mov_b32 s52, {WS_EP:#x}\ns_mov_b64 exec, 1\nbuffer_load_dword v250, v253, s[{R_WS}:{R_WS+3}], s52 offen\ns_mov_b64 exec, -1")
    p.label(T0)
    p.vmq.append("tch")

def cs_loads(p):
    CSL = p.newlabel("CS")
    p(f"s_cmp_ge_u32 s2, 224\ns_cbranch_scc1 {CSL}")
    p(f"s_cmp_ge_u32 s2, 112\ns_cselect_b32 s35, 112, 0\ns_cselect_b32 s40, s{P_WU}, s{P_WG}\ns_cselect_b32 s41, s{P_WU+1}, s{P_WG+1}")
    p("s_sub_u32 s36, s2, s35")
    srd(p, 8, 40, 512*1792*2)
    p("s_lshr_b32 s37, s36, 2\ns_and_b32 s38, s36, 3")
    p(f"s_lshl_b32 s39, s38, 2\ns_add_u32 s39, s39, s{S_WAVE}\ns_mul_i32 s39, s39, {32*3584}\ns_lshl_b32 s40, s37, 7\ns_add_u32 s39, s39, s40")
    p("v_lshrrev_b32 v18, 3, v1\nv_mul_u32_u24 v18, 3584, v18\nv_bfe_u32 v19, v1, 4, 1\nv_lshlrev_b32 v19, 2, v19\nv_xor_b32 v19, v19, v1\nv_and_b32 v19, 7, v19\nv_lshlrev_b32 v19, 4, v19\nv_add_u32 v18, v18, v19")
    p(f"s_lshl_b32 s40, s{S_WAVE}, 12\ns_add_u32 s40, s40, {L_CS}")
    for n in range(4):
        p(f"s_add_u32 s41, s39, {n*8*3584}\ns_add_u32 m0, s40, {n*1024}")
        p(f"buffer_load_dwordx4 v18, s[8:11], s41 offen lds")
    p.label(CSL)

def cs_compute(p):
    CSL = p.newlabel("CS")
    p(f"s_cmp_ge_u32 s2, 224\ns_cbranch_scc1 {CSL}")
    p(f"s_lshl_b32 s40, s{S_WAVE}, 12\ns_add_u32 s40, s40, {L_CS}")
    tr_addr_swz128(p, 18, 19, 20)
    p("v_add_u32 v18, s40, v18\nv_add_u32 v19, s40, v19\nv_mov_b32 v20, 0x3f803f80\nv_mov_b32 v21, 0x3f803f80\nv_mov_b32 v22, 0x3f803f80\nv_mov_b32 v23, 0x3f803f80")
    for ks in range(2):
        for cg in range(2):
            r = 24 + 8*ks + 4*cg
            p(f"ds_read_b64_tr_b16 v[{r}:{r+1}], v{18+cg} offset:{ks*2048}")
            p(f"ds_read_b64_tr_b16 v[{r+2}:{r+3}], v{18+cg} offset:{ks*2048+1024}")
    p("s_waitcnt lgkmcnt(0)")
    for cg in range(2):
        for ks in range(2):
            r = 24 + 8*ks + 4*cg
            p(f"v_mfma_f32_32x32x16_bf16 v[{64+16*cg}:{79+16*cg}], v[20:23], v[{r}:{r+3}], {'0' if ks == 0 else f'v[{64+16*cg}:{79+16*cg}]'}")
    p(f"s_lshl_b32 s40, s{S_WAVE}, 8\ns_add_u32 s40, s40, {L_CS + 16384}\nv_lshlrev_b32 v18, 2, v1\nv_add_u32 v18, s40, v18")
    p("s_mov_b32 exec_hi, 0")
    p("ds_write_b32 v18, v64\nds_write_b32 v18, v80 offset:128")
    p("s_mov_b64 exec, -1\ns_waitcnt lgkmcnt(0)")
    p.label(CSL)

def cs_finish(p):
    CS2 = p.newlabel("CS")
    p(f"s_cmp_ge_u32 s2, 224\ns_cbranch_scc1 {CS2}\ns_cmp_lg_u32 s{S_WAVE}, 1\ns_cbranch_scc1 {CS2}")
    p(f"v_lshlrev_b32 v18, 2, v1\nv_add_u32 v18, {L_CS + 16384}, v18")
    for w in range(4): p(f"ds_read_b32 v{20+w}, v18 offset:{w*256}")
    p("s_waitcnt lgkmcnt(0)\nv_add_f32 v20, v20, v21\nv_add_f32 v22, v22, v23\nv_add_f32 v20, v20, v22")
    p("s_cmp_ge_u32 s2, 112\ns_cselect_b32 s36, 112, 0\ns_cselect_b32 s35, 1792, 0\ns_cselect_b32 s39, 8, 0\ns_sub_u32 s36, s2, s36")
    p("s_lshr_b32 s37, s36, 2\ns_and_b32 s38, s36, 3\ns_lshr_b32 s40, s39, 3\ns_lshl_b32 s41, s38, 1\ns_add_u32 s40, s40, s41\ns_mul_i32 s40, s40, 28\ns_add_u32 s40, s40, s37\ns_lshl_b32 s40, s40, 8")
    p(f"s_add_u32 s40, s40, {WS_CS:#x}\nv_and_b32 v18, 15, v1\nv_lshlrev_b32 v18, 4, v18\nv_lshrrev_b32 v19, 4, v1\nv_lshlrev_b32 v19, 2, v19\nv_add_u32 v18, v18, v19")
    p(f"buffer_store_dword v20, v18, s[{R_WS}:{R_WS+3}], s40 offen sc1")
    p("s_waitcnt vmcnt(0)")
    p("s_lshr_b32 s40, s37, 1\ns_and_b32 s37, s37, 1\ns_lshl_b32 s37, s37, 2\ns_add_u32 s37, s37, s38\ns_add_u32 s37, s37, s39")
    q0 = list(p.vmq)
    flag_store(p, F6, 40, 37, vt=(20, 21))
    p.vmq = q0
    p.label(CS2)

def p1(p):
    vX, vT, vT2, vP, vS = 4, 6, 7, 8, 9
    ACC, X, WF = 16, 64, 192
    R_A = 8
    p(f"s_lshl_b32 s31, s24, 2\ns_add_u32 s31, s31, s{S_WAVE}")
    p(f"s_lshl_b32 s32, s31, 15\ns_add_u32 s32, s32, {WS_XN:#x}\ns_add_u32 s33, s32, 4096")
    p("v_bfe_u32 v5, v1, 3, 2\nv_lshlrev_b32 v5, 13, v5\nv_lshrrev_b32 v10, 5, v1\nv_lshlrev_b32 v10, 7, v10\nv_add_u32 v5, v5, v10\nv_and_b32 v10, 7, v1\nv_lshlrev_b32 v10, 4, v10\nv_add_u32 v5, v5, v10")
    def xload(ks):
        p.vm(f"buffer_load_dwordx4 v[{X+4*ks}:{X+4*ks+3}], v5, s[{R_WS}:{R_WS+3}], s{32 + ks//16} offen offset:{(ks%16)*256} sc1", f"x{ks}")
    LEAD = 8
    for ks in range(LEAD): xload(ks)
    tr_addr(p, vT, 10, 64, 8)
    p(f"v_add_u32 v{vT2}, 0x10000, v{vT}")
    AK_, AV_, AQ_ = ACC + 16, ACC + 32, ACC
    def ent(ks, part, acc, first):
        off = (W1BASE[part] % 65536) + ks*1024
        return dict(acc=f"v[{acc}:{acc+15}]", B=f"v[{X+4*ks}:{X+4*ks+3}]", areg=(vT2 if part == 0 else vT), off=(off, off+256), C=("0" if first else f"v[{acc}:{acc+15}]"))
    mf = []
    for ks in range(32):
        e = ent(ks, 1, AK_, ks == 0); e["vm"] = f"x{ks}"; mf.append(e)
        mf.append(ent(ks, 2, AV_, ks == 0))
    stream(p, mf, WF, 8, 5, pend=[(lambda k=k: xload(k)) for k in range(LEAD, 32)], pend_every=2)
    stamp(p, "p1 pass A")
    srd(p, 12, P_WQKV, 512*1536*2)
    p(f"v_lshrrev_b32 v14, 2, v1\nv_mul_u32_u24 v14, 3072, v14\nv_and_b32 v10, 3, v1\nv_lshlrev_b32 v10, 4, v10\nv_add_u32 v14, v14, v10")
    p(f"s_mul_i32 s33, s{S_WAVE}, {8*16*3072}\ns_lshl_b32 s34, s25, 6\ns_add_u32 s33, s33, s34\ns_lshl_b32 s34, s{S_WAVE}, 13")
    for c in range(8):
        p(f"s_add_u32 s35, s33, {c*16*3072}\ns_add_u32 m0, s34, {W1BASE[0] + c*1024}")
        p.vm(f"buffer_load_dwordx4 v14, s[12:15], s35 offen lds", "wq")
    touch(p, 1)
    WP = 224
    p(f"v_lshrrev_b32 v{vP}, 5, v1\nv_lshlrev_b32 v{vP}, 2, v{vP}\nv_bfe_u32 v10, v1, 2, 2\nv_add_u32 v{vP}, v{vP}, v10\nv_lshlrev_b32 v{vP}, 5, v{vP}")
    p(f"v_and_b32 v10, 3, v1\nv_lshlrev_b32 v10, 3, v10\nv_add_u32 v{vP}, v{vP}, v10\nv_add_u32 v{vP}, {L_WPHI}, v{vP}")
    p(f"v_and_b32 v{vS}, 16, v1\nv_lshlrev_b32 v{vS}, 11, v{vS}\nv_lshlrev_b32 v10, 16, v{vS}\nv_or_b32 v{vS}, v{vS}, v10")
    for hd in range(2):
        p.ds(f"ds_read_b64_tr_b16 v[{WP+4*hd}:{WP+4*hd+1}], v{vP} offset:{512*hd}", "wp")
        p.ds(f"ds_read_b64_tr_b16 v[{WP+4*hd+2}:{WP+4*hd+3}], v{vP} offset:{512*hd+256}", "wp")
    vA, vR = 10, 11
    p(f"s_mul_i32 s35, s{S_WAVE}, 9216\ns_add_u32 s35, s35, {L_SCR}")
    p(f"v_and_b32 v{vA}, 31, v1\nv_mul_u32_u24 v{vA}, 72, v{vA}\nv_lshrrev_b32 v12, 5, v1\nv_lshlrev_b32 v12, 3, v12\nv_add_u32 v{vA}, v{vA}, v12\nv_add_u32 v{vA}, s35, v{vA}")
    tr_addr(p, vR, 12, 72, 8)
    p(f"v_add_u32 v{vR}, s35, v{vR}")
    KB, VB = 232, 240
    for i in range(8): p(f"v_cvt_pk_bf16_f32 v{KB+i}, v{AK_+2*i}, v{AK_+2*i+1}")
    p.wait(ds="wp")
    for i in range(8): p(f"v_xor_b32 v{WP+i}, v{WP+i}, v{vS}")
    PK = [WF, WF + 16]
    for hd in range(2):
        p(f"v_mfma_f32_32x32x16_bf16 v[{PK[hd]}:{PK[hd]+15}], v[{WP+4*hd}:{WP+4*hd+3}], v[{KB+4*hd}:{KB+4*hd+3}], 0")
    for i in range(8): p(f"v_cvt_pk_bf16_f32 v{VB+i}, v{AV_+2*i}, v{AV_+2*i+1}")
    p("v_mov_b32 v12, 0x3f803f80\nv_mov_b32 v13, 0x3f803f80")
    for hd in range(2):
        for q in range(2):
            p.ds(f"ds_write_b64 v{vA}, v[{VB+4*hd+2*q}:{VB+4*hd+2*q+1}] offset:{(2+hd)*2304 + 16*q}", "st")
            p.ds(f"ds_write_b64 v{vA}, v[12:13] offset:{(2+hd)*2304 + 32 + 16*q}", "st")
    p(f"s_mov_b32 s36, {LOG2E:#x}\ns_mov_b32 s37, {LOG2E:#x}")
    OK_ = 32
    blk = [(PK[hd] + 8*sg, OK_ + 8*hd + 4*sg) for hd in range(2) for sg in range(2)]
    for x in softmax_ops(blk, 36, 48): p(x)
    for hd in range(2):
        for sg in range(2):
            for q in range(2):
                r = OK_ + 8*hd + 4*sg + 2*q
                p.ds(f"ds_write_b64 v{vA}, v[{r}:{r+1}] offset:{hd*2304 + 32*sg + 16*q}", "st")
    stamp(p, "p1 k softmax")
    p.wait(ds="st")
    F = WF
    for hd in range(2):
        for s2 in range(2):
            f = F + 8*(2*hd + s2)
            for ab in range(2):
                off = (2*ab + hd)*2304 + s2*1152
                p.ds(f"ds_read_b64_tr_b16 v[{f+4*ab}:{f+4*ab+1}], v{vR} offset:{off}", f"kv{hd}")
                p.ds(f"ds_read_b64_tr_b16 v[{f+4*ab+2}:{f+4*ab+3}], v{vR} offset:{off+288}", f"kv{hd}")
    C = [32, 48]
    p(f"s_mul_i32 s35, s{S_WAVE}, 4352\ns_add_u32 s35, s35, {L_KVP}")
    p("v_and_b32 v12, 31, v1\nv_lshlrev_b32 v12, 4, v12\nv_lshrrev_b32 v13, 5, v1\nv_mul_u32_u24 v13, 272, v13\nv_add_u32 v12, v12, v13\nv_add_u32 v12, s35, v12")
    for hd in range(2):
        p.wait(ds=f"kv{hd}")
        for s2 in range(2):
            f = F + 8*(2*hd + s2)
            c = "0" if s2 == 0 else f"v[{C[hd]}:{C[hd]+15}]"
            p(f"v_mfma_f32_32x32x16_bf16 v[{C[hd]}:{C[hd]+15}], v[{f}:{f+3}], v[{f+4}:{f+7}], {c}")
    p("s_mov_b32 exec_lo, 0x1ffff\ns_mov_b32 exec_hi, 0x1ffff")
    for hd in range(2):
        for b in range(4):
            p.ds(f"ds_write_b128 v12, v[{C[hd]+4*b}:{C[hd]+4*b+3}] offset:{hd*2176 + b*544}", "kvp")
    p("s_mov_b64 exec, -1")
    p.wait(vm="wq", ds="kvp")
    p("s_barrier")
    p("v_lshlrev_b32 v12, 2, v0")
    p(f"s_mul_i32 s35, s25, 4352\ns_add_u32 s35, s35, {WS_KV:#x}")
    p(f"v_add_u32 v13, {L_KVP}, v12")
    for i in range(5):
        for w in range(4): p.ds(f"ds_read_b32 v{32+4*i+w}, v13 offset:{w*4352 + i*1024}", f"r{i}")
    for i in range(4):
        p.wait(ds=f"r{i}")
        r = 32 + 4*i
        p(f"v_add_f32 v{r}, v{r}, v{r+1}\nv_add_f32 v{r+2}, v{r+2}, v{r+3}\nv_add_f32 v{r}, v{r}, v{r+2}")
        p.vm(f"buffer_atomic_add_f32 v{r}, v12, s[{R_WS}:{R_WS+3}], s35 offen offset:{i*1024}", "at")
    p.wait(ds="r4")
    p("v_add_f32 v48, v48, v49\nv_add_f32 v50, v50, v51\nv_add_f32 v48, v48, v50")
    AT = p.newlabel("AT")
    p(f"s_cmp_lg_u32 s{S_WAVE}, 0\ns_cbranch_scc1 {AT}")
    p(f"s_add_u32 s35, s35, 4096\nbuffer_atomic_add_f32 v48, v12, s[{R_WS}:{R_WS+3}], s35 offen")
    p.label(AT)
    stamp(p, "p1 kv atomics issued")
    vWo, vWo2 = 14, 15
    wsrc_swz128(p, vWo, 10)
    p(f"v_add_u32 v{vWo2}, {8192-1024}, v{vWo}")
    srd(p, R_A, P_WO, 512*512*2)
    p(f"s_lshl_b32 s40, s{S_WAVE}, 17\ns_lshl_b32 s41, s27, 7\ns_add_u32 s40, s40, s41\ns_lshl_b32 s41, s{S_WAVE}, 14")
    def wo_load(k):
        def f():
            p(f"s_add_u32 s42, s40, {16*k*1024}\ns_add_u32 m0, s41, {L_WO + k*2048}")
            p.vm(f"buffer_load_dwordx4 v{vWo}, s[{R_A}:{R_A+3}], s42 offen lds", "wo")
            p.vm(f"buffer_load_dwordx4 v{vWo2}, s[{R_A}:{R_A+3}], s42 offen offset:1024 lds", "wo")
        return f
    mf = [ent(ks, 0, AQ_, ks == 0) for ks in range(32)]
    stream(p, mf, WF, 8, 5, pend=[wo_load(k) for k in range(8)] + ([lambda: touch(p, 0)] if TOUCH else []), pend_every=3)
    QB = 232
    for i in range(8): p(f"v_cvt_pk_bf16_f32 v{QB+i}, v{AQ_+2*i}, v{AQ_+2*i+1}")
    PQ = [64, 80]
    for hd in range(2):
        p(f"v_mfma_f32_32x32x16_bf16 v[{PQ[hd]}:{PQ[hd]+15}], v[{WP+4*hd}:{WP+4*hd+3}], v[{QB+4*hd}:{QB+4*hd+3}], 0")
    p("s_barrier")
    stamp(p, "p1 pass B")
    PHQ = 144
    blk = [(PQ[hd] + 8*sg, PHQ + 8*hd + 4*sg) for hd in range(2) for sg in range(2)]
    for x in softmax_ops(blk, 36, 160): p(x)
    stamp(p, "p1 q softmax")
    p.wait(vm="at")
    arrive(p, 0, 25, 16)
    stamp(p, "p1 kv flag")
    P3W.setup(p)
    def bulk2():
        cs_loads(p)
        SK0 = p.newlabel("SK")
        p(f"s_cmp_ge_u32 s29, 14\ns_cbranch_scc1 {SK0}")
        q0 = list(p.vmq)
        paced(p, [f for s_ in range(2) for f in P3W.loads(p, s_)])
        p.vmq = q0
        p.label(SK0)
    vK = 12
    p(f"v_and_b32 v{vK}, 31, v1\nv_min_u32 v{vK}, 16, v{vK}\nv_lshlrev_b32 v{vK}, 4, v{vK}\nv_lshrrev_b32 v13, 5, v1\nv_mul_u32_u24 v13, 272, v13\nv_add_u32 v{vK}, v{vK}, v13")
    wait_go(p, 0, 25, bulk=bulk2)
    stamp(p, "S2 passed")
    p(f"s_mul_i32 s35, s25, 4352\ns_add_u32 s35, s35, {WS_KV:#x}")
    AK = 64
    for hd in range(2):
        for s_ in range(2):
            for q in range(2):
                r = AK + 16*hd + 8*s_ + 4*q
                o = hd*2176 + (2*s_+q)*544
                p.vm(f"buffer_load_dwordx4 v[{r}:{r+3}], v{vK}, s[{R_WS}:{R_WS+3}], s35 offen offset:{o} sc1", f"kv{hd}")
    touch(p, 2)
    AB, ON = 96, 16
    for hd in range(2):
        p.wait(vm=f"kv{hd}")
        for s_ in range(2):
            for jj in range(4): p(f"v_cvt_pk_bf16_f32 v{AB+8*hd+4*s_+jj}, v{AK+16*hd+8*s_+2*jj}, v{AK+16*hd+8*s_+2*jj+1}")
        o = ON + 16*hd
        p(f"v_mfma_f32_32x32x16_bf16 v[{o}:{o+15}], v[{AB+8*hd}:{AB+8*hd+3}], v[{PHQ+8*hd}:{PHQ+8*hd+3}], 0")
        p(f"v_mfma_f32_32x32x16_bf16 v[{o}:{o+15}], v[{AB+8*hd+4}:{AB+8*hd+7}], v[{PHQ+8*hd+4}:{PHQ+8*hd+7}], v[{o}:{o+15}]")
    p(f"s_lshl_b32 s35, s31, 5\ns_lshl_b32 s36, s25, 1\ns_add_u32 s35, s35, s36\ns_lshl_b32 s35, s35, 10\ns_add_u32 s35, s35, {WS_OF:#x}")
    for hd in range(2):
        o = ON + 16*hd
        p(f"v_add_f32 v{o+8}, 0x358637bd, v{o+8}\nv_rcp_f32 v{o+8}, v{o+8}")
        for i in range(0, 8, 2): p(f"v_pk_mul_f32 v[{o+i}:{o+i+1}], v[{o+i}:{o+i+1}], v[{o+8}:{o+9}] op_sel_hi:[1,0]")
        for jj in range(4): p(f"v_cvt_pk_bf16_f32 v{112+4*hd+jj}, v{o+2*jj}, v{o+2*jj+1}")
        p.vm(f"buffer_store_dwordx4 v[{112+4*hd}:{115+4*hd}], v{vX}, s[{R_WS}:{R_WS+3}], s35 offen offset:{hd*1024} sc1", "of")
    p.wait(vm="of")
    if LINES: arrive_line(p, 0, 24, 25)
    else: arrive(p, 1, 24, 16)
    stamp(p, "p1 o flag")
    cs_compute(p)
    p("s_barrier")
    cs_finish(p)
    touch(p, 3)

def reduce_write(p, base, wavestride):
    p(f"s_mul_i32 s40, s{S_WAVE}, {wavestride}\ns_add_u32 s40, s40, {base}")
    p("v_and_b32 v10, 31, v1\nv_mul_u32_u24 v10, 272, v10\nv_lshrrev_b32 v11, 5, v1\nv_lshlrev_b32 v11, 4, v11\nv_add_u32 v10, v10, v11\nv_add_u32 v10, s40, v10")
    for cg in range(2):
        for tg in range(2):
            for b in range(4):
                a = 32*cg + 16*tg + 4*b
                p.ds(f"ds_write_b128 v10, a[{a}:{a+3}] offset:{tg*32*272 + cg*128 + b*32}", "red")
    p.wait(ds="red")
    p("s_barrier")

def reduce_read(p, base, wavestride, ps, dst):
    T = dst + 8
    for w in range(4):
        for hb in range(2):
            r = dst + 4*hb if w == 0 else T + 8*(w-1) + 4*hb
            off = base + w*wavestride + ps*32*272 + hb*16
            reg = (12, 13, 11)[off // 65536]
            p.ds(f"ds_read_b128 v[{r}:{r+3}], v{reg} offset:{off % 65536}", f"rr{ps}")

def reduce_sum(p, ps, dst):
    T = dst + 8
    p.wait(ds=f"rr{ps}")
    for i in range(0, 8, 2):
        p(f"v_pk_add_f32 v[{dst+i}:{dst+i+1}], v[{dst+i}:{dst+i+1}], v[{T+i}:{T+i+1}]")
        p(f"v_pk_add_f32 v[{T+8+i}:{T+8+i+1}], v[{T+8+i}:{T+8+i+1}], v[{T+16+i}:{T+16+i+1}]")
    for i in range(0, 8, 2):
        p(f"v_pk_add_f32 v[{dst+i}:{dst+i+1}], v[{dst+i}:{dst+i+1}], v[{T+8+i}:{T+8+i+1}]")

def add_residual(p, dst, res, tmp):
    for i in range(4): p(f"v_lshlrev_b32 v{tmp+2*i}, 16, v{res+i}\nv_and_b32 v{tmp+2*i+1}, 0xffff0000, v{res+i}")
    for i in range(0, 8, 2): p(f"v_pk_add_f32 v[{dst+i}:{dst+i+1}], v[{dst+i}:{dst+i+1}], v[{tmp+i}:{tmp+i+1}]")

def hf_addr(p, dst, tmp):
    p(f"v_bfe_u32 v{dst}, v0, 1, 2\nv_lshlrev_b32 v{dst}, 10, v{dst}\nv_and_b32 v{tmp}, 1, v0\nv_lshlrev_b32 v{tmp}, 9, v{tmp}\nv_add_u32 v{dst}, v{dst}, v{tmp}")
    p(f"v_lshrrev_b32 v{tmp}, 3, v0\nv_lshlrev_b32 v{tmp}, 4, v{tmp}\nv_add_u32 v{dst}, v{dst}, v{tmp}")

def red_addr(p):
    p("v_lshrrev_b32 v12, 3, v0\nv_mul_u32_u24 v12, 272, v12\nv_and_b32 v13, 7, v0\nv_lshlrev_b32 v13, 5, v13\nv_add_u32 v12, v12, v13\nv_add_u32 v13, 0x10000, v12\nv_add_u32 v11, 0x20000, v12")

class P3W:
    vG0, vG1, vU0, vU1 = 240, 241, 242, 243
    R_G, R_U = 12, 16
    @staticmethod
    def setup(p):
        v = P3W
        p(f"v_lshrrev_b32 v{v.vG0}, 3, v1\nv_mul_u32_u24 v{v.vG0}, 3584, v{v.vG0}")
        p(f"v_bfe_u32 v{v.vU1}, v1, 4, 1\nv_lshlrev_b32 v{v.vU1}, 2, v{v.vU1}\nv_xor_b32 v{v.vU1}, v{v.vU1}, v1\nv_and_b32 v{v.vU1}, 7, v{v.vU1}\nv_lshlrev_b32 v{v.vU1}, 4, v{v.vU1}")
        p(f"v_xor_b32 v{v.vU0}, 32, v{v.vU1}\nv_add_u32 v{v.vU0}, v{v.vU0}, v{v.vG0}\nv_add_u32 v{v.vG0}, v{v.vG0}, v{v.vU1}")
        p(f"v_add_u32 v{v.vG1}, {8*3584-1024}, v{v.vG0}\nv_add_u32 v{v.vU1}, {8*3584-1024}, v{v.vU0}")
        srd(p, v.R_G, P_WG, 512*1792*2)
        srd(p, v.R_U, P_WU, 512*1792*2, shift=2048)
        p(f"s_mul_i32 s44, s{S_WAVE}, {16*3584}\ns_lshl_b32 s45, s29, 8\ns_add_u32 s44, s44, s45\ns_lshl_b32 s45, s{S_WAVE}, 12")
    @staticmethod
    def loads(p, s):
        v = P3W
        line, c = divmod(s, 8)
        def f0():
            p(f"s_add_u32 s46, s44, {c*64*3584 + line*128}\ns_add_u32 m0, s45, {pos(s)}")
            p.vm(f"buffer_load_dwordx4 v{v.vG0}, s[{v.R_G}:{v.R_G+3}], s46 offen lds", f"s{s}")
        def f1(): p.vm(f"buffer_load_dwordx4 v{v.vG1}, s[{v.R_G}:{v.R_G+3}], s46 offen offset:1024 lds", f"s{s}")
        def f2(): p.vm(f"buffer_load_dwordx4 v{v.vU0}, s[{v.R_U}:{v.R_U+3}], s46 offen offset:2048 lds", f"s{s}")
        def f3(): p.vm(f"buffer_load_dwordx4 v{v.vU1}, s[{v.R_U}:{v.R_U+3}], s46 offen offset:3072 lds", f"s{s}")
        return [f0, f1, f2, f3]

P3_PRE = 8

HKEEP = 180
L_OF = 65536
def p2(p):
    vX, vT, vB = 4, 6, 7
    WA, BR, ACC = 192, 224, 16
    p(f"s_lshr_b32 s31, s26, 1")
    p(f"s_lshr_b32 s32, s{S_WAVE}, 1\ns_and_b32 s33, s{S_WAVE}, 1")
    tr_addr_swz128(p, vT, 8, 10)
    p(f"s_lshl_b32 s34, s33, 6\nv_xor_b32 v{vT}, s34, v{vT}")
    p(f"s_lshl_b32 s34, s32, 15\ns_add_u32 s34, s34, {L_OF}\nv_add_u32 v{vB}, s34, v{vX}")
    XR = 48
    p("v_and_b32 v9, 31, v1\nv_lshlrev_b32 v9, 10, v9\nv_lshrrev_b32 v10, 5, v1\nv_lshlrev_b32 v10, 3, v10\nv_add_u32 v9, v9, v10")
    p("s_lshl_b32 s34, s26, 16\ns_lshl_b32 s35, s32, 15\ns_add_u32 s34, s34, s35\ns_lshl_b32 s35, s27, 7\ns_add_u32 s34, s34, s35\ns_lshl_b32 s35, s33, 6\ns_add_u32 s34, s34, s35")
    srd(p, 8, P_X, 2048*512*2)
    for b_ in range(4): p.vm(f"buffer_load_dwordx2 v[{XR+2*b_}:{XR+2*b_+1}], v9, s[8:11], s34 offen offset:{16*b_}", "xr")
    p(f"s_lshl_b32 s35, s26, 16\ns_lshl_b32 s36, s{S_WAVE}, 11\ns_add_u32 s35, s35, s36\ns_add_u32 s35, s35, {WS_OF:#x}\ns_add_u32 s36, s36, {L_OF}")
    p.wait(vm="wo")
    if LINES: wait_go(p, 0, 31, lines=16)
    else: wait_go(p, 1, 31)
    stamp(p, "S2b passed")
    for c in range(4):
        for tg in range(2):
            p(f"s_add_u32 s37, s35, {tg*32768 + c*8192}\ns_add_u32 m0, s36, {tg*32768 + c*8192}")
            p.vm(f"buffer_load_dwordx4 v{vX}, s[{R_WS}:{R_WS+3}], s37 offen sc1 lds", f"o{c}")
            p.vm(f"buffer_load_dwordx4 v{vX}, s[{R_WS}:{R_WS+3}], s37 offen offset:1024 sc1 lds", f"o{c}")
    uid = p.newlabel("t")
    def rd(k):
        if k % 8 == 0:
            p.wait(vm=f"o{k//8}"); p("s_barrier")
        a_ = WA + 4*(k % 6); bb = BR + 4*(k % 4)
        p.ds(f"ds_read_b64_tr_b16 v[{a_}:{a_+1}], v{vT} offset:{L_WO + k*2048}", f"{uid}{k}")
        p.ds(f"ds_read_b64_tr_b16 v[{a_+2}:{a_+3}], v{vT} offset:{L_WO + k*2048 + 1024}", f"{uid}{k}")
        p.ds(f"ds_read_b128 v[{bb}:{bb+3}], v{vB} offset:{k*1024}", f"{uid}{k}")
    L = 3
    for k in range(L): rd(k)
    for k in range(32):
        p.wait(ds=f"{uid}{k}")
        a_ = WA + 4*(k % 6); bb = BR + 4*(k % 4)
        p(f"v_mfma_f32_32x32x16_bf16 v[{ACC}:{ACC+15}], v[{a_}:{a_+3}], v[{bb}:{bb+3}], {'0' if k == 0 else f'v[{ACC}:{ACC+15}]'}")
        if k + L < 32: rd(k + L)
    stamp(p, "p2 main")
    p("s_barrier")
    p(f"s_lshl_b32 s34, s26, 1\ns_add_u32 s34, s34, s32")
    p(f"s_lshl_b32 s35, s34, 5\ns_lshl_b32 s36, s27, 2\ns_add_u32 s35, s35, s36\ns_lshl_b32 s36, s33, 1\ns_add_u32 s35, s35, s36\ns_lshl_b32 s35, s35, 10\ns_add_u32 s35, s35, {WS_HF:#x}")
    p(f"s_lshl_b32 s36, s34, 4\ns_lshl_b32 s37, s27, 1\ns_add_u32 s36, s36, s37\ns_add_u32 s36, s36, s33\ns_lshl_b32 s36, s36, 8\ns_add_u32 s36, s36, {WS_ST:#x}")
    p.wait(vm="xr")
    T = 64
    for i in range(8): p(f"v_lshlrev_b32 v{T+2*i}, 16, v{XR+i}\nv_and_b32 v{T+2*i+1}, 0xffff0000, v{XR+i}")
    for i in range(0, 16, 2): p(f"v_pk_add_f32 v[{ACC+i}:{ACC+i+1}], v[{ACC+i}:{ACC+i+1}], v[{T+i}:{T+i+1}]")
    for i in range(8): p(f"v_cvt_pk_bf16_f32 v{HKEEP+i}, v{ACC+2*i}, v{ACC+2*i+1}")
    for f in range(2):
        p.vm(f"buffer_store_dwordx4 v[{HKEEP+4*f}:{HKEEP+4*f+3}], v{vX}, s[{R_WS}:{R_WS+3}], s35 offen offset:{f*1024} sc1", "hst")
    for i in range(8): p(f"v_lshlrev_b32 v{T+2*i}, 16, v{HKEEP+i}\nv_and_b32 v{T+2*i+1}, 0xffff0000, v{HKEEP+i}")
    for i in range(4): p(f"v_pk_add_f32 v[{T+16+2*i}:{T+17+2*i}], v[{T+4*i}:{T+4*i+1}], v[{T+4*i+2}:{T+4*i+3}]")
    p(f"v_pk_add_f32 v[{T+16}:{T+17}], v[{T+16}:{T+17}], v[{T+18}:{T+19}]\nv_pk_add_f32 v[{T+20}:{T+21}], v[{T+20}:{T+21}], v[{T+22}:{T+23}]")
    p(f"v_pk_add_f32 v[{T+16}:{T+17}], v[{T+16}:{T+17}], v[{T+20}:{T+21}]\nv_add_f32 v{T+24}, v{T+16}, v{T+17}")
    p(f"v_mov_b32 v{T+25}, v{T+24}\nv_permlane32_swap_b32 v{T+24}, v{T+25}\nv_add_f32 v{T+24}, v{T+24}, v{T+25}")
    p(f"v_mul_f32 v{T+24}, 0x3d000000, v{T+24}\nv_sub_f32 v{T+26}, 0, v{T+24}")
    for i in range(0, 16, 2): p(f"v_pk_add_f32 v[{T+i}:{T+i+1}], v[{T+i}:{T+i+1}], v[{T+26}:{T+27}] op_sel_hi:[1,0]")
    p(f"v_pk_mul_f32 v[{T+16}:{T+17}], v[{T}:{T+1}], v[{T}:{T+1}]\nv_pk_mul_f32 v[{T+18}:{T+19}], v[{T+2}:{T+3}], v[{T+2}:{T+3}]")
    for i in range(4, 16, 4):
        p(f"v_pk_fma_f32 v[{T+16}:{T+17}], v[{T+i}:{T+i+1}], v[{T+i}:{T+i+1}], v[{T+16}:{T+17}]\nv_pk_fma_f32 v[{T+18}:{T+19}], v[{T+i+2}:{T+i+3}], v[{T+i+2}:{T+i+3}], v[{T+18}:{T+19}]")
    p(f"v_pk_add_f32 v[{T+16}:{T+17}], v[{T+16}:{T+17}], v[{T+18}:{T+19}]\nv_add_f32 v{T+25}, v{T+16}, v{T+17}")
    p(f"v_mov_b32 v{T+26}, v{T+25}\nv_permlane32_swap_b32 v{T+25}, v{T+26}\nv_add_f32 v{T+25}, v{T+25}, v{T+26}")
    p("v_lshlrev_b32 v10, 3, v1\ns_mov_b32 exec_hi, 0")
    p.vm(f"buffer_store_dwordx2 v[{T+24}:{T+25}], v10, s[{R_WS}:{R_WS+3}], s36 offen sc1", "hst")
    p("s_mov_b64 exec, -1")
    p.wait(vm="hst")
    if LINES:
        p("s_and_b32 s35, s26, 1\ns_lshl_b32 s35, s35, 3\ns_add_u32 s35, s35, s27")
        arrive_line(p, 1, 31, 35)
    else: arrive(p, 2, 31, 16)
    stamp(p, "p2 h flag")
    E = p.newlabel("EP")
    p(f"s_or_b32 s35, s2, s{S_WAVE}\ns_cmp_lg_u32 s35, 3\ns_cbranch_scc1 {E}")
    p(f"s_cmp_lg_u32 s2, 0\ns_cbranch_scc1 {E}")
    p(f"s_mov_b32 s36, {WS_EP:#x}\ns_load_dword s35, s[{P_WS}:{P_WS+1}], s36\ns_waitcnt lgkmcnt(0)\ns_add_u32 s35, s35, 1\nv_mov_b32 v2, s35\nv_mov_b32 v3, 0")
    p(f"s_mov_b64 exec, 1\nbuffer_store_dword v2, v3, s[{R_WS}:{R_WS+3}], s36 offen sc1\ns_mov_b64 exec, -1")
    p.label(E)

def p3(p):
    END = p.newlabel("P3END")
    p(f"s_cmp_ge_u32 s29, 14\ns_cbranch_scc1 {END}")
    v = P3W
    vX = 4
    WF, ACC, T = 192, 16, 224
    vL = [5, 6, 7, 8]; vC = [9, 10, 11, 12]
    p(f"s_lshl_b32 s31, s28, 2\ns_add_u32 s31, s31, s{S_WAVE}")
    a0 = vL[0]
    p(f"v_bfe_u32 v{a0}, v1, 4, 1\nv_lshlrev_b32 v13, 11, v{a0}")
    p(f"v_bfe_u32 v14, v1, 3, 1\nv_lshlrev_b32 v14, 1, v14\nv_add_u32 v14, v14, v{a0}\nv_lshlrev_b32 v14, 5, v14\nv_add_u32 v13, v13, v14")
    p(f"v_lshrrev_b32 v14, 5, v1\nv_lshlrev_b32 v14, 2, v14\nv_bfe_u32 v15, v1, 2, 2\nv_add_u32 v14, v14, v15\nv_lshlrev_b32 v14, 7, v14\nv_add_u32 v13, v13, v14")
    p(f"v_and_b32 v14, 3, v1\nv_lshlrev_b32 v14, 3, v14\nv_add_u32 v{a0}, v13, v14")
    for u in range(1, 4): p(f"v_xor_b32 v{vL[u]}, {u*32}, v{a0}")
    p(f"s_lshl_b32 s33, s31, 12\ns_add_u32 s33, s33, {WS_ST:#x}")
    p("v_and_b32 v15, 31, v1\nv_lshlrev_b32 v15, 3, v15\nv_lshrrev_b32 v14, 5, v1\nv_lshlrev_b32 v14, 11, v14\nv_add_u32 v15, v15, v14")
    p(f"s_lshl_b32 s34, s31, 15\ns_add_u32 s34, s34, {WS_HF:#x}")
    p(f"s_mul_i32 s36, s31, {112*1024}\ns_lshl_b32 s37, s29, 13\ns_add_u32 s36, s36, s37\ns_add_u32 s36, s36, {WS_HH:#x}")
    def bulk3():
        paced(p, [f for s_ in range(2, P3_PRE) for f in P3W.loads(p, s_)])
    if LINES: wait_go(p, 1, 28, arr2=(F6, 29, 16), bulk=bulk3, lines=16)
    else: wait_go(p, 2, 28, arr2=(F6, 29, 16), bulk=bulk3)
    stamp(p, "S3 passed")
    def hload(ks):
        if ks % 4 == 0: p(f"s_add_u32 s35, s34, {ks*1024}")
        p.vm(f"buffer_load_dwordx4 a[{4*ks}:{4*ks+3}], v{vX}, s[{R_WS}:{R_WS+3}], s35 offen offset:{(ks%4)*1024} sc1", f"h{ks}")
    LEAD = 8
    for ks in range(4): hload(ks)
    ST = 96
    for i in range(8): p.vm(f"buffer_load_dwordx2 v[{ST+2*i}:{ST+2*i+1}], v15, s[{R_WS}:{R_WS+3}], s33 offen offset:{i*256} sc1", "st")
    CSR = 128
    p("v_bfe_u32 v16, v1, 4, 2\nv_lshrrev_b32 v17, 1, v16\nv_lshlrev_b32 v17, 2, v17\nv_and_b32 v16, 1, v16\nv_add_u32 v16, v16, v17\nv_mul_u32_u24 v16, 7168, v16\nv_and_b32 v17, 15, v1\nv_lshlrev_b32 v17, 4, v17\nv_add_u32 v16, v16, v17")
    p(f"s_lshl_b32 s32, s29, 9\ns_add_u32 s32, s32, {WS_CS:#x}\ns_add_u32 s37, s32, 14336")
    for l_ in range(2):
        for qq in range(2):
            r = CSR + 8*l_ + 4*qq
            p.vm(f"buffer_load_dwordx4 v[{r}:{r+3}], v16, s[{R_WS}:{R_WS+3}], s{37 if qq else 32} offen offset:{l_*256} sc1", "cs")
    for ks in range(4, LEAD): hload(ks)
    AUG, BA, CGR = 160, 168, 176
    MEAN, RSTD, CG = T + 8, T + 9, T + 10
    prep = []; q_ = prep.append
    def Q(txt):
        for x in txt.split("\n"): q_(x)
    Q("v_cmp_gt_u32 vcc, 32, v1")
    prep2 = []
    for l_ in range(2):
        if l_ == 1: q_ = prep2.append
        for u in range(4):
            c = CSR + 8*l_ + u; t = CSR + 8*l_ + 4 + u; fr = 4*l_ + u
            Q(f"v_add_f32 v{c}, v{c}, v{t}")
        for u in range(4): Q(f"v_mov_b32 v{CSR+8*l_+4+u}, v{CSR+8*l_+u}")
        for u in range(4): Q(f"v_permlane32_swap_b32 v{CSR+8*l_+u}, v{CSR+8*l_+4+u}")
        for u in range(4): Q(f"v_add_f32 v{CSR+8*l_+u}, v{CSR+8*l_+u}, v{CSR+8*l_+4+u}")
        for u in range(4): Q(f"v_cvt_pk_bf16_f32 v{CSR+8*l_+4+u}, v{CSR+8*l_+u}, v{CSR+8*l_+u}")
        for u in range(4): Q(f"v_and_b32 v{CSR+8*l_+4+u}, 0xffff0000, v{CSR+8*l_+4+u}")
        for u in range(4): Q(f"v_sub_f32 v{CSR+8*l_+4+u}, v{CSR+8*l_+u}, v{CSR+8*l_+4+u}")
        for u in range(4): Q(f"v_cvt_pk_bf16_f32 v{CSR+8*l_+4+u}, v{CSR+8*l_+u}, v{CSR+8*l_+4+u}")
        for u in range(4): Q(f"v_cndmask_b32 v{AUG+4*l_+u}, 0, v{CSR+8*l_+4+u}, vcc")
    q_ = prep.append
    Q(f"v_add_f32 v{MEAN}, v{ST}, v{ST+2}")
    for i in range(2, 8): Q(f"v_add_f32 v{MEAN}, v{MEAN}, v{ST+2*i}")
    Q(f"v_mov_b32 v{CG}, v{MEAN}\nv_nop\nv_permlane32_swap_b32 v{MEAN}, v{CG}\nv_add_f32 v{MEAN}, v{MEAN}, v{CG}\nv_mul_f32 v{MEAN}, 0x3d800000, v{MEAN}")
    for i in range(8): Q(f"v_sub_f32 v{ST+2*i}, v{ST+2*i}, v{MEAN}")
    Q(f"v_mul_f32 v{RSTD}, v{ST}, v{ST}")
    for i in range(1, 8): Q(f"v_fmac_f32 v{RSTD}, v{ST+2*i}, v{ST+2*i}")
    Q(f"v_mul_f32 v{RSTD}, 0x42000000, v{RSTD}")
    for i in range(8): Q(f"v_add_f32 v{RSTD}, v{RSTD}, v{ST+2*i+1}")
    Q(f"v_mov_b32 v{CG}, v{RSTD}\nv_nop\nv_permlane32_swap_b32 v{RSTD}, v{CG}\nv_add_f32 v{RSTD}, v{RSTD}, v{CG}")
    Q(f"v_mov_b32 v{CG}, 0x3727c5ac\nv_fmac_f32 v{CG}, 0x3b000000, v{RSTD}\nv_rsq_f32 v{RSTD}, v{CG}")
    Q(f"v_mul_f32 v{CGR}, 0xbfb8aa3b, v{RSTD}")
    Q(f"v_sub_f32 v{ST}, 0, v{MEAN}\nv_cvt_pk_bf16_f32 v{ST+1}, v{ST}, v{ST}\nv_and_b32 v{ST+2}, 0xffff0000, v{ST+1}\nv_sub_f32 v{ST+2}, v{ST}, v{ST+2}\nv_cvt_pk_bf16_f32 v{ST+2}, v{ST+2}, v{ST+2}")
    Q(f"v_cndmask_b32 v{BA}, 0, v{ST+1}, vcc\nv_cndmask_b32 v{BA+1}, 0, v{ST+2}, vcc\nv_mov_b32 v{BA+2}, 0\nv_mov_b32 v{BA+3}, 0\nv_mov_b32 v174, 0\nv_mov_b32 v175, 0")
    def rs_store():
        RSK = p.newlabel("RS")
        p(f"s_cmp_lg_u32 s29, 0\ns_cbranch_scc1 {RSK}")
        p(f"s_lshl_b32 s37, s31, 7\ns_add_u32 s37, s37, {WS_RS:#x}\nv_lshlrev_b32 v13, 2, v1\ns_mov_b32 exec_hi, 0")
        p(f"buffer_store_dword v{RSTD}, v13, s[{R_WS}:{R_WS+3}], s37 offen sc1\ns_mov_b64 exec, -1")
        p.label(RSK)
    A1 = [ACC + 16*u for u in range(4)]; A2 = [ACC + 64, ACC + 80, ACC + 96, ACC]
    def aug(acc, fr, add=False):
        p(f"v_mov_b32 v172, v{AUG+fr}\nv_mov_b32 v173, v{AUG+fr}")
        p(f"v_mfma_f32_32x32x16_bf16 v[{acc}:{acc+15}], v[172:175], v[{BA}:{BA+3}], {f'v[{acc}:{acc+15}]' if add else '0'}")
    ET = T; outsel = [0]
    def glu_ops(acc, off):
        L = []
        o = 232 + 4*(outsel[0] & 1); outsel[0] += 1
        for half in range(2):
            js = range(4*half, 4*half + 4)
            for j in js: L.append(f"v_mul_f32 v{ET+j%4}, v{CGR}, v{acc+j}")
            for j in js: L.append(f"v_exp_f32 v{ET+j%4}, v{ET+j%4}")
            for j in js: L.append(f"v_add_f32 v{ET+j%4}, 1.0, v{ET+j%4}")
            for j in js: L.append(f"v_rcp_f32 v{ET+j%4}, v{ET+j%4}")
            for j in js: L.append(f"v_mul_f32 v{ET+j%4}, v{acc+8+j}, v{ET+j%4}")
            for jj in range(2): L.append(f"v_cvt_pk_bf16_f32 v{o+2*half+jj}, v{ET+2*jj}, v{ET+2*jj+1}")
        L.append(("store", f"s_add_u32 s41, s36, {off}", f"buffer_store_dwordx4 v[{o}:{o+3}], v{vX}, s[{R_WS}:{R_WS+3}], s41 offen sc1"))
        return L
    def emit(x):
        if isinstance(x, tuple): p(x[1]); p.vm(x[2], "hh")
        else: p(x)
    cur = {"slot": None}
    ready = set()
    def mkpre(s_):
        def pre():
            if s_ not in ready:
                p.wait(vm=f"s{s_}"); p("s_barrier"); ready.add(s_)
            if cur["slot"] != s_:
                base = pos(s_)
                for u in cur["us"]: p(f"v_add_u32 v{vC[u]}, {base}, v{vL[u]}")
                cur["slot"] = s_
        return pre
    def entries(line, us, accs):
        cur["us"] = us; cur["slot"] = None
        mf = []
        for ks in range(32):
            s_ = 8*line + ks//4
            for u in us:
                mf.append(dict(acc=f"v[{accs[u]}:{accs[u]+15}]", B=f"a[{4*ks}:{4*ks+3}]", areg=vC[u], off=((ks % 4)*4096, (ks % 4)*4096 + 1024), pre=mkpre(s_), ks=ks, slot=s_))
        return mf
    stamp(p, "p3 setup")
    mf = entries(0, [0, 1, 2, 3], A1)
    for u in range(4): mf[u]["C"] = "0"
    nxt = {"h": LEAD, "s": P3_PRE}
    def post1(m):
        def f():
            if m["first"] and nxt["h"] < 32:
                hload(nxt["h"]); nxt["h"] += 1
        return f
    slotq = []
    def want_slots(cur_slot, limit=99):
        while nxt["s"] < 16 and nxt["s"] - K3_NR + 2 <= cur_slot and limit > 0:
            slotq.extend(P3W.loads(p, nxt["s"])); nxt["s"] += 1; limit -= 1
    for i, m in enumerate(mf):
        if i % 4 == 0: m["vm"] = f"h{m['ks']}"
        def post(m=m, i=i):
            if i % 4 == 0 and nxt["h"] < 32: hload(nxt["h"]); nxt["h"] += 1
            if nxt["h"] >= 32 and i % 2 == 1:
                if not slotq and nxt["s"] < min(16, P3_PRE + P3_MID): want_slots(m["slot"], 1)
                if slotq: slotq.pop(0)()
            if i >= 36:
                for _ in range(1 + (i & 1)):
                    if prep: p(prep.pop(0))
        m["post"] = post
    stream(p, mf, WF, 8, 6)
    while prep: p(prep.pop(0))
    rs_store()
    for u in range(4): aug(A1[u], u, add=True)
    stamp(p, "p3 pass1")
    fill = list(prep2)
    for u in range(3): fill += glu_ops(A1[u], u*1024)
    mf = entries(1, [0, 1], A2)
    for u in range(2): mf[u]["C"] = "0"
    for i, m in enumerate(mf):
        def post(m=m, i=i):
            if not slotq: want_slots(m["slot"], 1)
            if slotq: slotq.pop(0)()
        m["post"] = post
    stream(p, mf, WF, 8, 6, fill=fill, emit=emit)
    assert nxt["s"] == 16 and not slotq and not fill
    for u in range(2): aug(A2[u], 4 + u, add=True)
    stamp(p, "p3 pass2a")
    aug(A2[2], 6)
    fill = glu_ops(A1[3], 3*1024) + glu_ops(A2[0], 4*1024)
    stream(p, entries(1, [2], A2), WF, 8, 6, fill=fill, emit=emit)
    stamp(p, "p3 pass2b")
    aug(A2[3], 7)
    fill = glu_ops(A2[1], 5*1024) + glu_ops(A2[2], 6*1024)
    stream(p, entries(1, [3], A2), WF, 8, 6, fill=fill, emit=emit)
    p("s_barrier")
    stamp(p, "p3 pass2c")
    return END, glu_ops(A2[3], 7*1024), emit

def p4_setup(p):
    vWo, vWo2 = 244, 245
    wsrc_swz128(p, vWo, 246)
    p(f"v_add_u32 v{vWo2}, {8192-1024}, v{vWo}")
    srd(p, 8, P_WD, 1792*512*2)
    p(f"s_mul_i32 s47, s{S_WAVE}, {28*16*1024}\ns_lshl_b32 s48, s27, 7\ns_add_u32 s47, s47, s48\ns_mul_i32 s48, s{S_WAVE}, {L_WD_W}")
NWD = L_WD_W // 2048
def wd_load(p, k):
    def f():
        p(f"s_add_u32 s49, s47, {16*k*1024}\ns_add_u32 m0, s48, {(k % NWD)*2048}")
        p.vm(f"buffer_load_dwordx4 v244, s[8:11], s49 offen lds", f"d{k}")
        p.vm(f"buffer_load_dwordx4 v245, s[8:11], s49 offen offset:1024 lds", f"d{k}")
    return f

P3_MID = 3
P4_PRE = 18
def p4(p):
    vX, vT0, vT1 = 4, 6, 7
    HB, WA = 64, 192
    RING = 8
    p(f"s_lshr_b32 s31, s26, 1")
    tr_addr_swz128(p, vT0, vT1, 10)
    p(f"v_add_u32 v{vT0}, s48, v{vT0}\nv_add_u32 v{vT1}, s48, v{vT1}")
    for i in range(64): p(f"v_accvgpr_write_b32 a{i}, 0")
    p(f"s_mul_i32 s33, s26, {2*112*1024}\ns_mul_i32 s34, s{S_WAVE}, {28*1024}\ns_add_u32 s33, s33, s34\ns_add_u32 s33, s33, {WS_HH:#x}\ns_add_u32 s34, s33, {112*1024}")
    def bulk4():
        paced(p, [wd_load(p, k) for k in range(P4_PRE)])
    if LINES: wait_go(p, 2, 31, bulk=bulk4, lines=14)
    else: wait_go(p, 3, 31, bulk=bulk4)
    stamp(p, "S4 passed")
    def hload(k):
        sl = k % RING
        def f0():
            if k % 4 == 0 and k: p("s_add_u32 s33, s33, 4096\ns_add_u32 s34, s34, 4096")
            p.vm(f"buffer_load_dwordx4 v[{HB+8*sl}:{HB+8*sl+3}], v{vX}, s[{R_WS}:{R_WS+3}], s33 offen offset:{(k%4)*1024} sc1", f"k{k}")
        def f1(): p.vm(f"buffer_load_dwordx4 v[{HB+8*sl+4}:{HB+8*sl+7}], v{vX}, s[{R_WS}:{R_WS+3}], s34 offen offset:{(k%4)*1024} sc1", f"k{k}")
        return [f0, f1]
    for k in range(RING - 1):
        for f in hload(k): f()
    p(f"s_lshr_b32 s36, s{S_WAVE}, 1\ns_lshl_b32 s35, s26, 1\ns_add_u32 s35, s35, s36\ns_lshl_b32 s35, s35, 7\ns_add_u32 s35, s35, {WS_RS:#x}\nv_and_b32 v9, 31, v1\nv_lshlrev_b32 v9, 2, v9")
    p.vm(f"buffer_load_dword v56, v9, s[{R_WS}:{R_WS+3}], s35 offen sc1", "rs")
    nd = [P4_PRE]
    mf = []
    for k in range(28):
        sl = k % RING
        for cg, vt in ((0, vT0), (1, vT1)):
            for tg in range(2):
                a_ = 32*cg + 16*tg; h = HB + 8*sl + 4*tg
                e = dict(acc=f"a[{a_}:{a_+15}]", B=f"v[{h}:{h+3}]", areg=vt, off=((k % NWD)*2048, (k % NWD)*2048 + 1024), vm=f"k{k}", share=(tg == 1))
                if cg == 0 and tg == 0: e["pre"] = (lambda k=k: p.wait(vm=f"d{k}"))
                def post(k=k, cg=cg, tg=tg):
                    n = k + RING - 1
                    if n < 28 and cg == 0: hload(n)[tg]()
                    if cg == 1 and tg == 0 and nd[0] < 28 and nd[0] - NWD < k - 1:
                        wd_load(p, nd[0])(); nd[0] += 1
                e["post"] = post
                mf.append(e)
    stream2(p, mf, WA, 6, 3)
    assert nd[0] == 28
    stamp(p, "p4 main")
    reduce_write(p, 0, L_WD_W)
    p(f"s_lshr_b32 s36, s{S_WAVE}, 1\ns_and_b32 s37, s{S_WAVE}, 1\ns_mul_i32 s38, s36, {32*272}\ns_lshl_b32 s39, s37, 7\ns_add_u32 s38, s38, s39")
    p("v_and_b32 v10, 31, v1\nv_mul_u32_u24 v10, 272, v10\nv_lshrrev_b32 v11, 5, v1\nv_lshlrev_b32 v11, 4, v11\nv_add_u32 v10, v10, v11\nv_add_u32 v10, s38, v10\nv_add_u32 v11, 0x10000, v10")
    D = 64
    for w in range(4):
        for b_ in range(4):
            off = w*L_WD_W + b_*32
            p.ds(f"ds_read_b128 v[{D+16*w+4*b_}:{D+16*w+4*b_+3}], v{10 if off < 65536 else 11} offset:{off % 65536}", f"rr{w}")
    p("v_and_b32 v9, 31, v1\nv_lshlrev_b32 v9, 10, v9\nv_lshrrev_b32 v12, 5, v1\nv_lshlrev_b32 v12, 4, v12\nv_add_u32 v9, v9, v12")
    p("s_lshl_b32 s32, s26, 16\ns_lshl_b32 s33, s36, 15\ns_add_u32 s32, s32, s33\ns_lshl_b32 s33, s27, 7\ns_add_u32 s32, s32, s33\ns_lshl_b32 s33, s37, 6\ns_add_u32 s32, s32, s33")
    srd(p, 12, P_OUT, 2048*512*2)
    T = 128
    for i in range(8): p(f"v_lshlrev_b32 v{T+2*i}, 16, v{HKEEP+i}\nv_and_b32 v{T+2*i+1}, 0xffff0000, v{HKEEP+i}")
    p.wait(vm="rs", ds="rr1")
    for i in range(0, 16, 2): p(f"v_pk_add_f32 v[{D+i}:{D+i+1}], v[{D+i}:{D+i+1}], v[{D+16+i}:{D+16+i+1}]")
    p.wait(ds="rr3")
    for i in range(0, 16, 2): p(f"v_pk_add_f32 v[{D+32+i}:{D+32+i+1}], v[{D+32+i}:{D+32+i+1}], v[{D+48+i}:{D+48+i+1}]")
    for i in range(0, 16, 2): p(f"v_pk_add_f32 v[{D+i}:{D+i+1}], v[{D+i}:{D+i+1}], v[{D+32+i}:{D+32+i+1}]")
    for i in range(0, 16, 2): p(f"v_pk_fma_f32 v[{D+i}:{D+i+1}], v[{D+i}:{D+i+1}], v[56:57], v[{T+i}:{T+i+1}] op_sel_hi:[1,0,1]")
    Q = 160
    for i in range(8): p(f"v_cvt_pk_bf16_f32 v{Q+i}, v{D+2*i}, v{D+2*i+1}")
    for m in range(2):
        p(f"v_permlane32_swap_b32 v{Q+4*m}, v{Q+4*m+2}\nv_permlane32_swap_b32 v{Q+4*m+1}, v{Q+4*m+3}")
    for m in range(2):
        p.vm(f"buffer_store_dwordx4 v[{Q+4*m}:{Q+4*m+3}], v9, s[12:15], s32 offen offset:{32*m}", "ost")

def mega():
    p = Prog()
    NSTAMP[0] = 0; STAMP_NAMES.clear()
    p("s_getpc_b64 s[62:63]")
    p("s_cmp_ge_u32 s2, 256\ns_cbranch_scc1 L_end")
    p("s_load_dwordx16 s[64:79], s[0:1], 0\ns_load_dwordx4 s[80:83], s[0:1], 64\ns_load_dwordx2 s[84:85], s[0:1], 80")
    p(f"v_and_b32 v1, 63, v0\nv_lshrrev_b32 v2, 6, v0\nv_readfirstlane_b32 s{S_WAVE}, v2")
    if STAMPS: p("v_mov_b32 v255, 0\ns_memrealtime s[96:97]\ns_waitcnt lgkmcnt(0)\nv_writelane_b32 v255, s96, 63")
    if PADTO: p("s_memrealtime s[94:95]")
    stamp(p, "entry")
    roles(p)
    p0(p)
    p1(p)
    p2(p)
    END, tail, emit = p3(p)
    for x in tail: emit(x)
    p.wait(vm="hh")
    if LINES: arrive_line(p, 2, 28, 29)
    else: arrive(p, 3, 28, 14)
    stamp(p, "p3 hh flag")
    qa = list(p.vmq)
    J = p.newlabel("J")
    p(f"s_branch {J}")
    p.label(END)
    p.label(J)
    p.vmq = []
    p4_setup(p)
    p4(p)
    if STAMPS:
        stamp(p, "p4 stores issued")
        p("s_waitcnt vmcnt(0)")
        stamp(p, "end")
        p("s_memrealtime s[96:97]\ns_waitcnt lgkmcnt(0)\nv_writelane_b32 v255, s96, 62")
        p(f"s_lshl_b32 s58, s2, 2\ns_add_u32 s58, s58, s{S_WAVE}\ns_lshl_b32 s58, s58, 8\ns_add_u32 s58, s58, {WS_DBG:#x}\nv_lshlrev_b32 v2, 2, v1")
        p(f"buffer_store_dword v255, v2, s[{R_WS}:{R_WS+3}], s58 offen")
        if DBGOUT:
            sel = ["S1 passed", "p1 pass A", "p1 kv atomics issued", "p1 q softmax", "S2 passed", "p1 o flag", "S2b passed", "p2 h flag", "S3 passed", "p3 pass1", "p3 pass2c", "S4 passed", "p4 main", "end"]
            p("s_mov_b32 s40, s82\ns_and_b32 s41, s83, 0xffff\ns_mov_b32 s42, 256\ns_mov_b32 s43, 0x20000")
            p("v_readlane_b32 s50, v255, 0")
            for j_, nm_ in enumerate(sel):
                i_ = STAMP_NAMES.index(nm_)
                p(f"v_readlane_b32 s51, v255, {i_}\ns_nop 3\ns_sub_u32 s51, s51, s50\nv_writelane_b32 v254, s51, {j_}")
            p("v_readlane_b32 s51, v255, 63\ns_nop 3\ns_not_b32 s51, s51\nv_writelane_b32 v254, s51, 14")
            p("v_readlane_b32 s51, v255, 62\ns_nop 3\nv_writelane_b32 v254, s51, 15")
            p("v_lshlrev_b32 v2, 2, v1\ns_mov_b64 exec, 0xffff\nbuffer_atomic_umax v254, v2, s[40:43], 0 offen\ns_mov_b64 exec, -1")
    if PADTO:
        PL = p.newlabel("PAD")
        p.label(PL)
        p(f"s_memrealtime s[96:97]\ns_waitcnt lgkmcnt(0)\ns_sub_u32 s96, s96, s94\ns_cmp_lt_u32 s96, {PADTO}\ns_cbranch_scc1 {PL}")
    p.label("L_end")
    p("s_endpgm")
    p.label("L_codeend")
    return p

def build():
    p = mega()
    t, d = kernel_text(NAME + "_kernel", p, 256, 128, sgpr=100)
    print(f"mega: {p.count()} instrs, {p.nops if hasattr(p,'nops') else 0} nop states", file=sys.stderr)
    txt = f"; @launch grid=(256,1,1) block=(256,1,1) lds={LDS_BYTES}\n" + '.amdgcn_target "amdgcn-amd-amdhsa--gfx950"\n' + t
    txt += '.section .rodata,"a"\n.p2align 6\n' + d
    return txt

if __name__ == "__main__":
    for a_ in list(sys.argv):
        if a_.startswith("--set="):
            k_, v_ = a_[6:].split("="); globals()[k_] = int(v_); sys.argv.remove(a_)
    if "--stamps" in sys.argv:
        STAMPS = True; sys.argv.remove("--stamps")
    out = sys.argv[1] if len(sys.argv) > 1 else "mega.s"
    txt = build()
    open(out, "w").write(txt)
    if STAMPS: open(out + ".names", "w").write("\n".join(STAMP_NAMES))
```

```python
import sys
from dsl import Prog, kernel_text

NAME = "sequential_preLN__linear_kernel_hedgehog__glu_gated_glu__prompt"
WS_XN   = 0x000000
WS_OF   = 0x200000
WS_KV   = 0x400000
WS_HF   = 0x500000
WS_ST   = 0x700000
WS_HH   = 0x800000
WS_CS   = 0xF00000
WS_RS   = 0xF10000
WS_FL   = 0xF20000
WS_EP   = 0xF30000
WS_F1   = 0xF80000
WS_CNT  = 0xF90000
WS_FL2  = 0xFB0000
WS_GO   = 0xFA0000
WS_DBG  = 0xF40000
WS_WP   = 0x1000000
WS_WDP  = 0x1400000
WS_SIZE = 0x1600000
F1, F2, F3, F4, F5, F6, F7 = (WS_FL + i*4096 for i in range(7))
LOG2E = 0x3fb8aa3b
STAMPS = False
TOUCH = True
LINES = 1
PADTO = 0
DBGOUT = 0
BULK0 = 1
CODEPF = 1
CODE_LINES_PER_WG = 10
CODE_BYTES = 40960
PACE0 = 40
DELAY0 = 0
PACE = 40
SLEEP = 2
NSTAMP = [0]
SPIN = 1 << 18

S_WAVE, S_X, S_I, S_TAG = 20, 21, 22, 60
P_X, P_WQKV, P_WPHI, P_WO, P_WG, P_WU, P_WD, P_OUT, P_WS = 64, 66, 68, 70, 74, 76, 78, 80, 84
R_WS = 4

def srd(p, d, ptr, size, shift=0):
    if shift:
        p(f"s_sub_u32 s{d}, s{ptr}, {shift}\ns_subb_u32 s{d+1}, s{ptr+1}, 0\ns_and_b32 s{d+1}, s{d+1}, 0xffff")
    else:
        p(f"s_mov_b32 s{d}, s{ptr}\ns_and_b32 s{d+1}, s{ptr+1}, 0xffff")
    p(f"s_mov_b32 s{d+2}, {size + shift:#x}\ns_mov_b32 s{d+3}, 0x20000")

def stamp(p, name):
    if not STAMPS: return
    i = NSTAMP[0]; NSTAMP[0] += 1
    STAMP_NAMES.append(name)
    p(f"s_memtime s[98:99]\ns_waitcnt lgkmcnt(0)\nv_writelane_b32 v255, s98, {i}")
STAMP_NAMES = []

def flag_store(p, arr, sblock, sword, vt=(2, 3)):
    p(f"s_lshl_b32 s58, s{sblock}, 8\ns_lshl_b32 s59, s{sword}, 2\ns_add_u32 s58, s58, s59\ns_add_u32 s58, s58, {arr:#x}")
    p(f"v_mov_b32 v{vt[0]}, s{S_TAG}\nv_mov_b32 v{vt[1]}, 0")
    p("s_mov_b64 exec, 1")
    p.vm(f"buffer_store_dword v{vt[0]}, v{vt[1]}, s[{R_WS}:{R_WS+3}], s58 offen sc1", "flag")
    p("s_mov_b64 exec, -1")

def poll(p, arr, sblock, nwords=64, extra=None, vt=(2, 3), barrier=True, always=False, arr2=None):
    L = p.newlabel("PL"); D = p.newlabel("PD")
    if not always: p(f"s_cmp_lg_u32 s{S_WAVE}, 0\ns_cbranch_scc1 {D}")
    if arr2 is not None:
        p(f"s_lshl_b32 s55, s{arr2[1]}, 8\ns_add_u32 s55, s55, {arr2[0]:#x}\nv_and_b32 v18, 63, v0\nv_min_u32 v18, {arr2[2]-1}, v18\nv_lshlrev_b32 v18, 2, v18")
    p(f"s_lshl_b32 s58, s{sblock}, 8\ns_add_u32 s58, s58, {arr:#x}")
    p(f"v_and_b32 v{vt[0]}, 63, v0")
    if nwords < 64: p(f"v_min_u32 v{vt[0]}, {nwords-1}, v{vt[0]}")
    p(f"v_lshlrev_b32 v{vt[0]}, 2, v{vt[0]}")
    if extra is not None:
        pass
    p(f"s_mov_b32 s59, {SPIN}")
    p.label(L)
    p(f"buffer_load_dword v{vt[1]}, v{vt[0]}, s[{R_WS}:{R_WS+3}], s58 offen sc1")
    if extra is not None:
        p(f"v_mov_b32 v19, 0\nbuffer_load_dword v19, v19, s[{R_WS}:{R_WS+3}], s{extra} offen sc1")
    if arr2 is not None:
        p(f"buffer_load_dword v19, v18, s[{R_WS}:{R_WS+3}], s55 offen sc1")
    p("s_waitcnt vmcnt(0)")
    p(f"v_cmp_ne_u32 vcc, s{S_TAG}, v{vt[1]}")
    if extra is not None or arr2 is not None:
        p(f"v_cmp_ne_u32 s[56:57], s{S_TAG}, v19\ns_or_b64 vcc, vcc, s[56:57]")
    p(f"s_cbranch_vccz {D}")
    if SLEEP: p(f"s_sleep {SLEEP}")
    p(f"s_sub_u32 s59, s59, 1\ns_cmp_lg_u32 s59, 0\ns_cbranch_scc1 {L}")
    p.label(D)
    if barrier: p("s_barrier")

def paced(p, fns):
    for f in fns:
        n0 = len(p.vmq)
        f()
        if len(p.vmq) > PACE:
            p(f"s_waitcnt vmcnt({PACE})"); p.vmq = p.vmq[-PACE:]

def poll_with_bulk(p, bulk, *args, **kw):
    A = p.newlabel("BK"); B = p.newlabel("BK")
    q0 = list(p.vmq)
    p(f"s_cmp_eq_u32 s{S_WAVE}, 0\ns_cbranch_scc1 {A}")
    bulk()
    q1 = list(p.vmq)
    p.label(A)
    poll(p, *args, **kw)
    p(f"s_cmp_lg_u32 s{S_WAVE}, 0\ns_cbranch_scc1 {B}")
    p.vmq = list(q0)
    bulk()
    p.label(B)
    p.vmq = q1

def arrive(p, k, sblock, n):
    D = p.newlabel("AR")
    p("s_barrier")
    p(f"s_cmp_lg_u32 s{S_WAVE}, 0\ns_cbranch_scc1 {D}")
    p(f"s_lshl_b32 s58, s{sblock}, 9\ns_add_u32 s58, s58, {WS_CNT + k*128:#x}\nv_mov_b32 v2, 1\nv_mov_b32 v3, 0\ns_mov_b64 exec, 1")
    p(f"buffer_atomic_add v2, v3, s[{R_WS}:{R_WS+3}], s58 offen sc0 sc1\ns_waitcnt vmcnt(0)\nv_readfirstlane_b32 s59, v2\ns_mov_b64 exec, -1")
    p(f"s_cmp_lg_u32 s59, {n-1}\ns_cbranch_scc1 {D}")
    p(f"s_lshl_b32 s58, s{sblock}, 7\ns_add_u32 s58, s58, {WS_GO + k*2048:#x}\nv_mov_b32 v2, s{S_TAG}\ns_mov_b64 exec, 1")
    p(f"buffer_store_dword v2, v3, s[{R_WS}:{R_WS+3}], s58 offen sc1\ns_mov_b64 exec, -1")
    p.label(D)

def arrive_line(p, k, sblock, smember):
    D = p.newlabel("AR")
    p("s_barrier")
    p(f"s_cmp_lg_u32 s{S_WAVE}, 0\ns_cbranch_scc1 {D}")
    p(f"s_lshl_b32 s58, s{sblock}, 4\ns_add_u32 s58, s58, s{smember}\ns_lshl_b32 s58, s58, 7\ns_add_u32 s58, s58, {WS_FL2 + k*32768:#x}")
    p(f"v_mov_b32 v2, s{S_TAG}\nv_mov_b32 v3, 0\ns_mov_b64 exec, 1\nbuffer_store_dword v2, v3, s[{R_WS}:{R_WS+3}], s58 offen sc1\ns_mov_b64 exec, -1")
    p.label(D)

def wait_go(p, k, sblock, arr2=None, bulk=None, lines=0):
    A = p.newlabel("BK"); B = p.newlabel("BK"); L = p.newlabel("PL"); D = p.newlabel("PD")
    q0 = list(p.vmq)
    if BULK0 and bulk:
        bulk(); bulk = None
        q1 = list(p.vmq)
        p(f"s_cmp_lg_u32 s{S_WAVE}, 0\ns_cbranch_scc1 {D}")
    else:
        p(f"s_cmp_eq_u32 s{S_WAVE}, 0\ns_cbranch_scc1 {A}")
        if bulk:
            p("s_sleep 1")
            bulk()
        q1 = list(p.vmq)
        p(f"s_branch {D}")
    p.label(A)
    if lines:
        p(f"s_lshl_b32 s58, s{sblock}, 11\ns_add_u32 s58, s58, {WS_FL2 + k*32768:#x}\nv_min_u32 v2, {lines-1}, v1\nv_lshlrev_b32 v2, 7, v2\ns_mov_b32 s59, {SPIN}")
    else:
        p(f"s_lshl_b32 s58, s{sblock}, 7\ns_add_u32 s58, s58, {WS_GO + k*2048:#x}\nv_mov_b32 v2, 0\ns_mov_b32 s59, {SPIN}")
    if arr2 is not None:
        p(f"s_lshl_b32 s55, s{arr2[1]}, 8\ns_add_u32 s55, s55, {arr2[0]:#x}\nv_and_b32 v18, 63, v0\nv_min_u32 v18, {arr2[2]-1}, v18\nv_lshlrev_b32 v18, 2, v18")
    p.label(L)
    p(f"buffer_load_dword v3, v2, s[{R_WS}:{R_WS+3}], s58 offen sc1")
    if arr2 is not None: p(f"buffer_load_dword v19, v18, s[{R_WS}:{R_WS+3}], s55 offen sc1")
    p(f"s_waitcnt vmcnt(0)\nv_cmp_ne_u32 vcc, s{S_TAG}, v3")
    if arr2 is not None: p(f"v_cmp_ne_u32 s[56:57], s{S_TAG}, v19\ns_or_b64 vcc, vcc, s[56:57]")
    p(f"s_cbranch_vccz {D}")
    if SLEEP: p(f"s_sleep {SLEEP}")
    p(f"s_sub_u32 s59, s59, 1\ns_cmp_lg_u32 s59, 0\ns_cbranch_scc1 {L}")
    p.label(D)
    p("s_barrier")
    if bulk:
        p(f"s_cmp_lg_u32 s{S_WAVE}, 0\ns_cbranch_scc1 {B}")
        p.vmq = list(q0)
        bulk()
        p.label(B)
    p.vmq = q1

def wave_sum(p, regs, tmp):
    for ctl in ("quad_perm:[1,0,3,2]", "quad_perm:[2,3,0,1]", "row_half_mirror", "row_mirror"):
        for r in regs: p(f"v_add_f32_dpp v{r}, v{r}, v{r} {ctl} row_mask:0xf bank_mask:0xf")
    for sw in ("v_permlane16_swap_b32", "v_permlane32_swap_b32"):
        for r, t in zip(regs, tmp): p(f"v_mov_b32 v{t}, v{r}")
        for r, t in zip(regs, tmp): p(f"{sw} v{r}, v{t}")
        for r, t in zip(regs, tmp): p(f"v_add_f32 v{r}, v{r}, v{t}")

def tr_addr(p, dst, tmp, pitch, hrows):
    p(f"v_lshrrev_b32 v{dst}, 5, v1\nv_mul_u32_u24 v{dst}, {hrows}, v{dst}\nv_bfe_u32 v{tmp}, v1, 2, 2\nv_add_u32 v{dst}, v{dst}, v{tmp}\nv_mul_u32_u24 v{dst}, {pitch}, v{dst}")
    p(f"v_bfe_u32 v{tmp}, v1, 4, 1\nv_lshlrev_b32 v{tmp}, 5, v{tmp}\nv_add_u32 v{dst}, v{dst}, v{tmp}\nv_and_b32 v{tmp}, 3, v1\nv_lshlrev_b32 v{tmp}, 3, v{tmp}\nv_add_u32 v{dst}, v{dst}, v{tmp}")

def softmax_ops(blocks, sL, tmp):
    L = []; p = L.append
    n = len(blocks)
    M = [tmp + 4*i for i in range(n)]; T = [m + 1 for m in M]; S = [m + 2 for m in M]
    for (b, o), m in zip(blocks, M): p(f"v_max3_f32 v{m}, v{b}, v{b+1}, v{b+2}")
    for (b, o), m in zip(blocks, M): p(f"v_max3_f32 v{m}, v{m}, v{b+3}, v{b+4}")
    for (b, o), m in zip(blocks, M): p(f"v_max3_f32 v{m}, v{m}, v{b+5}, v{b+6}")
    for (b, o), m in zip(blocks, M): p(f"v_max_f32 v{m}, v{m}, v{b+7}")
    for m, t in zip(M, T): p(f"v_mov_b32 v{t}, v{m}")
    for m, t in zip(M, T): p(f"v_permlane32_swap_b32 v{m}, v{t}")
    for m, t in zip(M, T): p(f"v_max_f32 v{m}, v{m}, v{t}")
    for m in M: p(f"v_mul_f32 v{m}, s{sL}, v{m}")
    for (b, o), m in zip(blocks, M):
        for i in range(4):
            p(f"v_pk_fma_f32 v[{b+2*i}:{b+2*i+1}], v[{b+2*i}:{b+2*i+1}], s[{sL}:{sL+1}], v[{m}:{m+1}] op_sel_hi:[1,1,0] neg_lo:[0,0,1] neg_hi:[0,0,1]")
    for (b, o), m in zip(blocks, M):
        for i in range(8): p(f"v_exp_f32 v{b+i}, v{b+i}")
    for (b, o), s_ in zip(blocks, S): p(f"v_pk_add_f32 v[{s_}:{s_+1}], v[{b}:{b+1}], v[{b+2}:{b+3}]")
    for (b, o), m in zip(blocks, M): p(f"v_pk_add_f32 v[{m}:{m+1}], v[{b+4}:{b+5}], v[{b+6}:{b+7}]")
    for m, s_ in zip(M, S): p(f"v_pk_add_f32 v[{m}:{m+1}], v[{m}:{m+1}], v[{s_}:{s_+1}]")
    for m, t in zip(M, T): p(f"v_add_f32 v{m}, v{m}, v{t}")
    for m, t in zip(M, T): p(f"v_mov_b32 v{t}, v{m}")
    for m, t in zip(M, T): p(f"v_permlane32_swap_b32 v{m}, v{t}")
    for m, t in zip(M, T): p(f"v_add_f32 v{m}, v{m}, v{t}")
    for m in M: p(f"v_rcp_f32 v{m}, v{m}")
    for (b, o), m in zip(blocks, M):
        for i in range(4): p(f"v_pk_mul_f32 v[{b+2*i}:{b+2*i+1}], v[{b+2*i}:{b+2*i+1}], v[{m}:{m+1}] op_sel_hi:[1,0]")
    for (b, o), m in zip(blocks, M):
        for i in range(4): p(f"v_cvt_pk_bf16_f32 v{o+i}, v{b+2*i}, v{b+2*i+1}")
    return L

def stream(p, mf, ring, R, L, pend=None, fill=None, emit=None, fill_total=None, pend_every=1):
    pend = pend if pend is not None else []
    fill = fill if fill is not None else []
    emit = emit or p
    n = len(mf)
    uid = p.newlabel("t")
    def rd(i):
        m = mf[i]
        if m.get("pre"): m["pre"]()
        b = ring + 4*(i % R)
        p.ds(f"ds_read_b64_tr_b16 v[{b}:{b+1}], v{m['areg']} offset:{m['off'][0]}", f"{uid}_{i}")
        p.ds(f"ds_read_b64_tr_b16 v[{b+2}:{b+3}], v{m['areg']} offset:{m['off'][1]}", f"{uid}_{i}")
    for i in range(min(L, n)): rd(i)
    for i in range(n):
        m = mf[i]
        if m.get("before"): m["before"]()
        tags = [f"{uid}_{i}"] + ([f"{uid}_{i+1}"] if (i % 2 == 0 and i + 1 < n and i + 1 < i + L - 1) else [])
        p.wait(vm=m.get("vm"), ds=tags)
        b = ring + 4*(i % R)
        p(f"v_mfma_f32_32x32x16_bf16 {m['acc']}, v[{b}:{b+3}], {m['B']}, {m.get('C', m['acc'])}")
        if i + L < n: rd(i + L)
        if m.get("post"): m["post"]()
        if pend and i % pend_every == 0: pend.pop(0)()
        if fill:
            k = -(-len(fill) // max(n - i - 2, 1))
            for _ in range(min(k, len(fill))): emit(fill.pop(0))

def stream128(p, mf, ring, R, L, wait_every=4, fill=None, emit=None, per=None):
    fill = fill if fill is not None else []
    emit = emit or p
    n = len(mf); uid = p.newlabel("t")
    def rd(i):
        m = mf[i]
        if m.get("pre"): m["pre"]()
        b = ring + 4*(i % R)
        p.ds(f"ds_read_b128 v[{b}:{b+3}], v{m['areg']} offset:{m['off']}", f"{uid}_{i}")
    for i in range(min(L, n)): rd(i)
    for i in range(n):
        m = mf[i]
        last = min(n - 1, i + wait_every - 1) if i % wait_every == 0 else i
        p.wait(vm=m.get("vm"), ds=[f"{uid}_{j}" for j in range(i, last + 1)])
        b = ring + 4*(i % R)
        p(f"v_mfma_f32_32x32x16_bf16 {m['acc']}, v[{b}:{b+3}], {m['B']}, {m.get('C', m['acc'])}")
        if i + L < n: rd(i + L)
        if m.get("post"): m["post"]()
        if fill:
            k = -(-len(fill) // max(n - i - 2, 1))
            for _ in range(min(k, len(fill))): emit(fill.pop(0))

def stream2(p, mf, ring, R, L, pend=None, pend_at=None):
    pend = pend if pend is not None else []
    uid = p.newlabel("t")
    frags = [i for i, m in enumerate(mf) if not m.get("share")]
    fidx = {}
    c = -1
    for i, m in enumerate(mf):
        if not m.get("share"): c += 1
        fidx[i] = c
    nf = len(frags)
    def rd(f):
        m = mf[frags[f]]
        if m.get("pre"): m["pre"]()
        b = ring + 4*(f % R)
        p.ds(f"ds_read_b64_tr_b16 v[{b}:{b+1}], v{m['areg']} offset:{m['off'][0]}", f"{uid}_{f}")
        p.ds(f"ds_read_b64_tr_b16 v[{b+2}:{b+3}], v{m['areg']} offset:{m['off'][1]}", f"{uid}_{f}")
    for f in range(min(L, nf)): rd(f)
    for i, m in enumerate(mf):
        f = fidx[i]
        p.wait(vm=m.get("vm"), ds=f"{uid}_{f}")
        b = ring + 4*(f % R)
        p(f"v_mfma_f32_32x32x16_bf16 {m['acc']}, v[{b}:{b+3}], {m['B']}, {m['acc']}")
        if not m.get("share") and f + L < nf: rd(f + L)
        if m.get("post"): m["post"]()

def interleave(p, ops, fns, every):
    fns = list(fns)
    for i, x in enumerate(ops):
        p(x)
        if fns and i % every == every - 1: fns.pop(0)()
    for f in fns: f()

def wsrc_swz128(p, dst, tmp):
    p(f"v_lshrrev_b32 v{dst}, 3, v1\nv_lshlrev_b32 v{dst}, 10, v{dst}")
    p(f"v_bfe_u32 v{tmp}, v1, 4, 1\nv_lshlrev_b32 v{tmp}, 2, v{tmp}\nv_xor_b32 v{tmp}, v{tmp}, v1\nv_and_b32 v{tmp}, 7, v{tmp}\nv_lshlrev_b32 v{tmp}, 4, v{tmp}")
    p(f"v_add_u32 v{dst}, v{dst}, v{tmp}")

def tr_addr_swz128(p, d0, d1, tmp):
    p(f"v_lshrrev_b32 v{d0}, 5, v1\nv_lshlrev_b32 v{d0}, 2, v{d0}\nv_bfe_u32 v{tmp}, v1, 2, 2\nv_add_u32 v{d0}, v{d0}, v{tmp}\nv_lshlrev_b32 v{d0}, 7, v{d0}")
    p(f"v_bfe_u32 v{tmp}, v1, 3, 1\nv_lshlrev_b32 v{tmp}, 6, v{tmp}\nv_add_u32 v{d0}, v{d0}, v{tmp}")
    p(f"v_bfe_u32 v{tmp}, v1, 4, 1\nv_lshlrev_b32 v{tmp}, 5, v{tmp}\nv_add_u32 v{d0}, v{d0}, v{tmp}")
    p(f"v_and_b32 v{tmp}, 3, v1\nv_lshlrev_b32 v{tmp}, 3, v{tmp}\nv_add_u32 v{d0}, v{d0}, v{tmp}")
    p(f"v_xor_b32 v{d1}, 64, v{d0}")

L_W1, L_WPHI, L_SCR, L_KVP = 0, 98304, 102400, 139264
W1BASE = {1: 0, 2: 32768, 0: 65536}
L_CS = 102400
L_WO, L_RED2 = 0, 65536
K3_NR = 10
L_WD_W = 36864
L_DT = 102400 + 17408
LDS_BYTES = 160*1024

def roles(p):
    p(f"s_and_b32 s{S_X}, s2, 7\ns_lshr_b32 s{S_I}, s2, 3")
    p(f"s_lshr_b32 s24, s{S_X}, 1\ns_lshl_b32 s24, s24, 2\ns_lshr_b32 s23, s{S_I}, 3\ns_add_u32 s24, s24, s23")
    p(f"s_and_b32 s25, s{S_X}, 1\ns_lshl_b32 s25, s25, 3\ns_and_b32 s23, s{S_I}, 7\ns_add_u32 s25, s25, s23")
    p(f"s_lshl_b32 s26, s{S_X}, 2\ns_lshr_b32 s23, s{S_I}, 3\ns_add_u32 s26, s26, s23\ns_and_b32 s27, s{S_I}, 7")
    p(f"s_lshr_b32 s28, s{S_X}, 2\ns_lshl_b32 s28, s28, 3\ns_lshr_b32 s23, s{S_I}, 2\ns_add_u32 s28, s28, s23")
    p(f"s_and_b32 s29, s{S_X}, 3\ns_lshl_b32 s29, s29, 2\ns_and_b32 s23, s{S_I}, 3\ns_add_u32 s29, s29, s23")
    p("s_lshr_b32 s30, s2, 4")

def p0(p):
    vX, vW = 4, 5
    R_A, R_B, R_C = 8, 12, 16
    p(f"v_lshlrev_b32 v{vX}, 4, v1")
    DM = p.newlabel("DMAW"); JN = p.newlabel("P0J")
    p(f"s_cmp_ge_u32 s{S_WAVE}, 2\ns_cbranch_scc1 {DM}")
    p(f"s_lshl_b32 s31, s2, 3\ns_lshl_b32 s32, s{S_WAVE}, 2\ns_add_u32 s31, s31, s32\ns_lshl_b32 s32, s31, 10")
    p("v_and_b32 v8, 3, v1\nv_lshrrev_b32 v9, 2, v1\nv_lshlrev_b32 v10, 10, v8\nv_lshlrev_b32 v11, 4, v9\nv_add_u32 v10, v10, v11")
    p("s_waitcnt lgkmcnt(0)")
    srd(p, R_A, P_X, 2048*512*2)
    XI = 12
    srd(p, R_WS, P_WS, WS_SIZE)
    Z = p.newlabel("Z")
    p(f"s_and_b32 s35, s2, 15\ns_xor_b32 s37, s{S_WAVE}, 1\ns_or_b32 s35, s35, s37\ns_cmp_lg_u32 s35, 0\ns_cbranch_scc1 {Z}")
    p("v_mov_b32 v28, 0\nv_mov_b32 v29, 0\nv_mov_b32 v30, 0\nv_mov_b32 v31, 0")
    p(f"s_mul_i32 s35, s30, 4352\ns_add_u32 s35, s35, {WS_KV:#x}")
    for i in range(4): p(f"buffer_store_dwordx4 v[28:31], v{vX}, s[{R_WS}:{R_WS+3}], s35 offen offset:{i*1024} sc1")
    p("s_add_u32 s35, s35, 4096\ns_mov_b64 exec, 0xffff")
    p(f"buffer_store_dwordx4 v[28:31], v{vX}, s[{R_WS}:{R_WS+3}], s35 offen sc1")
    p(f"s_lshl_b32 s35, s30, 9\ns_add_u32 s35, s35, {WS_CNT:#x}\ns_mov_b32 exec_lo, -1")
    p(f"buffer_store_dwordx4 v[28:31], v{vX}, s[{R_WS}:{R_WS+3}], s35 offen sc1")
    p("s_mov_b64 exec, -1")
    p.label(Z)
    for i in range(4): p.vm(f"buffer_load_dwordx4 v[{XI+4*i}:{XI+4*i+3}], v10, s[{R_A}:{R_A+3}], s32 offen offset:{i*256}", "x")
    p(f"s_mov_b32 s59, {WS_EP:#x}\ns_load_dword s{S_TAG}, s[{P_WS}:{P_WS+1}], s59")
    p(f"v_lshlrev_b32 v9, 7, v9\nv_lshlrev_b32 v8, 4, v8\nv_add_u32 v8, v8, v9\ns_lshl_b32 s36, s{S_WAVE}, 6\ns_lshl_b32 s37, s2, 13\ns_add_u32 s36, s36, s37\ns_add_u32 s36, s36, {WS_XN:#x}")
    stamp(p, "p0 issue")
    p.wait(vm="x")
    stamp(p, "p0 x landed")
    B = 32
    for i in range(16): p(f"v_lshlrev_b32 v{B+2*i}, 16, v{XI+i}\nv_and_b32 v{B+2*i+1}, 0xffff0000, v{XI+i}")
    def tree(op_first, dst):
        for i in range(8): op_first(i)
        for w_ in (4, 2, 1):
            for i in range(w_): p(f"v_pk_add_f32 v[{64+2*i}:{65+2*i}], v[{64+2*i}:{65+2*i}], v[{64+2*(i+w_)}:{65+2*(i+w_)}]")
        p(f"v_add_f32 v{dst}, v64, v65")
    def row_reduce(r):
        p(f"v_add_f32_dpp v{r}, v{r}, v{r} row_ror:4 row_mask:0xf bank_mask:0xf\nv_add_f32_dpp v{r}, v{r}, v{r} row_ror:8 row_mask:0xf bank_mask:0xf")
        for sw in ("v_permlane16_swap_b32", "v_permlane32_swap_b32"):
            p(f"v_mov_b32 v{r+1}, v{r}\n{sw} v{r}, v{r+1}\nv_add_f32 v{r}, v{r}, v{r+1}")
    tree(lambda i: p(f"v_pk_add_f32 v[{64+2*i}:{65+2*i}], v[{B+4*i}:{B+4*i+1}], v[{B+4*i+2}:{B+4*i+3}]"), 80)
    row_reduce(80)
    p("v_mul_f32 v80, 0xbb000000, v80")
    for i in range(16): p(f"v_pk_add_f32 v[{B+2*i}:{B+2*i+1}], v[{B+2*i}:{B+2*i+1}], v[80:81] op_sel_hi:[1,0]")
    def sq(i):
        p(f"v_pk_mul_f32 v[{64+2*i}:{65+2*i}], v[{B+4*i}:{B+4*i+1}], v[{B+4*i}:{B+4*i+1}]")
    for i in range(8): sq(i)
    for i in range(8): p(f"v_pk_fma_f32 v[{64+2*i}:{65+2*i}], v[{B+4*i+2}:{B+4*i+3}], v[{B+4*i+2}:{B+4*i+3}], v[{64+2*i}:{65+2*i}]")
    tree(lambda i: None, 82)
    row_reduce(82)
    p("v_mov_b32 v84, 0x3727c5ac\nv_fmac_f32 v84, 0x3b000000, v82\nv_rsq_f32 v84, v84")
    for i in range(16): p(f"v_pk_mul_f32 v[{B+2*i}:{B+2*i+1}], v[{B+2*i}:{B+2*i+1}], v[84:85] op_sel_hi:[1,0]")
    for n in range(4):
        for i in range(4): p(f"v_cvt_pk_bf16_f32 v{XI+4*n+i}, v{B+8*n+2*i}, v{B+8*n+2*i+1}")
        if n == 2: p("s_add_u32 s36, s36, 4096")
        p.vm(f"buffer_store_dwordx4 v[{XI+4*n}:{XI+4*n+3}], v8, s[{R_WS}:{R_WS+3}], s36 offen offset:{(n%2)*2048} sc1", "xn")
    p("s_waitcnt vmcnt(0) lgkmcnt(0)"); p.vmq = []
    p(f"s_mul_i32 s{S_TAG}, s{S_TAG}, 0x9e3779b1\ns_add_u32 s{S_TAG}, s{S_TAG}, 1")
    p(f"s_lshl_b32 s58, s2, 1\ns_add_u32 s58, s58, s{S_WAVE}\ns_lshl_b32 s58, s58, 7\ns_add_u32 s58, s58, {WS_F1:#x}")
    p(f"v_mov_b32 v2, s{S_TAG}\nv_mov_b32 v3, 0\ns_mov_b64 exec, 1")
    p(f"buffer_store_dword v2, v3, s[{R_WS}:{R_WS+3}], s58 offen sc1\ns_mov_b64 exec, -1")
    stamp(p, "p0 flag")
    p(f"s_cmp_lg_u32 s{S_WAVE}, 0\ns_cbranch_scc1 {JN}")
    srd(p, R_C, P_WPHI, 32*16*16*2)
    p(f"s_lshl_b32 s35, s25, 10\ns_mov_b32 m0, {L_WPHI}")
    p(f"buffer_load_dwordx4 v{vX}, s[{R_C}:{R_C+3}], s35 offen lds")
    p(f"s_branch {JN}")
    p.label(DM)
    if CODEPF:
        CP = p.newlabel("CP")
        p(f"s_cmp_lg_u32 s{S_WAVE}, 3\ns_cbranch_scc1 {CP}")
        p(f"s_and_b32 s40, s62, 0xffffff80\ns_and_b32 s41, s63, 0xffff\ns_mov_b32 s42, L_codeend-{NAME}_kernel\ns_mov_b32 s43, 0x20000")
        p(f"s_mul_i32 s35, s{S_I}, {CODE_LINES_PER_WG}\nv_min_u32 v12, {CODE_LINES_PER_WG-1}, v1\nv_add_u32 v12, s35, v12\nv_lshlrev_b32 v12, 7, v12")
        p("buffer_load_dword v13, v12, s[40:43], 0 offen")
        p.label(CP)
    p("s_waitcnt lgkmcnt(0)")
    srd(p, R_B, P_WQKV, 512*1536*2)
    p(f"v_lshrrev_b32 v{vW}, 2, v1\nv_mul_u32_u24 v{vW}, 3072, v{vW}\nv_and_b32 v10, 3, v1\nv_lshlrev_b32 v10, 4, v10\nv_add_u32 v{vW}, v{vW}, v10")
    p(f"s_sub_u32 s32, s{S_WAVE}, 1\ns_lshl_b32 s33, s32, 10\ns_lshl_b32 s34, s25, 6\ns_add_u32 s33, s33, s34")
    p(f"s_sub_u32 s34, s{S_WAVE}, 2\ns_lshl_b32 s34, s34, 15")
    p("s_and_b32 s36, s24, 3\ns_lshl_b32 s36, s36, 1\ns_and_b32 s37, s25, 1\ns_add_u32 s36, s36, s37\ns_lshl_b32 s36, s36, 2")
    for ks in range(32):
        p(f"s_add_u32 s37, s36, {ks}\ns_and_b32 s37, s37, 31\ns_mul_i32 s38, s37, {16*3072}\ns_add_u32 s38, s38, s33\ns_lshl_b32 s39, s37, 10\ns_add_u32 m0, s39, s34")
        if ks >= PACE0: p(f"s_waitcnt vmcnt({PACE0-1})")
        p(f"buffer_load_dwordx4 v{vW}, s[{R_B}:{R_B+3}], s38 offen lds")
    p(f"s_mov_b32 s59, {WS_EP:#x}\ns_load_dword s{S_TAG}, s[{P_WS}:{P_WS+1}], s59")
    srd(p, R_WS, P_WS, WS_SIZE)
    p("s_waitcnt vmcnt(0) lgkmcnt(0)")
    p(f"s_mul_i32 s{S_TAG}, s{S_TAG}, 0x9e3779b1\ns_add_u32 s{S_TAG}, s{S_TAG}, 1")
    stamp(p, "p0 W1 landed")
    p.label(JN)
    p.vmq = []
    p("s_barrier")
    L = p.newlabel("PL"); D = p.newlabel("PD")
    p(f"s_cmp_lg_u32 s{S_WAVE}, 0\ns_cbranch_scc1 {D}")
    stamp(p, "p0 poll start")
    p(f"s_lshl_b32 s35, s24, 5\nv_add_u32 v2, s35, v1\ns_lshl_b32 s35, s25, 5\ns_add_u32 s35, s35, 1\nv_mov_b32 v3, s35\nv_cmp_gt_u32 vcc, 32, v1\nv_cndmask_b32 v2, v3, v2, vcc\nv_lshlrev_b32 v2, 7, v2")
    p(f"s_mov_b32 s58, {WS_F1:#x}\ns_mov_b32 s59, {SPIN}")
    p.label(L)
    p(f"buffer_load_dword v3, v2, s[{R_WS}:{R_WS+3}], s58 offen sc1\ns_waitcnt vmcnt(0)\nv_cmp_ne_u32 vcc, s{S_TAG}, v3\ns_cbranch_vccz {D}")
    if SLEEP: p(f"s_sleep {SLEEP}")
    p(f"s_sub_u32 s59, s59, 1\ns_cmp_lg_u32 s59, 0\ns_cbranch_scc1 {L}")
    p.label(D)
    p("s_barrier")
    stamp(p, "S1 passed")

def touch(p):
    if not TOUCH: return
    E = p.newlabel("TC"); W1 = p.newlabel("TC"); W2 = p.newlabel("TC"); W3 = p.newlabel("TC"); DU = p.newlabel("TC")
    p(f"s_cmp_eq_u32 s{S_WAVE}, 1\ns_cbranch_scc1 {W1}\ns_cmp_eq_u32 s{S_WAVE}, 2\ns_cbranch_scc1 {W2}\ns_cmp_eq_u32 s{S_WAVE}, 3\ns_cbranch_scc1 {W3}")
    p.label(DU)
    p(f"v_mov_b32 v253, 0\ns_mov_b32 s52, {WS_EP:#x}\ns_mov_b64 exec, 1")
    p(f"buffer_load_dword v250, v253, s[{R_WS}:{R_WS+3}], s52 offen\nbuffer_load_dword v251, v253, s[{R_WS}:{R_WS+3}], s52 offen\ns_mov_b64 exec, -1\ns_branch {E}")
    p.label(W1)
    p(f"s_cmp_ge_u32 s2, 224\ns_cbranch_scc1 {DU}")
    p(f"s_cmp_ge_u32 s2, 112\ns_cselect_b32 s54, 112, 0\ns_cselect_b32 s52, s{P_WU}, s{P_WG}\ns_cselect_b32 s53, s{P_WU+1}, s{P_WG+1}\ns_sub_u32 s55, s2, s54")
    srd(p, 48, 52, 512*1792*2)
    p(f"s_and_b32 s56, s55, 3\ns_mul_i32 s56, s56, {128*3584}\ns_lshr_b32 s55, s55, 2\ns_lshl_b32 s55, s55, 7\ns_add_u32 s56, s56, s55\nv_mul_u32_u24 v253, 3584, v1")
    p(f"buffer_load_dword v250, v253, s[48:51], s56 offen\ns_add_u32 s56, s56, {64*3584}\nbuffer_load_dword v251, v253, s[48:51], s56 offen\ns_branch {E}")
    p.label(W2)
    p(f"s_cmp_lt_u32 s2, 144\ns_cbranch_scc1 {DU}")
    srd(p, 48, P_WD, 1792*512*2)
    p("s_sub_u32 s56, s2, 144\ns_lshl_b32 s56, s56, 14\nv_lshlrev_b32 v253, 7, v1")
    p(f"buffer_load_dword v250, v253, s[48:51], s56 offen\ns_add_u32 s56, s56, 8192\nbuffer_load_dword v251, v253, s[48:51], s56 offen\ns_branch {E}")
    p.label(W3)
    srd(p, 48, P_WO, 512*512*2)
    p(f"s_lshl_b32 s56, s{S_I}, 14\nv_lshlrev_b32 v253, 7, v1")
    p(f"buffer_load_dword v250, v253, s[48:51], s56 offen\ns_add_u32 s56, s56, 8192\nbuffer_load_dword v251, v253, s[48:51], s56 offen")
    p.label(E)
    p.vmq += ["tch", "tch"]

def cs_loads(p):
    CSL = p.newlabel("CS")
    p(f"s_cmp_ge_u32 s2, 224\ns_cbranch_scc1 {CSL}")
    p(f"s_cmp_ge_u32 s2, 112\ns_cselect_b32 s54, 112, 0\ns_cselect_b32 s52, s{P_WU}, s{P_WG}\ns_cselect_b32 s53, s{P_WU+1}, s{P_WG+1}")
    p("s_sub_u32 s55, s2, s54")
    srd(p, 48, 52, 512*1792*2)
    p("s_lshr_b32 s56, s55, 2\ns_and_b32 s57, s55, 3")
    p(f"s_lshl_b32 s52, s57, 2\ns_add_u32 s52, s52, s{S_WAVE}\ns_mul_i32 s52, s52, {32*3584}\ns_lshl_b32 s53, s56, 7\ns_add_u32 s52, s52, s53")
    p("v_lshrrev_b32 v56, 3, v1\nv_mul_u32_u24 v56, 3584, v56\nv_bfe_u32 v57, v1, 4, 1\nv_lshlrev_b32 v57, 2, v57\nv_xor_b32 v57, v57, v1\nv_and_b32 v57, 7, v57\nv_lshlrev_b32 v57, 4, v57\nv_add_u32 v56, v56, v57")
    p(f"s_lshl_b32 s53, s{S_WAVE}, 12\ns_add_u32 s53, s53, {L_CS}")
    for n in range(4):
        p(f"s_add_u32 s54, s52, {n*8*3584}\ns_add_u32 m0, s53, {n*1024}")
        p(f"buffer_load_dwordx4 v56, s[48:51], s54 offen lds")
    p.label(CSL)

def dt_loads(p):
    D = p.newlabel("DT")
    p(f"s_cmp_lt_u32 s2, 144\ns_cbranch_scc1 {D}")
    srd(p, 48, P_WD, 1792*512*2)
    p(f"s_sub_u32 s54, s2, 144\ns_lshl_b32 s54, s54, 14\ns_lshl_b32 s55, s{S_WAVE}, 12\ns_add_u32 s54, s54, s55\ns_add_u32 s55, s55, {L_DT}")
    for n in range(4):
        p(f"v_xor_b32 v56, {n << 2}, v1\nv_lshlrev_b32 v56, 4, v56\ns_add_u32 s56, s54, {n*1024}\ns_add_u32 m0, s55, {n*1024}")
        p(f"buffer_load_dwordx4 v56, s[48:51], s56 offen lds")
    p.label(D)

def dt_compute(p):
    D = p.newlabel("DT")
    p(f"s_cmp_lt_u32 s2, 144\ns_cbranch_scc1 {D}")
    p("v_bfe_u32 v18, v1, 2, 2\nv_lshrrev_b32 v19, 5, v1\nv_lshlrev_b32 v19, 2, v19\nv_add_u32 v19, v19, v18\nv_lshlrev_b32 v19, 10, v19\nv_lshlrev_b32 v18, 6, v18\nv_add_u32 v18, v18, v19")
    p(f"v_bfe_u32 v19, v1, 4, 1\nv_lshlrev_b32 v19, 5, v19\nv_add_u32 v18, v18, v19\nv_and_b32 v19, 3, v1\nv_lshlrev_b32 v19, 3, v19\nv_add_u32 v18, v18, v19")
    p(f"s_lshl_b32 s35, s{S_WAVE}, 8\ns_add_u32 s35, s35, {L_DT}")
    for a_ in range(4):
        p(f"v_xor_b32 v19, {a_ << 6}, v18\nv_add_u32 v19, s35, v19")
        p(f"ds_read_b64_tr_b16 v[{40+4*a_}:{41+4*a_}], v19\nds_read_b64_tr_b16 v[{42+4*a_}:{43+4*a_}], v19 offset:8192")
    p(f"s_sub_u32 s36, s2, 144\ns_lshl_b32 s36, s36, 14\ns_lshl_b32 s37, s{S_WAVE}, 12\ns_add_u32 s36, s36, s37\ns_add_u32 s36, s36, {WS_WDP:#x}")
    p("s_waitcnt lgkmcnt(0)")
    for a_ in range(4):
        p(f"buffer_store_dwordx4 v[{40+4*a_}:{43+4*a_}], v4, s[{R_WS}:{R_WS+3}], s36 offen offset:{a_*1024} sc1")
    p.label(D)

def dt_finish(p):
    D = p.newlabel("DT")
    p(f"s_cmp_lt_u32 s2, 144\ns_cbranch_scc1 {D}\ns_cmp_lg_u32 s{S_WAVE}, 2\ns_cbranch_scc1 {D}")
    p(f"s_sub_u32 s40, s2, 144\ns_lshl_b32 s40, s40, 2\ns_add_u32 s40, s40, {F7:#x}")
    p(f"v_mov_b32 v20, s{S_TAG}\nv_mov_b32 v21, 0\ns_mov_b64 exec, 1\nbuffer_store_dword v20, v21, s[{R_WS}:{R_WS+3}], s40 offen sc1\ns_mov_b64 exec, -1")
    p.label(D)

def cs_compute(p):
    CSL = p.newlabel("CS")
    p(f"s_cmp_ge_u32 s2, 224\ns_cbranch_scc1 {CSL}")
    p(f"s_lshl_b32 s40, s{S_WAVE}, 12\ns_add_u32 s40, s40, {L_CS}")
    tr_addr_swz128(p, 18, 19, 20)
    p("v_add_u32 v18, s40, v18\nv_add_u32 v19, s40, v19\nv_mov_b32 v20, 0x3f803f80\nv_mov_b32 v21, 0x3f803f80\nv_mov_b32 v22, 0x3f803f80\nv_mov_b32 v23, 0x3f803f80")
    for ks in range(2):
        for cg in range(2):
            r = 24 + 8*ks + 4*cg
            p(f"ds_read_b64_tr_b16 v[{r}:{r+1}], v{18+cg} offset:{ks*2048}")
            p(f"ds_read_b64_tr_b16 v[{r+2}:{r+3}], v{18+cg} offset:{ks*2048+1024}")
    p("s_cmp_ge_u32 s2, 112\ns_cselect_b32 s36, 112, 0\ns_cselect_b32 s39, 256, 0\ns_sub_u32 s36, s2, s36\ns_lshr_b32 s37, s36, 2\ns_and_b32 s38, s36, 3")
    p(f"s_lshl_b32 s41, s37, 17\ns_lshl_b32 s38, s38, 13\ns_add_u32 s41, s41, s38\ns_lshl_b32 s38, s{S_WAVE}, 11\ns_add_u32 s41, s41, s38\ns_add_u32 s41, s41, s39\ns_add_u32 s41, s41, {WS_WP:#x}")
    p("v_bfe_u32 v16, v1, 4, 1\nv_lshlrev_b32 v16, 15, v16\nv_lshrrev_b32 v17, 5, v1\nv_lshlrev_b32 v17, 9, v17\nv_add_u32 v16, v16, v17\nv_and_b32 v17, 15, v1\nv_lshlrev_b32 v17, 4, v17\nv_add_u32 v16, v16, v17")
    p("s_waitcnt lgkmcnt(0)")
    for cg in range(2):
        if cg: p("s_add_u32 s41, s41, 65536")
        for ks in range(2):
            r = 24 + 8*ks + 4*cg
            p(f"buffer_store_dwordx4 v[{r}:{r+3}], v16, s[{R_WS}:{R_WS+3}], s41 offen offset:{ks*1024} sc1")
    for cg in range(2):
        for ks in range(2):
            r = 24 + 8*ks + 4*cg
            p(f"v_mfma_f32_32x32x16_bf16 v[{64+16*cg}:{79+16*cg}], v[20:23], v[{r}:{r+3}], {'0' if ks == 0 else f'v[{64+16*cg}:{79+16*cg}]'}")
    p(f"s_lshl_b32 s40, s{S_WAVE}, 8\ns_add_u32 s40, s40, {L_CS + 16384}\nv_lshlrev_b32 v18, 2, v1\nv_add_u32 v18, s40, v18")
    p("s_mov_b32 exec_hi, 0")
    p("ds_write_b32 v18, v64\nds_write_b32 v18, v80 offset:128")
    p("s_mov_b64 exec, -1")
    p.label(CSL)

def cs_finish(p):
    CS2 = p.newlabel("CS")
    p(f"s_cmp_ge_u32 s2, 224\ns_cbranch_scc1 {CS2}\ns_cmp_lg_u32 s{S_WAVE}, 1\ns_cbranch_scc1 {CS2}")
    p(f"v_lshlrev_b32 v18, 2, v1\nv_add_u32 v18, {L_CS + 16384}, v18")
    for w in range(4): p(f"ds_read_b32 v{20+w}, v18 offset:{w*256}")
    p("s_waitcnt lgkmcnt(0)\nv_add_f32 v20, v20, v21\nv_add_f32 v22, v22, v23\nv_add_f32 v20, v20, v22")
    p("s_cmp_ge_u32 s2, 112\ns_cselect_b32 s36, 112, 0\ns_cselect_b32 s35, 1792, 0\ns_cselect_b32 s39, 8, 0\ns_sub_u32 s36, s2, s36")
    p("s_lshr_b32 s37, s36, 2\ns_and_b32 s38, s36, 3\ns_mul_i32 s40, s38, 14336\ns_lshl_b32 s41, s37, 9\ns_add_u32 s40, s40, s41\ns_lshl_b32 s41, s39, 3\ns_add_u32 s40, s40, s41")
    p(f"s_add_u32 s40, s40, {WS_CS:#x}\nv_and_b32 v18, 15, v1\nv_lshlrev_b32 v18, 2, v18\nv_lshrrev_b32 v19, 4, v1\nv_lshlrev_b32 v19, 7, v19\nv_add_u32 v18, v18, v19")
    p(f"buffer_store_dword v20, v18, s[{R_WS}:{R_WS+3}], s40 offen sc1")
    p("s_waitcnt vmcnt(0)")
    p(f"s_lshl_b32 s40, s37, 3\ns_lshr_b32 s39, s39, 1\ns_add_u32 s40, s40, s39\ns_add_u32 s40, s40, s38\ns_lshl_b32 s40, s40, 2\ns_add_u32 s40, s40, {F6:#x}")
    p(f"v_mov_b32 v20, s{S_TAG}\nv_mov_b32 v21, 0\ns_mov_b64 exec, 1\nbuffer_store_dword v20, v21, s[{R_WS}:{R_WS+3}], s40 offen sc1\ns_mov_b64 exec, -1")
    p.label(CS2)

def p1(p):
    vX, vT, vT2, vP, vS = 4, 6, 7, 8, 9
    ACC, X, WF = 16, 64, 192
    R_A = 8
    p(f"s_lshl_b32 s31, s24, 2\ns_add_u32 s31, s31, s{S_WAVE}")
    p(f"s_lshl_b32 s32, s31, 15\ns_add_u32 s32, s32, {WS_XN:#x}\ns_add_u32 s33, s32, 4096")
    p("v_bfe_u32 v5, v1, 3, 2\nv_lshlrev_b32 v5, 13, v5\nv_lshrrev_b32 v10, 5, v1\nv_lshlrev_b32 v10, 7, v10\nv_add_u32 v5, v5, v10\nv_and_b32 v10, 7, v1\nv_lshlrev_b32 v10, 4, v10\nv_add_u32 v5, v5, v10")
    def xload(ks):
        p.vm(f"buffer_load_dwordx4 v[{X+4*ks}:{X+4*ks+3}], v5, s[{R_WS}:{R_WS+3}], s{32 + ks//16} offen offset:{(ks%16)*256} sc1", f"x{ks}")
    LEAD = 8
    for ks in range(LEAD): xload(ks)
    tr_addr(p, vT, 10, 64, 8)
    p(f"v_add_u32 v{vT2}, 0x10000, v{vT}")
    AK_, AV_, AQ_ = ACC + 16, ACC + 32, ACC
    def ent(ks, part, acc, first):
        off = (W1BASE[part] % 65536) + ks*1024
        return dict(acc=f"v[{acc}:{acc+15}]", B=f"v[{X+4*ks}:{X+4*ks+3}]", areg=(vT2 if part == 0 else vT), off=(off, off+256), C=("0" if first else f"v[{acc}:{acc+15}]"))
    mf = []
    for ks in range(32):
        e = ent(ks, 1, AK_, ks == 0); e["vm"] = f"x{ks}"; mf.append(e)
        mf.append(ent(ks, 2, AV_, ks == 0))
    stream(p, mf, WF, 8, 5, pend=[(lambda k=k: xload(k)) for k in range(LEAD, 32)], pend_every=2)
    stamp(p, "p1 pass A")
    srd(p, 12, P_WQKV, 512*1536*2)
    p(f"v_lshrrev_b32 v14, 2, v1\nv_mul_u32_u24 v14, 3072, v14\nv_and_b32 v10, 3, v1\nv_lshlrev_b32 v10, 4, v10\nv_add_u32 v14, v14, v10")
    p(f"s_mul_i32 s33, s{S_WAVE}, {8*16*3072}\ns_lshl_b32 s34, s25, 6\ns_add_u32 s33, s33, s34\ns_lshl_b32 s34, s{S_WAVE}, 13")
    for c in range(8):
        p(f"s_add_u32 s35, s33, {c*16*3072}\ns_add_u32 m0, s34, {W1BASE[0] + c*1024}")
        p.vm(f"buffer_load_dwordx4 v14, s[12:15], s35 offen lds", "wq")
    touch(p)
    WP = 224
    p(f"v_lshrrev_b32 v{vP}, 5, v1\nv_lshlrev_b32 v{vP}, 2, v{vP}\nv_bfe_u32 v10, v1, 2, 2\nv_add_u32 v{vP}, v{vP}, v10\nv_lshlrev_b32 v{vP}, 5, v{vP}")
    p(f"v_and_b32 v10, 3, v1\nv_lshlrev_b32 v10, 3, v10\nv_add_u32 v{vP}, v{vP}, v10\nv_add_u32 v{vP}, {L_WPHI}, v{vP}")
    p(f"v_and_b32 v{vS}, 16, v1\nv_lshlrev_b32 v{vS}, 11, v{vS}\nv_lshlrev_b32 v10, 16, v{vS}\nv_or_b32 v{vS}, v{vS}, v10")
    for hd in range(2):
        p.ds(f"ds_read_b64_tr_b16 v[{WP+4*hd}:{WP+4*hd+1}], v{vP} offset:{512*hd}", "wp")
        p.ds(f"ds_read_b64_tr_b16 v[{WP+4*hd+2}:{WP+4*hd+3}], v{vP} offset:{512*hd+256}", "wp")
    vA, vR = 10, 11
    p(f"s_mul_i32 s35, s{S_WAVE}, 9216\ns_add_u32 s35, s35, {L_SCR}")
    p(f"v_and_b32 v{vA}, 31, v1\nv_mul_u32_u24 v{vA}, 72, v{vA}\nv_lshrrev_b32 v12, 5, v1\nv_lshlrev_b32 v12, 3, v12\nv_add_u32 v{vA}, v{vA}, v12\nv_add_u32 v{vA}, s35, v{vA}")
    tr_addr(p, vR, 12, 72, 8)
    p(f"v_add_u32 v{vR}, s35, v{vR}")
    KB, VB = 232, 240
    for i in range(8): p(f"v_cvt_pk_bf16_f32 v{KB+i}, v{AK_+2*i}, v{AK_+2*i+1}")
    p.wait(ds="wp")
    for i in range(8): p(f"v_xor_b32 v{WP+i}, v{WP+i}, v{vS}")
    PK = [WF, WF + 16]
    for hd in range(2):
        p(f"v_mfma_f32_32x32x16_bf16 v[{PK[hd]}:{PK[hd]+15}], v[{WP+4*hd}:{WP+4*hd+3}], v[{KB+4*hd}:{KB+4*hd+3}], 0")
    for i in range(8): p(f"v_cvt_pk_bf16_f32 v{VB+i}, v{AV_+2*i}, v{AV_+2*i+1}")
    p("v_mov_b32 v12, 0x3f803f80\nv_mov_b32 v13, 0x3f803f80")
    for hd in range(2):
        for q in range(2):
            p.ds(f"ds_write_b64 v{vA}, v[{VB+4*hd+2*q}:{VB+4*hd+2*q+1}] offset:{(2+hd)*2304 + 16*q}", "st")
            p.ds(f"ds_write_b64 v{vA}, v[12:13] offset:{(2+hd)*2304 + 32 + 16*q}", "st")
    p(f"s_mov_b32 s36, {LOG2E:#x}\ns_mov_b32 s37, {LOG2E:#x}")
    OK_ = 32
    blk = [(PK[hd] + 8*sg, OK_ + 8*hd + 4*sg) for hd in range(2) for sg in range(2)]
    for x in softmax_ops(blk, 36, 48): p(x)
    for hd in range(2):
        for sg in range(2):
            for q in range(2):
                r = OK_ + 8*hd + 4*sg + 2*q
                p.ds(f"ds_write_b64 v{vA}, v[{r}:{r+1}] offset:{hd*2304 + 32*sg + 16*q}", "st")
    stamp(p, "p1 k softmax")
    p.wait(ds="st")
    F = WF
    for hd in range(2):
        for s2 in range(2):
            f = F + 8*(2*hd + s2)
            for ab in range(2):
                off = (2*ab + hd)*2304 + s2*1152
                p.ds(f"ds_read_b64_tr_b16 v[{f+4*ab}:{f+4*ab+1}], v{vR} offset:{off}", f"kv{hd}")
                p.ds(f"ds_read_b64_tr_b16 v[{f+4*ab+2}:{f+4*ab+3}], v{vR} offset:{off+288}", f"kv{hd}")
    C = [32, 48]
    p(f"s_mul_i32 s35, s{S_WAVE}, 4352\ns_add_u32 s35, s35, {L_KVP}")
    p("v_and_b32 v12, 31, v1\nv_lshlrev_b32 v12, 4, v12\nv_lshrrev_b32 v13, 5, v1\nv_mul_u32_u24 v13, 272, v13\nv_add_u32 v12, v12, v13\nv_add_u32 v12, s35, v12")
    for hd in range(2):
        p.wait(ds=f"kv{hd}")
        for s2 in range(2):
            f = F + 8*(2*hd + s2)
            c = "0" if s2 == 0 else f"v[{C[hd]}:{C[hd]+15}]"
            p(f"v_mfma_f32_32x32x16_bf16 v[{C[hd]}:{C[hd]+15}], v[{f}:{f+3}], v[{f+4}:{f+7}], {c}")
    p("s_mov_b32 exec_lo, 0x1ffff\ns_mov_b32 exec_hi, 0x1ffff")
    for hd in range(2):
        for b in range(4):
            p.ds(f"ds_write_b128 v12, v[{C[hd]+4*b}:{C[hd]+4*b+3}] offset:{hd*2176 + b*544}", "kvp")
    p("s_mov_b64 exec, -1")
    p.wait(vm="wq", ds="kvp")
    p("s_barrier")
    p("v_lshlrev_b32 v12, 2, v0")
    p(f"s_mul_i32 s35, s25, 4352\ns_add_u32 s35, s35, {WS_KV:#x}")
    p(f"v_add_u32 v13, {L_KVP}, v12")
    for i in range(5):
        for w in range(4): p.ds(f"ds_read_b32 v{32+4*i+w}, v13 offset:{w*4352 + i*1024}", f"r{i}")
    for i in range(4):
        p.wait(ds=f"r{i}")
        r = 32 + 4*i
        p(f"v_add_f32 v{r}, v{r}, v{r+1}\nv_add_f32 v{r+2}, v{r+2}, v{r+3}\nv_add_f32 v{r}, v{r}, v{r+2}")
        p.vm(f"buffer_atomic_add_f32 v{r}, v12, s[{R_WS}:{R_WS+3}], s35 offen offset:{i*1024}", "at")
    p.wait(ds="r4")
    p("v_add_f32 v48, v48, v49\nv_add_f32 v50, v50, v51\nv_add_f32 v48, v48, v50")
    AT = p.newlabel("AT")
    p(f"s_cmp_lg_u32 s{S_WAVE}, 0\ns_cbranch_scc1 {AT}")
    p(f"s_add_u32 s35, s35, 4096\nbuffer_atomic_add_f32 v48, v12, s[{R_WS}:{R_WS+3}], s35 offen")
    p.label(AT)
    stamp(p, "p1 kv atomics issued")
    vWo, vWo2 = 14, 15
    wsrc_swz128(p, vWo, 10)
    p(f"v_add_u32 v{vWo2}, {8192-1024}, v{vWo}")
    srd(p, R_A, P_WO, 512*512*2)
    p(f"s_lshl_b32 s40, s{S_WAVE}, 17\ns_lshl_b32 s41, s27, 7\ns_add_u32 s40, s40, s41\ns_lshl_b32 s41, s{S_WAVE}, 14")
    def wo_load(k):
        def f():
            p(f"s_add_u32 s42, s40, {16*k*1024}\ns_add_u32 m0, s41, {L_WO + k*2048}")
            p.vm(f"buffer_load_dwordx4 v{vWo}, s[{R_A}:{R_A+3}], s42 offen lds", "wo")
            p.vm(f"buffer_load_dwordx4 v{vWo2}, s[{R_A}:{R_A+3}], s42 offen offset:1024 lds", "wo")
        return f
    mf = [ent(ks, 0, AQ_, ks == 0) for ks in range(32)]
    def tiles():
        cs_loads(p); dt_loads(p)
    stream(p, mf, WF, 8, 5, pend=[tiles] + [wo_load(k) for k in range(8)], pend_every=3)
    QB = 232
    for i in range(8): p(f"v_cvt_pk_bf16_f32 v{QB+i}, v{AQ_+2*i}, v{AQ_+2*i+1}")
    PQ = [64, 80]
    for hd in range(2):
        p(f"v_mfma_f32_32x32x16_bf16 v[{PQ[hd]}:{PQ[hd]+15}], v[{WP+4*hd}:{WP+4*hd+3}], v[{QB+4*hd}:{QB+4*hd+3}], 0")
    p("s_barrier")
    stamp(p, "p1 pass B")
    PHQ = 144
    blk = [(PQ[hd] + 8*sg, PHQ + 8*hd + 4*sg) for hd in range(2) for sg in range(2)]
    for x in softmax_ops(blk, 36, 160): p(x)
    stamp(p, "p1 q softmax")
    p.wait(vm="at")
    arrive(p, 0, 25, 16)
    stamp(p, "p1 kv flag")
    vK = 12
    p(f"v_and_b32 v{vK}, 31, v1\nv_min_u32 v{vK}, 16, v{vK}\nv_lshlrev_b32 v{vK}, 4, v{vK}\nv_lshrrev_b32 v13, 5, v1\nv_mul_u32_u24 v13, 272, v13\nv_add_u32 v{vK}, v{vK}, v13")
    p("s_waitcnt vmcnt(0)"); p.vmq = []
    cs_compute(p)
    p("s_waitcnt vmcnt(0) lgkmcnt(0)")
    p("s_barrier")
    cs_finish(p)
    stamp(p, "p1 packed")
    wait_go(p, 0, 25)
    stamp(p, "S2 passed")
    p(f"s_mul_i32 s35, s25, 4352\ns_add_u32 s35, s35, {WS_KV:#x}")
    AK = 64
    for hd in range(2):
        for s_ in range(2):
            for q in range(2):
                r = AK + 16*hd + 8*s_ + 4*q
                o = hd*2176 + (2*s_+q)*544
                p.vm(f"buffer_load_dwordx4 v[{r}:{r+3}], v{vK}, s[{R_WS}:{R_WS+3}], s35 offen offset:{o} sc1", f"kv{hd}")
    AB, ON = 96, 16
    for hd in range(2):
        p.wait(vm=f"kv{hd}")
        for s_ in range(2):
            for jj in range(4): p(f"v_cvt_pk_bf16_f32 v{AB+8*hd+4*s_+jj}, v{AK+16*hd+8*s_+2*jj}, v{AK+16*hd+8*s_+2*jj+1}")
        o = ON + 16*hd
        p(f"v_mfma_f32_32x32x16_bf16 v[{o}:{o+15}], v[{AB+8*hd}:{AB+8*hd+3}], v[{PHQ+8*hd}:{PHQ+8*hd+3}], 0")
        p(f"v_mfma_f32_32x32x16_bf16 v[{o}:{o+15}], v[{AB+8*hd+4}:{AB+8*hd+7}], v[{PHQ+8*hd+4}:{PHQ+8*hd+7}], v[{o}:{o+15}]")
    p(f"s_lshl_b32 s35, s31, 5\ns_lshl_b32 s36, s25, 1\ns_add_u32 s35, s35, s36\ns_lshl_b32 s35, s35, 10\ns_add_u32 s35, s35, {WS_OF:#x}")
    for hd in range(2):
        o = ON + 16*hd
        p(f"v_add_f32 v{o+8}, 0x358637bd, v{o+8}\nv_rcp_f32 v{o+8}, v{o+8}")
        for i in range(0, 8, 2): p(f"v_pk_mul_f32 v[{o+i}:{o+i+1}], v[{o+i}:{o+i+1}], v[{o+8}:{o+9}] op_sel_hi:[1,0]")
        for jj in range(4): p(f"v_cvt_pk_bf16_f32 v{112+4*hd+jj}, v{o+2*jj}, v{o+2*jj+1}")
        p.vm(f"buffer_store_dwordx4 v[{112+4*hd}:{115+4*hd}], v{vX}, s[{R_WS}:{R_WS+3}], s35 offen offset:{hd*1024} sc1", "of")
    p.wait(vm="of")
    if LINES: arrive_line(p, 0, 24, 25)
    else: arrive(p, 1, 24, 16)
    stamp(p, "p1 o flag")
    dt_compute(p)
    p("s_waitcnt vmcnt(0) lgkmcnt(0)"); p.vmq = []
    p("s_barrier")
    dt_finish(p)

def reduce_write(p, base, wavestride):
    p(f"s_mul_i32 s40, s{S_WAVE}, {wavestride}\ns_add_u32 s40, s40, {base}")
    p("v_and_b32 v10, 31, v1\nv_mul_u32_u24 v10, 272, v10\nv_lshrrev_b32 v11, 5, v1\nv_lshlrev_b32 v11, 4, v11\nv_add_u32 v10, v10, v11\nv_add_u32 v10, s40, v10")
    for cg in range(2):
        for tg in range(2):
            for b in range(4):
                a = 32*cg + 16*tg + 4*b
                p.ds(f"ds_write_b128 v10, a[{a}:{a+3}] offset:{tg*32*272 + cg*128 + b*32}", "red")
    p.wait(ds="red")
    p("s_barrier")

def reduce_read(p, base, wavestride, ps, dst):
    T = dst + 8
    for w in range(4):
        for hb in range(2):
            r = dst + 4*hb if w == 0 else T + 8*(w-1) + 4*hb
            off = base + w*wavestride + ps*32*272 + hb*16
            reg = (12, 13, 11)[off // 65536]
            p.ds(f"ds_read_b128 v[{r}:{r+3}], v{reg} offset:{off % 65536}", f"rr{ps}")

def reduce_sum(p, ps, dst):
    T = dst + 8
    p.wait(ds=f"rr{ps}")
    for i in range(0, 8, 2):
        p(f"v_pk_add_f32 v[{dst+i}:{dst+i+1}], v[{dst+i}:{dst+i+1}], v[{T+i}:{T+i+1}]")
        p(f"v_pk_add_f32 v[{T+8+i}:{T+8+i+1}], v[{T+8+i}:{T+8+i+1}], v[{T+16+i}:{T+16+i+1}]")
    for i in range(0, 8, 2):
        p(f"v_pk_add_f32 v[{dst+i}:{dst+i+1}], v[{dst+i}:{dst+i+1}], v[{T+8+i}:{T+8+i+1}]")

def add_residual(p, dst, res, tmp):
    for i in range(4): p(f"v_lshlrev_b32 v{tmp+2*i}, 16, v{res+i}\nv_and_b32 v{tmp+2*i+1}, 0xffff0000, v{res+i}")
    for i in range(0, 8, 2): p(f"v_pk_add_f32 v[{dst+i}:{dst+i+1}], v[{dst+i}:{dst+i+1}], v[{tmp+i}:{tmp+i+1}]")

def hf_addr(p, dst, tmp):
    p(f"v_bfe_u32 v{dst}, v0, 1, 2\nv_lshlrev_b32 v{dst}, 10, v{dst}\nv_and_b32 v{tmp}, 1, v0\nv_lshlrev_b32 v{tmp}, 9, v{tmp}\nv_add_u32 v{dst}, v{dst}, v{tmp}")
    p(f"v_lshrrev_b32 v{tmp}, 3, v0\nv_lshlrev_b32 v{tmp}, 4, v{tmp}\nv_add_u32 v{dst}, v{dst}, v{tmp}")

def red_addr(p):
    p("v_lshrrev_b32 v12, 3, v0\nv_mul_u32_u24 v12, 272, v12\nv_and_b32 v13, 7, v0\nv_lshlrev_b32 v13, 5, v13\nv_add_u32 v12, v12, v13\nv_add_u32 v13, 0x10000, v12\nv_add_u32 v11, 0x20000, v12")

NSLOT = 14
def pos(s): return (s % K3_NR)*16384
def slot_fr(s):
    if s < 8: return s % 4, s // 4
    return 4 + (s - 8)//2, (s - 8) % 2
def pw_setup(p):
    p(f"s_mul_i32 s44, s29, {7*32768}\ns_lshl_b32 s45, s{S_WAVE}, 12\ns_add_u32 s44, s44, s45\ns_add_u32 s44, s44, {WS_WP:#x}")
def pw_loads(p, s):
    n, half = slot_fr(s)
    def f0():
        p(f"s_add_u32 s46, s44, {n*32768 + half*16384}\ns_add_u32 m0, s45, {pos(s)}")
        p.vm(f"buffer_load_dwordx4 v4, s[{R_WS}:{R_WS+3}], s46 offen sc1 lds", f"s{s}")
    fs = [f0]
    for k in range(1, 4):
        fs.append(lambda k=k: p.vm(f"buffer_load_dwordx4 v4, s[{R_WS}:{R_WS+3}], s46 offen offset:{k*1024} sc1 lds", f"s{s}"))
    return fs

P3_PRE = 6

HKEEP = 180
L_OF = 65536
def p2(p):
    vX, vT, vB = 4, 6, 7
    WA, BR, ACC = 192, 224, 16
    p(f"s_lshr_b32 s31, s26, 1")
    p(f"s_lshr_b32 s32, s{S_WAVE}, 1\ns_and_b32 s33, s{S_WAVE}, 1")
    tr_addr_swz128(p, vT, 8, 10)
    p(f"s_lshl_b32 s34, s33, 6\nv_xor_b32 v{vT}, s34, v{vT}")
    p(f"s_lshl_b32 s34, s32, 15\ns_add_u32 s34, s34, {L_OF}\nv_add_u32 v{vB}, s34, v{vX}")
    XR = 48
    p("v_and_b32 v9, 31, v1\nv_lshlrev_b32 v9, 10, v9\nv_lshrrev_b32 v10, 5, v1\nv_lshlrev_b32 v10, 3, v10\nv_add_u32 v9, v9, v10")
    p("s_lshl_b32 s34, s26, 16\ns_lshl_b32 s35, s32, 15\ns_add_u32 s34, s34, s35\ns_lshl_b32 s35, s27, 7\ns_add_u32 s34, s34, s35\ns_lshl_b32 s35, s33, 6\ns_add_u32 s34, s34, s35")
    srd(p, 8, P_X, 2048*512*2)
    for b_ in range(4): p.vm(f"buffer_load_dwordx2 v[{XR+2*b_}:{XR+2*b_+1}], v9, s[8:11], s34 offen offset:{16*b_}", "xr")
    p(f"s_lshl_b32 s35, s26, 16\ns_lshl_b32 s36, s{S_WAVE}, 11\ns_add_u32 s35, s35, s36\ns_add_u32 s35, s35, {WS_OF:#x}\ns_add_u32 s36, s36, {L_OF}")
    p.wait(vm="wo")
    if LINES: wait_go(p, 0, 31, lines=16)
    else: wait_go(p, 1, 31)
    stamp(p, "S2b passed")
    for c in range(4):
        for tg in range(2):
            p(f"s_add_u32 s37, s35, {tg*32768 + c*8192}\ns_add_u32 m0, s36, {tg*32768 + c*8192}")
            p.vm(f"buffer_load_dwordx4 v{vX}, s[{R_WS}:{R_WS+3}], s37 offen sc1 lds", f"o{c}")
            p.vm(f"buffer_load_dwordx4 v{vX}, s[{R_WS}:{R_WS+3}], s37 offen offset:1024 sc1 lds", f"o{c}")
    uid = p.newlabel("t")
    def rd(k):
        if k % 8 == 0:
            p.wait(vm=f"o{k//8}"); p("s_barrier")
        a_ = WA + 4*(k % 6); bb = BR + 4*(k % 4)
        p.ds(f"ds_read_b64_tr_b16 v[{a_}:{a_+1}], v{vT} offset:{L_WO + k*2048}", f"{uid}{k}")
        p.ds(f"ds_read_b64_tr_b16 v[{a_+2}:{a_+3}], v{vT} offset:{L_WO + k*2048 + 1024}", f"{uid}{k}")
        p.ds(f"ds_read_b128 v[{bb}:{bb+3}], v{vB} offset:{k*1024}", f"{uid}{k}")
    L = 3
    for k in range(L): rd(k)
    for k in range(32):
        p.wait(ds=f"{uid}{k}")
        a_ = WA + 4*(k % 6); bb = BR + 4*(k % 4)
        p(f"v_mfma_f32_32x32x16_bf16 v[{ACC}:{ACC+15}], v[{a_}:{a_+3}], v[{bb}:{bb+3}], {'0' if k == 0 else f'v[{ACC}:{ACC+15}]'}")
        if k + L < 32: rd(k + L)
    stamp(p, "p2 main")
    p("s_barrier")
    p(f"s_lshl_b32 s34, s26, 1\ns_add_u32 s34, s34, s32")
    p(f"s_lshl_b32 s35, s34, 5\ns_lshl_b32 s36, s27, 2\ns_add_u32 s35, s35, s36\ns_lshl_b32 s36, s33, 1\ns_add_u32 s35, s35, s36\ns_lshl_b32 s35, s35, 10\ns_add_u32 s35, s35, {WS_HF:#x}")
    p(f"s_lshl_b32 s36, s34, 4\ns_lshl_b32 s37, s27, 1\ns_add_u32 s36, s36, s37\ns_add_u32 s36, s36, s33\ns_lshl_b32 s36, s36, 8\ns_add_u32 s36, s36, {WS_ST:#x}")
    p.wait(vm="xr")
    T = 64
    for i in range(8): p(f"v_lshlrev_b32 v{T+2*i}, 16, v{XR+i}\nv_and_b32 v{T+2*i+1}, 0xffff0000, v{XR+i}")
    for i in range(0, 16, 2): p(f"v_pk_add_f32 v[{ACC+i}:{ACC+i+1}], v[{ACC+i}:{ACC+i+1}], v[{T+i}:{T+i+1}]")
    for i in range(8): p(f"v_cvt_pk_bf16_f32 v{HKEEP+i}, v{ACC+2*i}, v{ACC+2*i+1}")
    for f in range(2):
        p.vm(f"buffer_store_dwordx4 v[{HKEEP+4*f}:{HKEEP+4*f+3}], v{vX}, s[{R_WS}:{R_WS+3}], s35 offen offset:{f*1024} sc1", "hst")
    for i in range(8): p(f"v_lshlrev_b32 v{T+2*i}, 16, v{HKEEP+i}\nv_and_b32 v{T+2*i+1}, 0xffff0000, v{HKEEP+i}")
    for i in range(4): p(f"v_pk_add_f32 v[{T+16+2*i}:{T+17+2*i}], v[{T+4*i}:{T+4*i+1}], v[{T+4*i+2}:{T+4*i+3}]")
    p(f"v_pk_add_f32 v[{T+16}:{T+17}], v[{T+16}:{T+17}], v[{T+18}:{T+19}]\nv_pk_add_f32 v[{T+20}:{T+21}], v[{T+20}:{T+21}], v[{T+22}:{T+23}]")
    p(f"v_pk_add_f32 v[{T+16}:{T+17}], v[{T+16}:{T+17}], v[{T+20}:{T+21}]\nv_add_f32 v{T+24}, v{T+16}, v{T+17}")
    p(f"v_mov_b32 v{T+25}, v{T+24}\nv_permlane32_swap_b32 v{T+24}, v{T+25}\nv_add_f32 v{T+24}, v{T+24}, v{T+25}")
    p(f"v_mul_f32 v{T+24}, 0x3d000000, v{T+24}\nv_sub_f32 v{T+26}, 0, v{T+24}")
    for i in range(0, 16, 2): p(f"v_pk_add_f32 v[{T+i}:{T+i+1}], v[{T+i}:{T+i+1}], v[{T+26}:{T+27}] op_sel_hi:[1,0]")
    p(f"v_pk_mul_f32 v[{T+16}:{T+17}], v[{T}:{T+1}], v[{T}:{T+1}]\nv_pk_mul_f32 v[{T+18}:{T+19}], v[{T+2}:{T+3}], v[{T+2}:{T+3}]")
    for i in range(4, 16, 4):
        p(f"v_pk_fma_f32 v[{T+16}:{T+17}], v[{T+i}:{T+i+1}], v[{T+i}:{T+i+1}], v[{T+16}:{T+17}]\nv_pk_fma_f32 v[{T+18}:{T+19}], v[{T+i+2}:{T+i+3}], v[{T+i+2}:{T+i+3}], v[{T+18}:{T+19}]")
    p(f"v_pk_add_f32 v[{T+16}:{T+17}], v[{T+16}:{T+17}], v[{T+18}:{T+19}]\nv_add_f32 v{T+25}, v{T+16}, v{T+17}")
    p(f"v_mov_b32 v{T+26}, v{T+25}\nv_permlane32_swap_b32 v{T+25}, v{T+26}\nv_add_f32 v{T+25}, v{T+25}, v{T+26}")
    p("v_lshlrev_b32 v10, 3, v1\ns_mov_b32 exec_hi, 0")
    p.vm(f"buffer_store_dwordx2 v[{T+24}:{T+25}], v10, s[{R_WS}:{R_WS+3}], s36 offen sc1", "hst")
    p("s_mov_b64 exec, -1")
    p.wait(vm="hst")
    if LINES:
        p("s_and_b32 s35, s26, 1\ns_lshl_b32 s35, s35, 3\ns_add_u32 s35, s35, s27")
        arrive_line(p, 1, 31, 35)
    else: arrive(p, 2, 31, 16)
    stamp(p, "p2 h flag")
    E = p.newlabel("EP")
    p(f"s_or_b32 s35, s2, s{S_WAVE}\ns_cmp_lg_u32 s35, 3\ns_cbranch_scc1 {E}")
    p(f"s_cmp_lg_u32 s2, 0\ns_cbranch_scc1 {E}")
    p(f"s_mov_b32 s36, {WS_EP:#x}\ns_load_dword s35, s[{P_WS}:{P_WS+1}], s36\ns_waitcnt lgkmcnt(0)\ns_add_u32 s35, s35, 1\nv_mov_b32 v2, s35\nv_mov_b32 v3, 0")
    p(f"s_mov_b64 exec, 1\nbuffer_store_dword v2, v3, s[{R_WS}:{R_WS+3}], s36 offen sc1\ns_mov_b64 exec, -1")
    p.label(E)

def p3(p):
    vX = 4
    WF, ACC, T = 192, 16, 224
    vB = [4, 5, 6]
    p(f"s_lshl_b32 s31, s28, 2\ns_add_u32 s31, s31, s{S_WAVE}")
    p("v_add_u32 v5, 0x10000, v4\nv_add_u32 v6, 0x20000, v4")
    pw_setup(p)
    p(f"s_lshl_b32 s33, s31, 12\ns_add_u32 s33, s33, {WS_ST:#x}")
    p("v_and_b32 v15, 31, v1\nv_lshlrev_b32 v15, 3, v15\nv_lshrrev_b32 v14, 5, v1\nv_lshlrev_b32 v14, 11, v14\nv_add_u32 v15, v15, v14")
    p(f"s_lshl_b32 s34, s31, 15\ns_add_u32 s34, s34, {WS_HF:#x}")
    p(f"s_mul_i32 s36, s31, {112*1024}\ns_mul_i32 s37, s29, {7*1024}\ns_add_u32 s36, s36, s37\ns_add_u32 s36, s36, {WS_HH:#x}")
    L = p.newlabel("PL"); D = p.newlabel("PD")
    p(f"s_cmp_lg_u32 s{S_WAVE}, 0\ns_cbranch_scc1 {D}")
    p(f"s_mul_i32 s35, s29, 7\ns_lshr_b32 s35, s35, 2\ns_lshl_b32 s35, s35, 3\nv_min_u32 v2, 23, v1\nv_add_u32 v2, s35, v2\nv_min_u32 v2, 223, v2\nv_lshlrev_b32 v2, 2, v2")
    p(f"s_mov_b32 s58, {F6:#x}\ns_mov_b32 s59, {SPIN}\ns_mov_b32 s55, {F7:#x}\nv_lshlrev_b32 v18, 2, v1\nv_add_u32 v16, 64, v1\nv_min_u32 v16, 111, v16\nv_lshlrev_b32 v16, 2, v16")
    p.label(L)
    p(f"buffer_load_dword v3, v2, s[{R_WS}:{R_WS+3}], s58 offen sc1")
    p(f"buffer_load_dword v19, v18, s[{R_WS}:{R_WS+3}], s55 offen sc1\nbuffer_load_dword v17, v16, s[{R_WS}:{R_WS+3}], s55 offen sc1")
    p(f"s_waitcnt vmcnt(0)\nv_cmp_ne_u32 vcc, s{S_TAG}, v3\nv_cmp_ne_u32 s[56:57], s{S_TAG}, v19\ns_or_b64 vcc, vcc, s[56:57]\nv_cmp_ne_u32 s[56:57], s{S_TAG}, v17\ns_or_b64 vcc, vcc, s[56:57]\ns_cbranch_vccz {D}")
    if SLEEP: p(f"s_sleep {SLEEP}")
    p(f"s_sub_u32 s59, s59, 1\ns_cmp_lg_u32 s59, 0\ns_cbranch_scc1 {L}")
    p.label(D)
    p("s_barrier")
    stamp(p, "p3 weights ready")
    def bulk3():
        paced(p, [f for s_ in range(P3_PRE) for f in pw_loads(p, s_)])
    wait_go(p, 1, 28, bulk=bulk3, lines=16)
    stamp(p, "S3 passed")
    def hload(ks):
        if ks % 4 == 0: p(f"s_add_u32 s35, s34, {ks*1024}")
        p.vm(f"buffer_load_dwordx4 a[{4*ks}:{4*ks+3}], v{vX}, s[{R_WS}:{R_WS+3}], s35 offen offset:{(ks%4)*1024} sc1", f"h{ks}")
    LEAD = 8
    for ks in range(4): hload(ks)
    ST = 96
    for i in range(8): p.vm(f"buffer_load_dwordx2 v[{ST+2*i}:{ST+2*i+1}], v15, s[{R_WS}:{R_WS+3}], s33 offen offset:{i*256} sc1", "st")
    CSR = 128
    p("v_lshrrev_b32 v16, 5, v1\nv_mul_u32_u24 v16, 28672, v16\nv_and_b32 v17, 31, v1\nv_lshlrev_b32 v17, 2, v17\nv_add_u32 v16, v16, v17")
    p(f"s_mul_i32 s32, s29, {7*128}\ns_add_u32 s32, s32, {WS_CS:#x}\ns_add_u32 s37, s32, 14336")
    for qq in range(2):
        for n in range(7):
            p.vm(f"buffer_load_dword v{CSR+8*qq+n}, v16, s[{R_WS}:{R_WS+3}], s{37 if qq else 32} offen offset:{n*128} sc1", "cs")
    for ks in range(4, LEAD): hload(ks)
    AUG, BA, CGR = 160, 168, 176
    MEAN, RSTD, CG = T + 8, T + 9, T + 10
    prep = []
    def Q(txt):
        for x in txt.split("\n"): prep.append(x)
    Q("v_cmp_gt_u32 vcc, 32, v1")
    N7 = range(7)
    for n in N7: Q(f"v_add_f32 v{CSR+n}, v{CSR+n}, v{CSR+8+n}")
    for n in N7: Q(f"v_mov_b32 v{CSR+8+n}, v{CSR+n}")
    for n in N7: Q(f"v_permlane32_swap_b32 v{CSR+n}, v{CSR+8+n}")
    for n in N7: Q(f"v_add_f32 v{CSR+n}, v{CSR+n}, v{CSR+8+n}")
    for n in N7: Q(f"v_cvt_pk_bf16_f32 v{CSR+8+n}, v{CSR+n}, v{CSR+n}")
    for n in N7: Q(f"v_and_b32 v{CSR+8+n}, 0xffff0000, v{CSR+8+n}")
    for n in N7: Q(f"v_sub_f32 v{CSR+8+n}, v{CSR+n}, v{CSR+8+n}")
    for n in N7: Q(f"v_cvt_pk_bf16_f32 v{CSR+8+n}, v{CSR+n}, v{CSR+8+n}")
    for n in N7: Q(f"v_cndmask_b32 v{AUG+n}, 0, v{CSR+8+n}, vcc")
    Q(f"v_add_f32 v{MEAN}, v{ST}, v{ST+2}")
    for i in range(2, 8): Q(f"v_add_f32 v{MEAN}, v{MEAN}, v{ST+2*i}")
    Q(f"v_mov_b32 v{CG}, v{MEAN}\nv_nop\nv_permlane32_swap_b32 v{MEAN}, v{CG}\nv_add_f32 v{MEAN}, v{MEAN}, v{CG}\nv_mul_f32 v{MEAN}, 0x3d800000, v{MEAN}")
    for i in range(8): Q(f"v_sub_f32 v{ST+2*i}, v{ST+2*i}, v{MEAN}")
    Q(f"v_mul_f32 v{RSTD}, v{ST}, v{ST}")
    for i in range(1, 8): Q(f"v_fmac_f32 v{RSTD}, v{ST+2*i}, v{ST+2*i}")
    Q(f"v_mul_f32 v{RSTD}, 0x42000000, v{RSTD}")
    for i in range(8): Q(f"v_add_f32 v{RSTD}, v{RSTD}, v{ST+2*i+1}")
    Q(f"v_mov_b32 v{CG}, v{RSTD}\nv_nop\nv_permlane32_swap_b32 v{RSTD}, v{CG}\nv_add_f32 v{RSTD}, v{RSTD}, v{CG}")
    Q(f"v_mov_b32 v{CG}, 0x3727c5ac\nv_fmac_f32 v{CG}, 0x3b000000, v{RSTD}\nv_rsq_f32 v{RSTD}, v{CG}")
    Q(f"v_mul_f32 v{CGR}, 0xbfb8aa3b, v{RSTD}")
    Q(f"v_sub_f32 v{ST}, 0, v{MEAN}\nv_cvt_pk_bf16_f32 v{ST+1}, v{ST}, v{ST}\nv_and_b32 v{ST+2}, 0xffff0000, v{ST+1}\nv_sub_f32 v{ST+2}, v{ST}, v{ST+2}\nv_cvt_pk_bf16_f32 v{ST+2}, v{ST+2}, v{ST+2}")
    Q(f"v_cndmask_b32 v{BA}, 0, v{ST+1}, vcc\nv_cndmask_b32 v{BA+1}, 0, v{ST+2}, vcc\nv_mov_b32 v{BA+2}, 0\nv_mov_b32 v{BA+3}, 0\nv_mov_b32 v174, 0\nv_mov_b32 v175, 0")
    def rs_store():
        RSK = p.newlabel("RS")
        p(f"s_cmp_lg_u32 s29, 0\ns_cbranch_scc1 {RSK}")
        p(f"s_lshl_b32 s37, s31, 7\ns_add_u32 s37, s37, {WS_RS:#x}\nv_lshlrev_b32 v13, 2, v1\ns_mov_b32 exec_hi, 0")
        p(f"buffer_store_dword v{RSTD}, v13, s[{R_WS}:{R_WS+3}], s37 offen sc1\ns_mov_b64 exec, -1")
        p.label(RSK)
    AC = [ACC, ACC + 16, ACC + 32, ACC + 48, ACC + 64, ACC + 96, ACC]
    def aug(n, add=False):
        acc = AC[n]
        p(f"v_mov_b32 v172, v{AUG+n}\nv_mov_b32 v173, v{AUG+n}")
        p(f"v_mfma_f32_32x32x16_bf16 v[{acc}:{acc+15}], v[172:175], v[{BA}:{BA+3}], {f'v[{acc}:{acc+15}]' if add else '0'}")
    ET = T; outsel = [0]
    def glu_ops(n):
        acc = AC[n]; off = n*1024
        L_ = []
        o = 232 + 4*(outsel[0] & 1); outsel[0] += 1
        for half in range(2):
            js = range(4*half, 4*half + 4)
            for j in js: L_.append(f"v_mul_f32 v{ET+j%4}, v{CGR}, v{acc+j}")
            for j in js: L_.append(f"v_exp_f32 v{ET+j%4}, v{ET+j%4}")
            for j in js: L_.append(f"v_add_f32 v{ET+j%4}, 1.0, v{ET+j%4}")
            for j in js: L_.append(f"v_rcp_f32 v{ET+j%4}, v{ET+j%4}")
            for j in js: L_.append(f"v_mul_f32 v{ET+j%4}, v{acc+8+j}, v{ET+j%4}")
            for jj in range(2): L_.append(f"v_cvt_pk_bf16_f32 v{o+2*half+jj}, v{ET+2*jj}, v{ET+2*jj+1}")
        L_.append(("store", f"s_add_u32 s41, s36, {off}", f"buffer_store_dwordx4 v[{o}:{o+3}], v{vX}, s[{R_WS}:{R_WS+3}], s41 offen sc1"))
        return L_
    def emit(x):
        if isinstance(x, tuple): p(x[1]); p.vm(x[2], "hh")
        else: p(x)
    ready = set()
    def mkpre(slots):
        def pre():
            todo = [s_ for s_ in slots if s_ not in ready]
            if todo:
                p.wait(vm=[f"s{s_}" for s_ in todo]); p("s_barrier"); ready.update(todo)
        return pre
    def ent(n, ks):
        s_ = (n + 4*(ks // 16)) if n < 4 else 8 + 2*(n - 4) + ks // 16
        off = pos(s_) + (ks % 16)*1024
        grp = [4*(ks // 16) + u for u in range(4)] if n < 4 else [s_]
        return dict(acc=f"v[{AC[n]}:{AC[n]+15}]", B=f"a[{4*ks}:{4*ks+3}]", areg=vB[off // 65536], off=off % 65536, pre=mkpre(grp), ks=ks, slot=s_)
    nxt = {"h": LEAD, "s": P3_PRE}
    slotq = []
    def want(limit_slot):
        while nxt["s"] <= limit_slot and nxt["s"] < NSLOT:
            slotq.extend(pw_loads(p, nxt["s"])); nxt["s"] += 1
    stamp(p, "p3 setup")
    mf = [ent(u, ks) for ks in range(32) for u in range(4)]
    for u in range(4): mf[u]["C"] = "0"
    want(7)
    for i, m in enumerate(mf):
        if i % 4 == 0: m["vm"] = f"h{m['ks']}"
        def post(m=m, i=i):
            if i % 4 == 0 and nxt["h"] < 32: hload(nxt["h"]); nxt["h"] += 1
            if i % 4 == 2:
                if not slotq and nxt["h"] >= 32: want(9)
                if slotq: slotq.pop(0)()
            if i >= 36:
                for _ in range(1 + (i & 1)):
                    if prep: p(prep.pop(0))
        m["post"] = post
    stream128(p, mf, WF, 8, 7)
    while prep: p(prep.pop(0))
    while slotq: slotq.pop(0)()
    want(9)
    while slotq: slotq.pop(0)()
    rs_store()
    for u in range(4): aug(u, add=True)
    stamp(p, "p3 pass1")
    wd_setup(p)
    wdq = [f for k in range(NA) for f in wd_load(p, k)]
    for n, fl in ((4, (0, 1)), (5, (2, 3)), (6, (4, 5))):
        aug(n)
        fill = []
        for f_ in fl: fill += glu_ops(f_)
        mf = [ent(n, ks) for ks in range(32)]
        for i, m in enumerate(mf):
            def post(m=m, i=i, n=n):
                if n == 4 and i == 0: want(13)
                if slotq: slotq.pop(0)()
                elif wdq and i % 2 == 0: wdq.pop(0)()
            m["post"] = post
        stream128(p, mf, WF, 8, 7, fill=fill, emit=emit)
        stamp(p, f"p3 frag {n}")
    assert nxt["s"] == NSLOT and not slotq
    while wdq: wdq.pop(0)()
    p("s_barrier")
    return glu_ops(6), emit

NA = 16
def wd_reg(k, cg):
    if k < NA: return f"a[{128+8*k+4*cg}:{128+8*k+4*cg+3}]"
    b = (128 + 8*(k - 16)) if k < 22 else (188 + 8*(k - 22))
    return f"v[{b+4*cg}:{b+4*cg+3}]"
def wd_setup(p):
    p(f"s_mul_i32 s47, s{S_WAVE}, {28*16384}\ns_lshl_b32 s48, s27, 11\ns_add_u32 s47, s47, s48\ns_add_u32 s47, s47, {WS_WDP:#x}")
def wd_load(p, k):
    def f0():
        p(f"s_add_u32 s49, s47, {k*16384}")
        p.vm(f"buffer_load_dwordx4 {wd_reg(k, 0)}, v4, s[{R_WS}:{R_WS+3}], s49 offen sc1", f"d{k}")
    def f1(): p.vm(f"buffer_load_dwordx4 {wd_reg(k, 1)}, v4, s[{R_WS}:{R_WS+3}], s49 offen offset:1024 sc1", f"d{k}")
    return [f0, f1]

def p4(p):
    vX = 4
    HB = 64
    RING = 8
    p(f"s_lshr_b32 s31, s26, 1")
    p(f"s_mul_i32 s33, s26, {2*112*1024}\ns_mul_i32 s34, s{S_WAVE}, {28*1024}\ns_add_u32 s33, s33, s34\ns_add_u32 s33, s33, {WS_HH:#x}\ns_add_u32 s34, s33, {112*1024}")
    def bulk4():
        paced(p, [f for k in range(NA, 28) for f in wd_load(p, k)])
    wait_go(p, 2, 31, bulk=bulk4, lines=16)
    stamp(p, "S4 passed")
    def hload(k):
        sl = k % RING
        def f0():
            if k % 4 == 0 and k: p("s_add_u32 s33, s33, 4096\ns_add_u32 s34, s34, 4096")
            p.vm(f"buffer_load_dwordx4 v[{HB+8*sl}:{HB+8*sl+3}], v{vX}, s[{R_WS}:{R_WS+3}], s33 offen offset:{(k%4)*1024} sc1", f"k{k}")
        def f1(): p.vm(f"buffer_load_dwordx4 v[{HB+8*sl+4}:{HB+8*sl+7}], v{vX}, s[{R_WS}:{R_WS+3}], s34 offen offset:{(k%4)*1024} sc1", f"k{k}")
        return [f0, f1]
    for k in range(RING - 1):
        for f in hload(k): f()
    p(f"s_lshr_b32 s36, s{S_WAVE}, 1\ns_lshl_b32 s35, s26, 1\ns_add_u32 s35, s35, s36\ns_lshl_b32 s35, s35, 7\ns_add_u32 s35, s35, {WS_RS:#x}\nv_and_b32 v9, 31, v1\nv_lshlrev_b32 v9, 2, v9")
    p.vm(f"buffer_load_dword v56, v9, s[{R_WS}:{R_WS+3}], s35 offen sc1", "rs")
    for k in range(28):
        sl = k % RING
        p.wait(vm=[f"k{k}", f"d{k}"])
        n = k + RING - 1
        pend = hload(n) if n < 28 else []
        for cg in range(2):
            for tg in range(2):
                a_ = 32*cg + 16*tg; h = HB + 8*sl + 4*tg
                p(f"v_mfma_f32_32x32x16_bf16 a[{a_}:{a_+15}], {wd_reg(k, cg)}, v[{h}:{h+3}], {'0' if k == 0 else f'a[{a_}:{a_+15}]'}")
                if pend and cg == 0: pend.pop(0)()
    stamp(p, "p4 main")
    RS_ = 17408
    reduce_write(p, 0, RS_)
    p(f"s_lshr_b32 s36, s{S_WAVE}, 1\ns_and_b32 s37, s{S_WAVE}, 1\ns_mul_i32 s38, s36, {32*272}\ns_lshl_b32 s39, s37, 7\ns_add_u32 s38, s38, s39")
    p("v_and_b32 v10, 31, v1\nv_mul_u32_u24 v10, 272, v10\nv_lshrrev_b32 v11, 5, v1\nv_lshlrev_b32 v11, 4, v11\nv_add_u32 v10, v10, v11\nv_add_u32 v10, s38, v10")
    D = 64
    for w in range(4):
        for b_ in range(4):
            p.ds(f"ds_read_b128 v[{D+16*w+4*b_}:{D+16*w+4*b_+3}], v10 offset:{w*RS_ + b_*32}", f"rr{w}")
    p("v_and_b32 v9, 31, v1\nv_lshlrev_b32 v9, 10, v9\nv_lshrrev_b32 v12, 5, v1\nv_lshlrev_b32 v12, 4, v12\nv_add_u32 v9, v9, v12")
    p("s_lshl_b32 s32, s26, 16\ns_lshl_b32 s33, s36, 15\ns_add_u32 s32, s32, s33\ns_lshl_b32 s33, s27, 7\ns_add_u32 s32, s32, s33\ns_lshl_b32 s33, s37, 6\ns_add_u32 s32, s32, s33")
    srd(p, 12, P_OUT, 2048*512*2)
    T = 128
    for i in range(8): p(f"v_lshlrev_b32 v{T+2*i}, 16, v{HKEEP+i}\nv_and_b32 v{T+2*i+1}, 0xffff0000, v{HKEEP+i}")
    p.wait(vm="rs", ds="rr1")
    for i in range(0, 16, 2): p(f"v_pk_add_f32 v[{D+i}:{D+i+1}], v[{D+i}:{D+i+1}], v[{D+16+i}:{D+16+i+1}]")
    p.wait(ds="rr3")
    for i in range(0, 16, 2): p(f"v_pk_add_f32 v[{D+32+i}:{D+32+i+1}], v[{D+32+i}:{D+32+i+1}], v[{D+48+i}:{D+48+i+1}]")
    for i in range(0, 16, 2): p(f"v_pk_add_f32 v[{D+i}:{D+i+1}], v[{D+i}:{D+i+1}], v[{D+32+i}:{D+32+i+1}]")
    for i in range(0, 16, 2): p(f"v_pk_fma_f32 v[{D+i}:{D+i+1}], v[{D+i}:{D+i+1}], v[56:57], v[{T+i}:{T+i+1}] op_sel_hi:[1,0,1]")
    Q = 160
    for i in range(8): p(f"v_cvt_pk_bf16_f32 v{Q+i}, v{D+2*i}, v{D+2*i+1}")
    for m in range(2):
        p(f"v_permlane32_swap_b32 v{Q+4*m}, v{Q+4*m+2}\nv_permlane32_swap_b32 v{Q+4*m+1}, v{Q+4*m+3}")
    for m in range(2):
        p.vm(f"buffer_store_dwordx4 v[{Q+4*m}:{Q+4*m+3}], v9, s[12:15], s32 offen offset:{32*m}", "ost")

def mega():
    p = Prog()
    NSTAMP[0] = 0; STAMP_NAMES.clear()
    p("s_getpc_b64 s[62:63]")
    p("s_cmp_ge_u32 s2, 256\ns_cbranch_scc1 L_end")
    p("s_load_dwordx16 s[64:79], s[0:1], 0\ns_load_dwordx4 s[80:83], s[0:1], 64\ns_load_dwordx2 s[84:85], s[0:1], 80")
    p(f"v_and_b32 v1, 63, v0\nv_lshrrev_b32 v2, 6, v0\nv_readfirstlane_b32 s{S_WAVE}, v2")
    if STAMPS: p("v_mov_b32 v255, 0\ns_memrealtime s[96:97]\ns_waitcnt lgkmcnt(0)\nv_writelane_b32 v255, s96, 63")
    if PADTO: p("s_memrealtime s[94:95]")
    stamp(p, "entry")
    roles(p)
    p0(p)
    p1(p)
    p2(p)
    tail, emit = p3(p)
    for x in tail: emit(x)
    p.wait(vm="hh")
    arrive_line(p, 2, 28, 29)
    stamp(p, "p3 hh flag")
    p4(p)
    if STAMPS:
        stamp(p, "p4 stores issued")
        p("s_waitcnt vmcnt(0)")
        stamp(p, "end")
        p("s_memrealtime s[96:97]\ns_waitcnt lgkmcnt(0)\nv_writelane_b32 v255, s96, 62")
        p(f"s_lshl_b32 s58, s2, 2\ns_add_u32 s58, s58, s{S_WAVE}\ns_lshl_b32 s58, s58, 8\ns_add_u32 s58, s58, {WS_DBG:#x}\nv_lshlrev_b32 v2, 2, v1")
        p(f"buffer_store_dword v255, v2, s[{R_WS}:{R_WS+3}], s58 offen")
        if DBGOUT:
            sel = ["S1 passed", "p1 pass A", "p1 kv atomics issued", "p1 q softmax", "S2 passed", "p1 o flag", "S2b passed", "p2 h flag", "S3 passed", "p3 pass1", "p3 pass2c", "S4 passed", "p4 main", "end"]
            p("s_mov_b32 s40, s82\ns_and_b32 s41, s83, 0xffff\ns_mov_b32 s42, 256\ns_mov_b32 s43, 0x20000")
            p("v_readlane_b32 s50, v255, 0")
            for j_, nm_ in enumerate(sel):
                i_ = STAMP_NAMES.index(nm_)
                p(f"v_readlane_b32 s51, v255, {i_}\ns_nop 3\ns_sub_u32 s51, s51, s50\nv_writelane_b32 v254, s51, {j_}")
            p("v_readlane_b32 s51, v255, 63\ns_nop 3\ns_not_b32 s51, s51\nv_writelane_b32 v254, s51, 14")
            p("v_readlane_b32 s51, v255, 62\ns_nop 3\nv_writelane_b32 v254, s51, 15")
            p("v_lshlrev_b32 v2, 2, v1\ns_mov_b64 exec, 0xffff\nbuffer_atomic_umax v254, v2, s[40:43], 0 offen\ns_mov_b64 exec, -1")
    if PADTO:
        PL = p.newlabel("PAD")
        p.label(PL)
        p(f"s_memrealtime s[96:97]\ns_waitcnt lgkmcnt(0)\ns_sub_u32 s96, s96, s94\ns_cmp_lt_u32 s96, {PADTO}\ns_cbranch_scc1 {PL}")
    p.label("L_end")
    p("s_endpgm")
    p.label("L_codeend")
    return p

def build():
    p = mega()
    t, d = kernel_text(NAME + "_kernel", p, 256, 256, sgpr=100)
    print(f"mega: {p.count()} instrs, {p.nops if hasattr(p,'nops') else 0} nop states", file=sys.stderr)
    txt = f"; @launch grid=(256,1,1) block=(256,1,1) lds={LDS_BYTES}\n" + '.amdgcn_target "amdgcn-amd-amdhsa--gfx950"\n' + t
    txt += '.section .rodata,"a"\n.p2align 6\n' + d
    return txt

if __name__ == "__main__":
    for a_ in list(sys.argv):
        if a_.startswith("--set="):
            k_, v_ = a_[6:].split("="); globals()[k_] = int(v_); sys.argv.remove(a_)
    if "--stamps" in sys.argv:
        STAMPS = True; sys.argv.remove("--stamps")
    out = sys.argv[1] if len(sys.argv) > 1 else "mega.s"
    txt = build()
    open(out, "w").write(txt)
    if STAMPS: open(out + ".names", "w").write("\n".join(STAMP_NAMES))
```

```python
import sys
from dsl import Prog, kernel_text

NAME = "sequential_preLN__linear_kernel_hedgehog__glu_gated_glu__prompt"
WS_XN   = 0x000000
WS_OF   = 0x200000
WS_KV   = 0x400000
WS_HF   = 0x500000
WS_ST   = 0x700000
WS_HH   = 0x800000
WS_CS   = 0xF00000
WS_RS   = 0xF10000
WS_FL   = 0xF20000
WS_EP   = 0xF30000
WS_F1   = 0xF80000
WS_CNT  = 0xF90000
WS_FL2  = 0xFB0000
WS_GO   = 0xFA0000
WS_DBG  = 0xF40000
WS_WP   = 0x1000000
WS_WDP  = 0x1400000
WS_SIZE = 0x1900000
F1, F2, F3, F4, F5, F6, F7 = (WS_FL + i*4096 for i in range(7))
LOG2E = 0x3fb8aa3b
STAMPS = False
TOUCH = True
LINES = 1
DUMP = 0
PREP0 = 80
PADTO = 0
DBGOUT = 0
BULK0 = 1
CODEPF = 1
CODE_LINES_PER_WG = 10
CODE_BYTES = 40960
PACE0 = 40
DELAY0 = 0
PACE = 40
SLEEP = 2
NSTAMP = [0]
SPIN = 1 << 18

S_WAVE, S_X, S_I, S_TAG = 20, 21, 22, 60
P_X, P_WQKV, P_WPHI, P_WO, P_WG, P_WU, P_WD, P_OUT, P_WS = 64, 66, 68, 70, 74, 76, 78, 80, 84
R_WS = 4

def srd(p, d, ptr, size, shift=0):
    if shift:
        p(f"s_sub_u32 s{d}, s{ptr}, {shift}\ns_subb_u32 s{d+1}, s{ptr+1}, 0\ns_and_b32 s{d+1}, s{d+1}, 0xffff")
    else:
        p(f"s_mov_b32 s{d}, s{ptr}\ns_and_b32 s{d+1}, s{ptr+1}, 0xffff")
    p(f"s_mov_b32 s{d+2}, {size + shift:#x}\ns_mov_b32 s{d+3}, 0x20000")

def stamp(p, name):
    if not STAMPS: return
    i = NSTAMP[0]; NSTAMP[0] += 1
    STAMP_NAMES.append(name)
    p(f"s_memtime s[98:99]\ns_waitcnt lgkmcnt(0)\nv_writelane_b32 v255, s98, {i}")
STAMP_NAMES = []

def flag_store(p, arr, sblock, sword, vt=(2, 3)):
    p(f"s_lshl_b32 s58, s{sblock}, 8\ns_lshl_b32 s59, s{sword}, 2\ns_add_u32 s58, s58, s59\ns_add_u32 s58, s58, {arr:#x}")
    p(f"v_mov_b32 v{vt[0]}, s{S_TAG}\nv_mov_b32 v{vt[1]}, 0")
    p("s_mov_b64 exec, 1")
    p.vm(f"buffer_store_dword v{vt[0]}, v{vt[1]}, s[{R_WS}:{R_WS+3}], s58 offen sc1", "flag")
    p("s_mov_b64 exec, -1")

def poll(p, arr, sblock, nwords=64, extra=None, vt=(2, 3), barrier=True, always=False, arr2=None):
    L = p.newlabel("PL"); D = p.newlabel("PD")
    if not always: p(f"s_cmp_lg_u32 s{S_WAVE}, 0\ns_cbranch_scc1 {D}")
    if arr2 is not None:
        p(f"s_lshl_b32 s55, s{arr2[1]}, 8\ns_add_u32 s55, s55, {arr2[0]:#x}\nv_and_b32 v18, 63, v0\nv_min_u32 v18, {arr2[2]-1}, v18\nv_lshlrev_b32 v18, 2, v18")
    p(f"s_lshl_b32 s58, s{sblock}, 8\ns_add_u32 s58, s58, {arr:#x}")
    p(f"v_and_b32 v{vt[0]}, 63, v0")
    if nwords < 64: p(f"v_min_u32 v{vt[0]}, {nwords-1}, v{vt[0]}")
    p(f"v_lshlrev_b32 v{vt[0]}, 2, v{vt[0]}")
    if extra is not None:
        pass
    p(f"s_mov_b32 s59, {SPIN}")
    p.label(L)
    p(f"buffer_load_dword v{vt[1]}, v{vt[0]}, s[{R_WS}:{R_WS+3}], s58 offen sc1")
    if extra is not None:
        p(f"v_mov_b32 v19, 0\nbuffer_load_dword v19, v19, s[{R_WS}:{R_WS+3}], s{extra} offen sc1")
    if arr2 is not None:
        p(f"buffer_load_dword v19, v18, s[{R_WS}:{R_WS+3}], s55 offen sc1")
    p("s_waitcnt vmcnt(0)")
    p(f"v_cmp_ne_u32 vcc, s{S_TAG}, v{vt[1]}")
    if extra is not None or arr2 is not None:
        p(f"v_cmp_ne_u32 s[56:57], s{S_TAG}, v19\ns_or_b64 vcc, vcc, s[56:57]")
    p(f"s_cbranch_vccz {D}")
    if SLEEP: p(f"s_sleep {SLEEP}")
    p(f"s_sub_u32 s59, s59, 1\ns_cmp_lg_u32 s59, 0\ns_cbranch_scc1 {L}")
    p.label(D)
    if barrier: p("s_barrier")

def paced(p, fns):
    for f in fns:
        n0 = len(p.vmq)
        f()
        if len(p.vmq) > PACE:
            p(f"s_waitcnt vmcnt({PACE})"); p.vmq = p.vmq[-PACE:]

def poll_with_bulk(p, bulk, *args, **kw):
    A = p.newlabel("BK"); B = p.newlabel("BK")
    q0 = list(p.vmq)
    p(f"s_cmp_eq_u32 s{S_WAVE}, 0\ns_cbranch_scc1 {A}")
    bulk()
    q1 = list(p.vmq)
    p.label(A)
    poll(p, *args, **kw)
    p(f"s_cmp_lg_u32 s{S_WAVE}, 0\ns_cbranch_scc1 {B}")
    p.vmq = list(q0)
    bulk()
    p.label(B)
    p.vmq = q1

def arrive(p, k, sblock, n):
    D = p.newlabel("AR")
    p("s_barrier")
    p(f"s_cmp_lg_u32 s{S_WAVE}, 0\ns_cbranch_scc1 {D}")
    p(f"s_lshl_b32 s58, s{sblock}, 9\ns_add_u32 s58, s58, {WS_CNT + k*128:#x}\nv_mov_b32 v2, 1\nv_mov_b32 v3, 0\ns_mov_b64 exec, 1")
    p(f"buffer_atomic_add v2, v3, s[{R_WS}:{R_WS+3}], s58 offen sc0 sc1\ns_waitcnt vmcnt(0)\nv_readfirstlane_b32 s59, v2\ns_mov_b64 exec, -1")
    p(f"s_cmp_lg_u32 s59, {n-1}\ns_cbranch_scc1 {D}")
    p(f"s_lshl_b32 s58, s{sblock}, 7\ns_add_u32 s58, s58, {WS_GO + k*2048:#x}\nv_mov_b32 v2, s{S_TAG}\ns_mov_b64 exec, 1")
    p(f"buffer_store_dword v2, v3, s[{R_WS}:{R_WS+3}], s58 offen sc1\ns_mov_b64 exec, -1")
    p.label(D)

def arrive_line(p, k, sblock, smember):
    D = p.newlabel("AR")
    p("s_barrier")
    p(f"s_cmp_lg_u32 s{S_WAVE}, 0\ns_cbranch_scc1 {D}")
    p(f"s_lshl_b32 s58, s{sblock}, 4\ns_add_u32 s58, s58, s{smember}\ns_lshl_b32 s58, s58, 7\ns_add_u32 s58, s58, {WS_FL2 + k*32768:#x}")
    p(f"v_mov_b32 v2, s{S_TAG}\nv_mov_b32 v3, 0\ns_mov_b64 exec, 1\nbuffer_store_dword v2, v3, s[{R_WS}:{R_WS+3}], s58 offen sc1\ns_mov_b64 exec, -1")
    p.label(D)

def wait_go(p, k, sblock, arr2=None, bulk=None, lines=0):
    A = p.newlabel("BK"); B = p.newlabel("BK"); L = p.newlabel("PL"); D = p.newlabel("PD")
    q0 = list(p.vmq)
    if BULK0 and bulk:
        bulk(); bulk = None
        q1 = list(p.vmq)
        p(f"s_cmp_lg_u32 s{S_WAVE}, 0\ns_cbranch_scc1 {D}")
    else:
        p(f"s_cmp_eq_u32 s{S_WAVE}, 0\ns_cbranch_scc1 {A}")
        if bulk:
            p("s_sleep 1")
            bulk()
        q1 = list(p.vmq)
        p(f"s_branch {D}")
    p.label(A)
    if lines:
        p(f"s_lshl_b32 s58, s{sblock}, 11\ns_add_u32 s58, s58, {WS_FL2 + k*32768:#x}\nv_min_u32 v2, {lines-1}, v1\nv_lshlrev_b32 v2, 7, v2\ns_mov_b32 s59, {SPIN}")
    else:
        p(f"s_lshl_b32 s58, s{sblock}, 7\ns_add_u32 s58, s58, {WS_GO + k*2048:#x}\nv_mov_b32 v2, 0\ns_mov_b32 s59, {SPIN}")
    if arr2 is not None:
        p(f"s_lshl_b32 s55, s{arr2[1]}, 8\ns_add_u32 s55, s55, {arr2[0]:#x}\nv_and_b32 v18, 63, v0\nv_min_u32 v18, {arr2[2]-1}, v18\nv_lshlrev_b32 v18, 2, v18")
    p.label(L)
    p(f"buffer_load_dword v3, v2, s[{R_WS}:{R_WS+3}], s58 offen sc1")
    if arr2 is not None: p(f"buffer_load_dword v19, v18, s[{R_WS}:{R_WS+3}], s55 offen sc1")
    p(f"s_waitcnt vmcnt(0)\nv_cmp_ne_u32 vcc, s{S_TAG}, v3")
    if arr2 is not None: p(f"v_cmp_ne_u32 s[56:57], s{S_TAG}, v19\ns_or_b64 vcc, vcc, s[56:57]")
    p(f"s_cbranch_vccz {D}")
    if SLEEP: p(f"s_sleep {SLEEP}")
    p(f"s_sub_u32 s59, s59, 1\ns_cmp_lg_u32 s59, 0\ns_cbranch_scc1 {L}")
    p.label(D)
    p("s_barrier")
    if bulk:
        p(f"s_cmp_lg_u32 s{S_WAVE}, 0\ns_cbranch_scc1 {B}")
        p.vmq = list(q0)
        bulk()
        p.label(B)
    p.vmq = q1

def wave_sum(p, regs, tmp):
    for ctl in ("quad_perm:[1,0,3,2]", "quad_perm:[2,3,0,1]", "row_half_mirror", "row_mirror"):
        for r in regs: p(f"v_add_f32_dpp v{r}, v{r}, v{r} {ctl} row_mask:0xf bank_mask:0xf")
    for sw in ("v_permlane16_swap_b32", "v_permlane32_swap_b32"):
        for r, t in zip(regs, tmp): p(f"v_mov_b32 v{t}, v{r}")
        for r, t in zip(regs, tmp): p(f"{sw} v{r}, v{t}")
        for r, t in zip(regs, tmp): p(f"v_add_f32 v{r}, v{r}, v{t}")

def tr_addr(p, dst, tmp, pitch, hrows):
    p(f"v_lshrrev_b32 v{dst}, 5, v1\nv_mul_u32_u24 v{dst}, {hrows}, v{dst}\nv_bfe_u32 v{tmp}, v1, 2, 2\nv_add_u32 v{dst}, v{dst}, v{tmp}\nv_mul_u32_u24 v{dst}, {pitch}, v{dst}")
    p(f"v_bfe_u32 v{tmp}, v1, 4, 1\nv_lshlrev_b32 v{tmp}, 5, v{tmp}\nv_add_u32 v{dst}, v{dst}, v{tmp}\nv_and_b32 v{tmp}, 3, v1\nv_lshlrev_b32 v{tmp}, 3, v{tmp}\nv_add_u32 v{dst}, v{dst}, v{tmp}")

def softmax_ops(blocks, sL, tmp):
    L = []; p = L.append
    n = len(blocks)
    M = [tmp + 4*i for i in range(n)]; T = [m + 1 for m in M]; S = [m + 2 for m in M]
    for (b, o), m in zip(blocks, M): p(f"v_max3_f32 v{m}, v{b}, v{b+1}, v{b+2}")
    for (b, o), m in zip(blocks, M): p(f"v_max3_f32 v{m}, v{m}, v{b+3}, v{b+4}")
    for (b, o), m in zip(blocks, M): p(f"v_max3_f32 v{m}, v{m}, v{b+5}, v{b+6}")
    for (b, o), m in zip(blocks, M): p(f"v_max_f32 v{m}, v{m}, v{b+7}")
    for m, t in zip(M, T): p(f"v_mov_b32 v{t}, v{m}")
    for m, t in zip(M, T): p(f"v_permlane32_swap_b32 v{m}, v{t}")
    for m, t in zip(M, T): p(f"v_max_f32 v{m}, v{m}, v{t}")
    for m in M: p(f"v_mul_f32 v{m}, s{sL}, v{m}")
    for (b, o), m in zip(blocks, M):
        for i in range(4):
            p(f"v_pk_fma_f32 v[{b+2*i}:{b+2*i+1}], v[{b+2*i}:{b+2*i+1}], s[{sL}:{sL+1}], v[{m}:{m+1}] op_sel_hi:[1,1,0] neg_lo:[0,0,1] neg_hi:[0,0,1]")
    for (b, o), m in zip(blocks, M):
        for i in range(8): p(f"v_exp_f32 v{b+i}, v{b+i}")
    for (b, o), s_ in zip(blocks, S): p(f"v_pk_add_f32 v[{s_}:{s_+1}], v[{b}:{b+1}], v[{b+2}:{b+3}]")
    for (b, o), m in zip(blocks, M): p(f"v_pk_add_f32 v[{m}:{m+1}], v[{b+4}:{b+5}], v[{b+6}:{b+7}]")
    for m, s_ in zip(M, S): p(f"v_pk_add_f32 v[{m}:{m+1}], v[{m}:{m+1}], v[{s_}:{s_+1}]")
    for m, t in zip(M, T): p(f"v_add_f32 v{m}, v{m}, v{t}")
    for m, t in zip(M, T): p(f"v_mov_b32 v{t}, v{m}")
    for m, t in zip(M, T): p(f"v_permlane32_swap_b32 v{m}, v{t}")
    for m, t in zip(M, T): p(f"v_add_f32 v{m}, v{m}, v{t}")
    for m in M: p(f"v_rcp_f32 v{m}, v{m}")
    for (b, o), m in zip(blocks, M):
        for i in range(4): p(f"v_pk_mul_f32 v[{b+2*i}:{b+2*i+1}], v[{b+2*i}:{b+2*i+1}], v[{m}:{m+1}] op_sel_hi:[1,0]")
    for (b, o), m in zip(blocks, M):
        for i in range(4): p(f"v_cvt_pk_bf16_f32 v{o+i}, v{b+2*i}, v{b+2*i+1}")
    return L

def stream(p, mf, ring, R, L, pend=None, fill=None, emit=None, fill_total=None, pend_every=1):
    pend = pend if pend is not None else []
    fill = fill if fill is not None else []
    emit = emit or p
    n = len(mf)
    uid = p.newlabel("t")
    def rd(i):
        m = mf[i]
        if m.get("pre"): m["pre"]()
        b = ring + 4*(i % R)
        p.ds(f"ds_read_b64_tr_b16 v[{b}:{b+1}], v{m['areg']} offset:{m['off'][0]}", f"{uid}_{i}")
        p.ds(f"ds_read_b64_tr_b16 v[{b+2}:{b+3}], v{m['areg']} offset:{m['off'][1]}", f"{uid}_{i}")
    for i in range(min(L, n)): rd(i)
    for i in range(n):
        m = mf[i]
        if m.get("before"): m["before"]()
        tags = [f"{uid}_{i}"] + ([f"{uid}_{i+1}"] if (i % 2 == 0 and i + 1 < n and i + 1 < i + L - 1) else [])
        p.wait(vm=m.get("vm"), ds=tags)
        b = ring + 4*(i % R)
        p(f"v_mfma_f32_32x32x16_bf16 {m['acc']}, v[{b}:{b+3}], {m['B']}, {m.get('C', m['acc'])}")
        if i + L < n: rd(i + L)
        if m.get("post"): m["post"]()
        if pend and i % pend_every == 0: pend.pop(0)()
        if fill:
            k = -(-len(fill) // max(n - i - 2, 1))
            for _ in range(min(k, len(fill))): emit(fill.pop(0))

def stream128(p, mf, ring, R, L, wait_every=4, fill=None, emit=None, per=None):
    fill = fill if fill is not None else []
    emit = emit or p
    n = len(mf); uid = p.newlabel("t")
    def rd(i):
        m = mf[i]
        if m.get("pre"): m["pre"]()
        b = ring + 4*(i % R)
        p.ds(f"ds_read_b128 v[{b}:{b+3}], v{m['areg']} offset:{m['off']}", f"{uid}_{i}")
    for i in range(min(L, n)): rd(i)
    for i in range(n):
        m = mf[i]
        last = min(n - 1, i + wait_every - 1) if i % wait_every == 0 else i
        p.wait(vm=m.get("vm"), ds=[f"{uid}_{j}" for j in range(i, last + 1)])
        b = ring + 4*(i % R)
        p(f"v_mfma_f32_32x32x16_bf16 {m['acc']}, v[{b}:{b+3}], {m['B']}, {m.get('C', m['acc'])}")
        if i + L < n: rd(i + L)
        if m.get("post"): m["post"]()
        if fill:
            k = -(-len(fill) // max(n - i - 2, 1))
            for _ in range(min(k, len(fill))): emit(fill.pop(0))

def stream2(p, mf, ring, R, L, pend=None, pend_at=None):
    pend = pend if pend is not None else []
    uid = p.newlabel("t")
    frags = [i for i, m in enumerate(mf) if not m.get("share")]
    fidx = {}
    c = -1
    for i, m in enumerate(mf):
        if not m.get("share"): c += 1
        fidx[i] = c
    nf = len(frags)
    def rd(f):
        m = mf[frags[f]]
        if m.get("pre"): m["pre"]()
        b = ring + 4*(f % R)
        p.ds(f"ds_read_b64_tr_b16 v[{b}:{b+1}], v{m['areg']} offset:{m['off'][0]}", f"{uid}_{f}")
        p.ds(f"ds_read_b64_tr_b16 v[{b+2}:{b+3}], v{m['areg']} offset:{m['off'][1]}", f"{uid}_{f}")
    for f in range(min(L, nf)): rd(f)
    for i, m in enumerate(mf):
        f = fidx[i]
        p.wait(vm=m.get("vm"), ds=f"{uid}_{f}")
        b = ring + 4*(f % R)
        p(f"v_mfma_f32_32x32x16_bf16 {m['acc']}, v[{b}:{b+3}], {m['B']}, {m['acc']}")
        if not m.get("share") and f + L < nf: rd(f + L)
        if m.get("post"): m["post"]()

def interleave(p, ops, fns, every):
    fns = list(fns)
    for i, x in enumerate(ops):
        p(x)
        if fns and i % every == every - 1: fns.pop(0)()
    for f in fns: f()

def wsrc_swz128(p, dst, tmp):
    p(f"v_lshrrev_b32 v{dst}, 3, v1\nv_lshlrev_b32 v{dst}, 10, v{dst}")
    p(f"v_bfe_u32 v{tmp}, v1, 4, 1\nv_lshlrev_b32 v{tmp}, 2, v{tmp}\nv_xor_b32 v{tmp}, v{tmp}, v1\nv_and_b32 v{tmp}, 7, v{tmp}\nv_lshlrev_b32 v{tmp}, 4, v{tmp}")
    p(f"v_add_u32 v{dst}, v{dst}, v{tmp}")

def tr_addr_swz128(p, d0, d1, tmp):
    p(f"v_lshrrev_b32 v{d0}, 5, v1\nv_lshlrev_b32 v{d0}, 2, v{d0}\nv_bfe_u32 v{tmp}, v1, 2, 2\nv_add_u32 v{d0}, v{d0}, v{tmp}\nv_lshlrev_b32 v{d0}, 7, v{d0}")
    p(f"v_bfe_u32 v{tmp}, v1, 3, 1\nv_lshlrev_b32 v{tmp}, 6, v{tmp}\nv_add_u32 v{d0}, v{d0}, v{tmp}")
    p(f"v_bfe_u32 v{tmp}, v1, 4, 1\nv_lshlrev_b32 v{tmp}, 5, v{tmp}\nv_add_u32 v{d0}, v{d0}, v{tmp}")
    p(f"v_and_b32 v{tmp}, 3, v1\nv_lshlrev_b32 v{tmp}, 3, v{tmp}\nv_add_u32 v{d0}, v{d0}, v{tmp}")
    p(f"v_xor_b32 v{d1}, 64, v{d0}")

L_W1, L_WPHI, L_SCR, L_KVP = 0, 98304, 102400, 139264
W1BASE = {1: 0, 2: 32768, 0: 65536}
L_CS = 102400
L_WO, L_RED2 = 0, 65536
K3_NR = 10
L_WD_W = 36864
L_DT = 102400 + 17408
L_CSP = 147456
LDS_BYTES = 160*1024

def roles(p):
    p(f"s_and_b32 s{S_X}, s2, 7\ns_lshr_b32 s{S_I}, s2, 3")
    p(f"s_lshr_b32 s24, s{S_X}, 1\ns_lshl_b32 s24, s24, 2\ns_lshr_b32 s23, s{S_I}, 3\ns_add_u32 s24, s24, s23")
    p(f"s_and_b32 s25, s{S_X}, 1\ns_lshl_b32 s25, s25, 3\ns_and_b32 s23, s{S_I}, 7\ns_add_u32 s25, s25, s23")
    p(f"s_lshl_b32 s26, s{S_X}, 2\ns_lshr_b32 s23, s{S_I}, 3\ns_add_u32 s26, s26, s23\ns_and_b32 s27, s{S_I}, 7")
    p(f"s_lshr_b32 s28, s{S_X}, 2\ns_lshl_b32 s28, s28, 3\ns_lshr_b32 s23, s{S_I}, 2\ns_add_u32 s28, s28, s23")
    p(f"s_and_b32 s29, s{S_X}, 3\ns_lshl_b32 s29, s29, 2\ns_and_b32 s23, s{S_I}, 3\ns_add_u32 s29, s29, s23")
    p("s_lshr_b32 s30, s2, 4")

def p0(p):
    vX, vW = 4, 5
    R_A, R_B, R_C = 8, 12, 16
    p(f"v_lshlrev_b32 v{vX}, 4, v1")
    DM = p.newlabel("DMAW"); JN = p.newlabel("P0J")
    p(f"s_cmp_ge_u32 s{S_WAVE}, 2\ns_cbranch_scc1 {DM}")
    p(f"s_lshl_b32 s31, s2, 3\ns_lshl_b32 s32, s{S_WAVE}, 2\ns_add_u32 s31, s31, s32\ns_lshl_b32 s32, s31, 10")
    p("v_and_b32 v8, 3, v1\nv_lshrrev_b32 v9, 2, v1\nv_lshlrev_b32 v10, 10, v8\nv_lshlrev_b32 v11, 4, v9\nv_add_u32 v10, v10, v11")
    p("s_waitcnt lgkmcnt(0)")
    srd(p, R_A, P_X, 2048*512*2)
    XI = 12
    srd(p, R_WS, P_WS, WS_SIZE)
    Z = p.newlabel("Z")
    p(f"s_and_b32 s35, s2, 15\ns_xor_b32 s37, s{S_WAVE}, 1\ns_or_b32 s35, s35, s37\ns_cmp_lg_u32 s35, 0\ns_cbranch_scc1 {Z}")
    p("v_mov_b32 v28, 0\nv_mov_b32 v29, 0\nv_mov_b32 v30, 0\nv_mov_b32 v31, 0")
    p(f"s_mul_i32 s35, s30, 4352\ns_add_u32 s35, s35, {WS_KV:#x}")
    for i in range(4): p(f"buffer_store_dwordx4 v[28:31], v{vX}, s[{R_WS}:{R_WS+3}], s35 offen offset:{i*1024} sc1")
    p("s_add_u32 s35, s35, 4096\ns_mov_b64 exec, 0xffff")
    p(f"buffer_store_dwordx4 v[28:31], v{vX}, s[{R_WS}:{R_WS+3}], s35 offen sc1")
    p(f"s_lshl_b32 s35, s30, 9\ns_add_u32 s35, s35, {WS_CNT:#x}\ns_mov_b32 exec_lo, -1")
    p(f"buffer_store_dwordx4 v[28:31], v{vX}, s[{R_WS}:{R_WS+3}], s35 offen sc1")
    p("s_mov_b64 exec, -1")
    p.label(Z)
    for i in range(4): p.vm(f"buffer_load_dwordx4 v[{XI+4*i}:{XI+4*i+3}], v10, s[{R_A}:{R_A+3}], s32 offen offset:{i*256}", "x")
    p(f"s_mov_b32 s59, {WS_EP:#x}\ns_load_dword s{S_TAG}, s[{P_WS}:{P_WS+1}], s59")
    p(f"v_lshlrev_b32 v9, 7, v9\nv_lshlrev_b32 v8, 4, v8\nv_add_u32 v8, v8, v9\ns_lshl_b32 s36, s{S_WAVE}, 6\ns_lshl_b32 s37, s2, 13\ns_add_u32 s36, s36, s37\ns_add_u32 s36, s36, {WS_XN:#x}")
    stamp(p, "p0 issue")
    p.wait(vm="x")
    stamp(p, "p0 x landed")
    B = 32
    for i in range(16): p(f"v_lshlrev_b32 v{B+2*i}, 16, v{XI+i}\nv_and_b32 v{B+2*i+1}, 0xffff0000, v{XI+i}")
    def tree(op_first, dst):
        for i in range(8): op_first(i)
        for w_ in (4, 2, 1):
            for i in range(w_): p(f"v_pk_add_f32 v[{64+2*i}:{65+2*i}], v[{64+2*i}:{65+2*i}], v[{64+2*(i+w_)}:{65+2*(i+w_)}]")
        p(f"v_add_f32 v{dst}, v64, v65")
    def row_reduce(r):
        p(f"v_add_f32_dpp v{r}, v{r}, v{r} row_ror:4 row_mask:0xf bank_mask:0xf\nv_add_f32_dpp v{r}, v{r}, v{r} row_ror:8 row_mask:0xf bank_mask:0xf")
        for sw in ("v_permlane16_swap_b32", "v_permlane32_swap_b32"):
            p(f"v_mov_b32 v{r+1}, v{r}\n{sw} v{r}, v{r+1}\nv_add_f32 v{r}, v{r}, v{r+1}")
    tree(lambda i: p(f"v_pk_add_f32 v[{64+2*i}:{65+2*i}], v[{B+4*i}:{B+4*i+1}], v[{B+4*i+2}:{B+4*i+3}]"), 80)
    row_reduce(80)
    p("v_mul_f32 v80, 0xbb000000, v80")
    for i in range(16): p(f"v_pk_add_f32 v[{B+2*i}:{B+2*i+1}], v[{B+2*i}:{B+2*i+1}], v[80:81] op_sel_hi:[1,0]")
    def sq(i):
        p(f"v_pk_mul_f32 v[{64+2*i}:{65+2*i}], v[{B+4*i}:{B+4*i+1}], v[{B+4*i}:{B+4*i+1}]")
    for i in range(8): sq(i)
    for i in range(8): p(f"v_pk_fma_f32 v[{64+2*i}:{65+2*i}], v[{B+4*i+2}:{B+4*i+3}], v[{B+4*i+2}:{B+4*i+3}], v[{64+2*i}:{65+2*i}]")
    tree(lambda i: None, 82)
    row_reduce(82)
    p("v_mov_b32 v84, 0x3727c5ac\nv_fmac_f32 v84, 0x3b000000, v82\nv_rsq_f32 v84, v84")
    for i in range(16): p(f"v_pk_mul_f32 v[{B+2*i}:{B+2*i+1}], v[{B+2*i}:{B+2*i+1}], v[84:85] op_sel_hi:[1,0]")
    for n in range(4):
        for i in range(4): p(f"v_cvt_pk_bf16_f32 v{XI+4*n+i}, v{B+8*n+2*i}, v{B+8*n+2*i+1}")
        if n == 2: p("s_add_u32 s36, s36, 4096")
        p.vm(f"buffer_store_dwordx4 v[{XI+4*n}:{XI+4*n+3}], v8, s[{R_WS}:{R_WS+3}], s36 offen offset:{(n%2)*2048} sc1", "xn")
    p("s_waitcnt vmcnt(0) lgkmcnt(0)"); p.vmq = []
    p(f"s_mul_i32 s{S_TAG}, s{S_TAG}, 0x9e3779b1\ns_add_u32 s{S_TAG}, s{S_TAG}, 1")
    p(f"s_lshl_b32 s58, s2, 1\ns_add_u32 s58, s58, s{S_WAVE}\ns_lshl_b32 s58, s58, 7\ns_add_u32 s58, s58, {WS_F1:#x}")
    p(f"v_mov_b32 v2, s{S_TAG}\nv_mov_b32 v3, 0\ns_mov_b64 exec, 1")
    p(f"buffer_store_dword v2, v3, s[{R_WS}:{R_WS+3}], s58 offen sc1\ns_mov_b64 exec, -1")
    stamp(p, "p0 flag")
    p(f"s_cmp_lg_u32 s{S_WAVE}, 0\ns_cbranch_scc1 {JN}")
    srd(p, R_C, P_WPHI, 32*16*16*2)
    p(f"s_lshl_b32 s35, s25, 10\ns_mov_b32 m0, {L_WPHI}")
    p(f"buffer_load_dwordx4 v{vX}, s[{R_C}:{R_C+3}], s35 offen lds")
    p(f"s_branch {JN}")
    p.label(DM)
    if CODEPF:
        CP = p.newlabel("CP")
        p(f"s_cmp_lg_u32 s{S_WAVE}, 3\ns_cbranch_scc1 {CP}")
        p(f"s_and_b32 s40, s62, 0xffffff80\ns_and_b32 s41, s63, 0xffff\ns_mov_b32 s42, L_codeend-{NAME}_kernel\ns_mov_b32 s43, 0x20000")
        p(f"s_mul_i32 s35, s{S_I}, {CODE_LINES_PER_WG}\nv_min_u32 v12, {CODE_LINES_PER_WG-1}, v1\nv_add_u32 v12, s35, v12\nv_lshlrev_b32 v12, 7, v12")
        p("buffer_load_dword v13, v12, s[40:43], 0 offen")
        p.label(CP)
    p("s_waitcnt lgkmcnt(0)")
    srd(p, R_B, P_WQKV, 512*1536*2)
    p(f"v_lshrrev_b32 v{vW}, 2, v1\nv_mul_u32_u24 v{vW}, 3072, v{vW}\nv_and_b32 v10, 3, v1\nv_lshlrev_b32 v10, 4, v10\nv_add_u32 v{vW}, v{vW}, v10")
    p(f"s_sub_u32 s32, s{S_WAVE}, 1\ns_lshl_b32 s33, s32, 10\ns_lshl_b32 s34, s25, 6\ns_add_u32 s33, s33, s34")
    p(f"s_sub_u32 s34, s{S_WAVE}, 2\ns_lshl_b32 s34, s34, 15")
    p("s_and_b32 s36, s24, 3\ns_lshl_b32 s36, s36, 1\ns_and_b32 s37, s25, 1\ns_add_u32 s36, s36, s37\ns_lshl_b32 s36, s36, 2")
    for ks in range(32):
        p(f"s_add_u32 s37, s36, {ks}\ns_and_b32 s37, s37, 31\ns_mul_i32 s38, s37, {16*3072}\ns_add_u32 s38, s38, s33\ns_lshl_b32 s39, s37, 10\ns_add_u32 m0, s39, s34")
        if ks >= PACE0: p(f"s_waitcnt vmcnt({PACE0-1})")
        p(f"buffer_load_dwordx4 v{vW}, s[{R_B}:{R_B+3}], s38 offen lds")
    p(f"s_mov_b32 s59, {WS_EP:#x}\ns_load_dword s{S_TAG}, s[{P_WS}:{P_WS+1}], s59")
    srd(p, R_WS, P_WS, WS_SIZE)
    p("s_waitcnt vmcnt(0) lgkmcnt(0)")
    p(f"s_mul_i32 s{S_TAG}, s{S_TAG}, 0x9e3779b1\ns_add_u32 s{S_TAG}, s{S_TAG}, 1")
    stamp(p, "p0 W1 landed")
    p.label(JN)
    p.vmq = []
    p("s_barrier")
    L = p.newlabel("PL"); D = p.newlabel("PD")
    p(f"s_cmp_lg_u32 s{S_WAVE}, 0\ns_cbranch_scc1 {D}")
    stamp(p, "p0 poll start")
    p(f"s_lshl_b32 s35, s24, 5\nv_add_u32 v2, s35, v1\ns_lshl_b32 s35, s25, 5\ns_add_u32 s35, s35, 1\nv_mov_b32 v3, s35\nv_cmp_gt_u32 vcc, 32, v1\nv_cndmask_b32 v2, v3, v2, vcc\nv_lshlrev_b32 v2, 7, v2")
    p(f"s_mov_b32 s58, {WS_F1:#x}\ns_mov_b32 s59, {SPIN}")
    p.label(L)
    p(f"buffer_load_dword v3, v2, s[{R_WS}:{R_WS+3}], s58 offen sc1\ns_waitcnt vmcnt(0)\nv_cmp_ne_u32 vcc, s{S_TAG}, v3\ns_cbranch_vccz {D}")
    if SLEEP: p(f"s_sleep {SLEEP}")
    p(f"s_sub_u32 s59, s59, 1\ns_cmp_lg_u32 s59, 0\ns_cbranch_scc1 {L}")
    p.label(D)
    p("s_barrier")
    stamp(p, "S1 passed")

def touch(p):
    if not TOUCH: return
    E = p.newlabel("TC"); W1 = p.newlabel("TC"); W2 = p.newlabel("TC"); W3 = p.newlabel("TC"); DU = p.newlabel("TC")
    p(f"s_cmp_eq_u32 s{S_WAVE}, 1\ns_cbranch_scc1 {W1}\ns_cmp_eq_u32 s{S_WAVE}, 2\ns_cbranch_scc1 {W2}\ns_cmp_eq_u32 s{S_WAVE}, 3\ns_cbranch_scc1 {W3}")
    p.label(DU)
    p(f"v_mov_b32 v253, 0\ns_mov_b32 s52, {WS_EP:#x}\ns_mov_b64 exec, 1")
    p(f"buffer_load_dword v250, v253, s[{R_WS}:{R_WS+3}], s52 offen\nbuffer_load_dword v251, v253, s[{R_WS}:{R_WS+3}], s52 offen\ns_mov_b64 exec, -1\ns_branch {E}")
    p.label(W1)
    p(f"s_cmp_ge_u32 s2, 224\ns_cbranch_scc1 {DU}")
    p(f"s_cmp_ge_u32 s2, 112\ns_cselect_b32 s54, 112, 0\ns_cselect_b32 s52, s{P_WU}, s{P_WG}\ns_cselect_b32 s53, s{P_WU+1}, s{P_WG+1}\ns_sub_u32 s55, s2, s54")
    srd(p, 48, 52, 512*1792*2)
    p(f"s_and_b32 s56, s55, 3\ns_mul_i32 s56, s56, {128*3584}\ns_lshr_b32 s55, s55, 2\ns_lshl_b32 s55, s55, 7\ns_add_u32 s56, s56, s55\nv_mul_u32_u24 v253, 3584, v1")
    p(f"buffer_load_dword v250, v253, s[48:51], s56 offen\ns_add_u32 s56, s56, {64*3584}\nbuffer_load_dword v251, v253, s[48:51], s56 offen\ns_branch {E}")
    p.label(W2)
    p(f"s_cmp_lt_u32 s2, 144\ns_cbranch_scc1 {DU}")
    srd(p, 48, P_WD, 1792*512*2)
    p("s_sub_u32 s56, s2, 144\ns_lshl_b32 s56, s56, 14\nv_lshlrev_b32 v253, 7, v1")
    p(f"buffer_load_dword v250, v253, s[48:51], s56 offen\ns_add_u32 s56, s56, 8192\nbuffer_load_dword v251, v253, s[48:51], s56 offen\ns_branch {E}")
    p.label(W3)
    srd(p, 48, P_WO, 512*512*2)
    p(f"s_lshl_b32 s56, s{S_I}, 14\nv_lshlrev_b32 v253, 7, v1")
    p(f"buffer_load_dword v250, v253, s[48:51], s56 offen\ns_add_u32 s56, s56, 8192\nbuffer_load_dword v251, v253, s[48:51], s56 offen")
    p.label(E)
    p.vmq += ["tch", "tch"]

def cs_loads(p):
    CSL = p.newlabel("CS")
    p(f"s_cmp_ge_u32 s2, 224\ns_cbranch_scc1 {CSL}")
    p(f"s_cmp_ge_u32 s2, 112\ns_cselect_b32 s54, 112, 0\ns_cselect_b32 s52, s{P_WU}, s{P_WG}\ns_cselect_b32 s53, s{P_WU+1}, s{P_WG+1}")
    p("s_sub_u32 s55, s2, s54")
    srd(p, 48, 52, 512*1792*2)
    p("s_lshr_b32 s56, s55, 2\ns_and_b32 s57, s55, 3")
    p(f"s_lshl_b32 s52, s57, 2\ns_add_u32 s52, s52, s{S_WAVE}\ns_mul_i32 s52, s52, {32*3584}\ns_lshl_b32 s53, s56, 7\ns_add_u32 s52, s52, s53")
    p("v_lshrrev_b32 v56, 3, v1\nv_mul_u32_u24 v56, 3584, v56\nv_bfe_u32 v57, v1, 4, 1\nv_lshlrev_b32 v57, 2, v57\nv_xor_b32 v57, v57, v1\nv_and_b32 v57, 7, v57\nv_lshlrev_b32 v57, 4, v57\nv_add_u32 v56, v56, v57")
    p(f"s_lshl_b32 s53, s{S_WAVE}, 12\ns_add_u32 s53, s53, {L_CS}")
    for n in range(4):
        p(f"s_add_u32 s54, s52, {n*8*3584}\ns_add_u32 m0, s53, {n*1024}")
        p(f"buffer_load_dwordx4 v56, s[48:51], s54 offen lds")
    p.label(CSL)

def dt_loads(p):
    D = p.newlabel("DT")
    p(f"s_cmp_lt_u32 s2, 144\ns_cbranch_scc1 {D}")
    srd(p, 48, P_WD, 1792*512*2)
    p(f"s_sub_u32 s54, s2, 144\ns_lshl_b32 s54, s54, 14\ns_lshl_b32 s55, s{S_WAVE}, 12\ns_add_u32 s54, s54, s55\ns_add_u32 s55, s55, {L_DT}")
    for n in range(4):
        p(f"v_xor_b32 v56, {n << 2}, v1\nv_lshlrev_b32 v56, 4, v56\ns_add_u32 s56, s54, {n*1024}\ns_add_u32 m0, s55, {n*1024}")
        p(f"buffer_load_dwordx4 v56, s[48:51], s56 offen lds")
    p.label(D)

def dt_compute(p):
    D = p.newlabel("DT")
    p(f"s_cmp_lt_u32 s2, 144\ns_cbranch_scc1 {D}")
    p("v_bfe_u32 v18, v1, 2, 2\nv_lshrrev_b32 v19, 5, v1\nv_lshlrev_b32 v19, 2, v19\nv_add_u32 v19, v19, v18\nv_lshlrev_b32 v19, 10, v19\nv_lshlrev_b32 v18, 6, v18\nv_add_u32 v18, v18, v19")
    p(f"v_bfe_u32 v19, v1, 4, 1\nv_lshlrev_b32 v19, 5, v19\nv_add_u32 v18, v18, v19\nv_and_b32 v19, 3, v1\nv_lshlrev_b32 v19, 3, v19\nv_add_u32 v18, v18, v19")
    p(f"s_lshl_b32 s35, s{S_WAVE}, 8\ns_add_u32 s35, s35, {L_DT}")
    for a_ in range(4):
        p(f"v_xor_b32 v19, {a_ << 6}, v18\nv_add_u32 v19, s35, v19")
        p(f"ds_read_b64_tr_b16 v[{40+4*a_}:{41+4*a_}], v19\nds_read_b64_tr_b16 v[{42+4*a_}:{43+4*a_}], v19 offset:8192")
    p(f"s_sub_u32 s36, s2, 144\ns_lshl_b32 s36, s36, 14\ns_lshl_b32 s37, s{S_WAVE}, 12\ns_add_u32 s36, s36, s37\ns_add_u32 s36, s36, {WS_WDP:#x}")
    p("s_waitcnt lgkmcnt(0)")
    for a_ in range(4):
        p(f"buffer_store_dwordx4 v[{40+4*a_}:{43+4*a_}], v4, s[{R_WS}:{R_WS+3}], s36 offen offset:{a_*1024} sc1")
    p.label(D)

def dt_finish(p):
    D = p.newlabel("DT")
    p(f"s_cmp_lt_u32 s2, 144\ns_cbranch_scc1 {D}\ns_cmp_lg_u32 s{S_WAVE}, 2\ns_cbranch_scc1 {D}")
    p(f"s_sub_u32 s50, s2, 144\ns_lshl_b32 s50, s50, 2\ns_add_u32 s50, s50, {F7:#x}")
    p(f"v_mov_b32 v40, s{S_TAG}\nv_mov_b32 v41, 0\ns_mov_b64 exec, 1\nbuffer_store_dword v40, v41, s[{R_WS}:{R_WS+3}], s50 offen sc1\ns_mov_b64 exec, -1")
    p.label(D)

def cs_compute(p):
    CSL = p.newlabel("CS"); CSD = p.newlabel("CS")
    p(f"s_cmp_ge_u32 s2, 224\ns_cbranch_scc1 {CSD}")
    p(f"s_lshl_b32 s40, s{S_WAVE}, 12\ns_add_u32 s40, s40, {L_CS}")
    tr_addr_swz128(p, 18, 19, 20)
    p("v_add_u32 v18, s40, v18\nv_add_u32 v19, s40, v19\nv_mov_b32 v20, 0x3f803f80\nv_mov_b32 v21, 0x3f803f80\nv_mov_b32 v22, 0x3f803f80\nv_mov_b32 v23, 0x3f803f80")
    for ks in range(2):
        for cg in range(2):
            r = 24 + 8*ks + 4*cg
            p(f"ds_read_b64_tr_b16 v[{r}:{r+1}], v{18+cg} offset:{ks*2048}")
            p(f"ds_read_b64_tr_b16 v[{r+2}:{r+3}], v{18+cg} offset:{ks*2048+1024}")
    p("s_cmp_ge_u32 s2, 112\ns_cselect_b32 s36, 112, 0\ns_cselect_b32 s39, 256, 0\ns_sub_u32 s36, s2, s36\ns_lshr_b32 s37, s36, 2\ns_and_b32 s38, s36, 3")
    p(f"s_lshl_b32 s41, s37, 17\ns_lshl_b32 s38, s38, 13\ns_add_u32 s41, s41, s38\ns_lshl_b32 s38, s{S_WAVE}, 11\ns_add_u32 s41, s41, s38\ns_add_u32 s41, s41, s39\ns_add_u32 s41, s41, {WS_WP:#x}")
    p("v_bfe_u32 v16, v1, 4, 1\nv_lshlrev_b32 v16, 15, v16\nv_lshrrev_b32 v17, 5, v1\nv_lshlrev_b32 v17, 9, v17\nv_add_u32 v16, v16, v17\nv_and_b32 v17, 15, v1\nv_lshlrev_b32 v17, 4, v17\nv_add_u32 v16, v16, v17")
    p("s_waitcnt lgkmcnt(0)")
    for cg in range(2):
        if cg: p("s_add_u32 s41, s41, 65536")
        for ks in range(2):
            r = 24 + 8*ks + 4*cg
            p(f"buffer_store_dwordx4 v[{r}:{r+3}], v16, s[{R_WS}:{R_WS+3}], s41 offen offset:{ks*1024} sc1")
    for cg in range(2):
        for ks in range(2):
            r = 24 + 8*ks + 4*cg
            p(f"v_mfma_f32_32x32x16_bf16 v[{160+16*cg}:{175+16*cg}], v[20:23], v[{r}:{r+3}], {'0' if ks == 0 else f'v[{160+16*cg}:{175+16*cg}]'}")
    p(f"s_lshl_b32 s40, s{S_WAVE}, 8\ns_add_u32 s40, s40, {L_CSP}\nv_lshlrev_b32 v18, 2, v1\nv_add_u32 v18, s40, v18")
    p("s_mov_b32 exec_hi, 0")
    p("ds_write_b32 v18, v160\nds_write_b32 v18, v176 offset:128")
    p(f"s_mov_b64 exec, -1\ns_branch {CSL}")
    p.label(CSD)
    p(f"v_mov_b32 v18, 0\ns_mov_b32 s40, {WS_EP:#x}\ns_mov_b64 exec, 1")
    for n in range(4): p(f"buffer_load_dword v250, v18, s[{R_WS}:{R_WS+3}], s40 offen")
    p("s_mov_b64 exec, -1")
    p.label(CSL)
    p.vmq += ["pk"]*4

def cs_finish1(p):
    CS2 = p.newlabel("CS")
    p(f"s_cmp_ge_u32 s2, 224\ns_cbranch_scc1 {CS2}\ns_cmp_lg_u32 s{S_WAVE}, 1\ns_cbranch_scc1 {CS2}")
    p(f"v_lshlrev_b32 v40, 2, v1\nv_add_u32 v40, {L_CSP}, v40")
    for w in range(4): p(f"ds_read_b32 v{42+w}, v40 offset:{w*256}")
    p("s_cmp_ge_u32 s2, 112\ns_cselect_b32 s50, 112, 0\ns_cselect_b32 s53, 64, 0\ns_sub_u32 s50, s2, s50")
    p("s_lshr_b32 s51, s50, 2\ns_and_b32 s52, s50, 3\ns_mul_i32 s54, s52, 14336\ns_lshl_b32 s55, s51, 9\ns_add_u32 s54, s54, s55\ns_add_u32 s54, s54, s53")
    p(f"s_add_u32 s54, s54, {WS_CS:#x}\nv_and_b32 v40, 15, v1\nv_lshlrev_b32 v40, 2, v40\nv_lshrrev_b32 v41, 4, v1\nv_lshlrev_b32 v41, 7, v41\nv_add_u32 v40, v40, v41")
    p("s_waitcnt lgkmcnt(0)\nv_add_f32 v42, v42, v43\nv_add_f32 v44, v44, v45\nv_add_f32 v42, v42, v44")
    p(f"buffer_store_dword v42, v40, s[{R_WS}:{R_WS+3}], s54 offen sc1")
    p.label(CS2)

def cs_finish2(p):
    CS2 = p.newlabel("CS")
    p(f"s_cmp_ge_u32 s2, 224\ns_cbranch_scc1 {CS2}\ns_cmp_lg_u32 s{S_WAVE}, 1\ns_cbranch_scc1 {CS2}")
    p("s_cmp_ge_u32 s2, 112\ns_cselect_b32 s50, 112, 0\ns_cselect_b32 s53, 4, 0\ns_sub_u32 s50, s2, s50\ns_lshr_b32 s51, s50, 2\ns_and_b32 s52, s50, 3")
    p(f"s_lshl_b32 s54, s51, 3\ns_add_u32 s54, s54, s53\ns_add_u32 s54, s54, s52\ns_lshl_b32 s54, s54, 2\ns_add_u32 s54, s54, {F6:#x}")
    p(f"s_waitcnt vmcnt(0)\nv_mov_b32 v40, s{S_TAG}\nv_mov_b32 v41, 0\ns_mov_b64 exec, 1\nbuffer_store_dword v40, v41, s[{R_WS}:{R_WS+3}], s54 offen sc1\ns_mov_b64 exec, -1")
    p.label(CS2)

def p1(p):
    vX, vT, vT2, vP, vS = 4, 6, 7, 8, 9
    ACC, X, WF = 16, 64, 192
    R_A = 8
    p(f"s_lshl_b32 s31, s24, 2\ns_add_u32 s31, s31, s{S_WAVE}")
    p(f"s_lshl_b32 s32, s31, 15\ns_add_u32 s32, s32, {WS_XN:#x}\ns_add_u32 s33, s32, 4096")
    p("v_bfe_u32 v5, v1, 3, 2\nv_lshlrev_b32 v5, 13, v5\nv_lshrrev_b32 v10, 5, v1\nv_lshlrev_b32 v10, 7, v10\nv_add_u32 v5, v5, v10\nv_and_b32 v10, 7, v1\nv_lshlrev_b32 v10, 4, v10\nv_add_u32 v5, v5, v10")
    def xload(ks):
        p.vm(f"buffer_load_dwordx4 v[{X+4*ks}:{X+4*ks+3}], v5, s[{R_WS}:{R_WS+3}], s{32 + ks//16} offen offset:{(ks%16)*256} sc1", f"x{ks}")
    LEAD = 8
    for ks in range(LEAD): xload(ks)
    tr_addr(p, vT, 10, 64, 8)
    p(f"v_add_u32 v{vT2}, 0x10000, v{vT}")
    AK_, AV_, AQ_ = ACC + 16, ACC + 32, ACC
    def ent(ks, part, acc, first):
        off = (W1BASE[part] % 65536) + ks*1024
        return dict(acc=f"v[{acc}:{acc+15}]", B=f"v[{X+4*ks}:{X+4*ks+3}]", areg=(vT2 if part == 0 else vT), off=(off, off+256), C=("0" if first else f"v[{acc}:{acc+15}]"))
    mf = []
    for ks in range(32):
        e = ent(ks, 1, AK_, ks == 0); e["vm"] = f"x{ks}"; mf.append(e)
        mf.append(ent(ks, 2, AV_, ks == 0))
    stream(p, mf, WF, 8, 5, pend=[(lambda k=k: xload(k)) for k in range(LEAD, 32)], pend_every=2)
    stamp(p, "p1 pass A")
    srd(p, 12, P_WQKV, 512*1536*2)
    p(f"v_lshrrev_b32 v14, 2, v1\nv_mul_u32_u24 v14, 3072, v14\nv_and_b32 v10, 3, v1\nv_lshlrev_b32 v10, 4, v10\nv_add_u32 v14, v14, v10")
    p(f"s_mul_i32 s33, s{S_WAVE}, {8*16*3072}\ns_lshl_b32 s34, s25, 6\ns_add_u32 s33, s33, s34\ns_lshl_b32 s34, s{S_WAVE}, 13")
    for c in range(8):
        p(f"s_add_u32 s35, s33, {c*16*3072}\ns_add_u32 m0, s34, {W1BASE[0] + c*1024}")
        p.vm(f"buffer_load_dwordx4 v14, s[12:15], s35 offen lds", "wq")
    touch(p)
    WP = 224
    p(f"v_lshrrev_b32 v{vP}, 5, v1\nv_lshlrev_b32 v{vP}, 2, v{vP}\nv_bfe_u32 v10, v1, 2, 2\nv_add_u32 v{vP}, v{vP}, v10\nv_lshlrev_b32 v{vP}, 5, v{vP}")
    p(f"v_and_b32 v10, 3, v1\nv_lshlrev_b32 v10, 3, v10\nv_add_u32 v{vP}, v{vP}, v10\nv_add_u32 v{vP}, {L_WPHI}, v{vP}")
    p(f"v_and_b32 v{vS}, 16, v1\nv_lshlrev_b32 v{vS}, 11, v{vS}\nv_lshlrev_b32 v10, 16, v{vS}\nv_or_b32 v{vS}, v{vS}, v10")
    for hd in range(2):
        p.ds(f"ds_read_b64_tr_b16 v[{WP+4*hd}:{WP+4*hd+1}], v{vP} offset:{512*hd}", "wp")
        p.ds(f"ds_read_b64_tr_b16 v[{WP+4*hd+2}:{WP+4*hd+3}], v{vP} offset:{512*hd+256}", "wp")
    vA, vR = 10, 11
    p(f"s_mul_i32 s35, s{S_WAVE}, 9216\ns_add_u32 s35, s35, {L_SCR}")
    p(f"v_and_b32 v{vA}, 31, v1\nv_mul_u32_u24 v{vA}, 72, v{vA}\nv_lshrrev_b32 v12, 5, v1\nv_lshlrev_b32 v12, 3, v12\nv_add_u32 v{vA}, v{vA}, v12\nv_add_u32 v{vA}, s35, v{vA}")
    tr_addr(p, vR, 12, 72, 8)
    p(f"v_add_u32 v{vR}, s35, v{vR}")
    KB, VB = 232, 240
    for i in range(8): p(f"v_cvt_pk_bf16_f32 v{KB+i}, v{AK_+2*i}, v{AK_+2*i+1}")
    p.wait(ds="wp")
    for i in range(8): p(f"v_xor_b32 v{WP+i}, v{WP+i}, v{vS}")
    PK = [WF, WF + 16]
    for hd in range(2):
        p(f"v_mfma_f32_32x32x16_bf16 v[{PK[hd]}:{PK[hd]+15}], v[{WP+4*hd}:{WP+4*hd+3}], v[{KB+4*hd}:{KB+4*hd+3}], 0")
    for i in range(8): p(f"v_cvt_pk_bf16_f32 v{VB+i}, v{AV_+2*i}, v{AV_+2*i+1}")
    p("v_mov_b32 v12, 0x3f803f80\nv_mov_b32 v13, 0x3f803f80")
    for hd in range(2):
        for q in range(2):
            p.ds(f"ds_write_b64 v{vA}, v[{VB+4*hd+2*q}:{VB+4*hd+2*q+1}] offset:{(2+hd)*2304 + 16*q}", "st")
            p.ds(f"ds_write_b64 v{vA}, v[12:13] offset:{(2+hd)*2304 + 32 + 16*q}", "st")
    p(f"s_mov_b32 s36, {LOG2E:#x}\ns_mov_b32 s37, {LOG2E:#x}")
    OK_ = 32
    blk = [(PK[hd] + 8*sg, OK_ + 8*hd + 4*sg) for hd in range(2) for sg in range(2)]
    for x in softmax_ops(blk, 36, 48): p(x)
    for hd in range(2):
        for sg in range(2):
            for q in range(2):
                r = OK_ + 8*hd + 4*sg + 2*q
                p.ds(f"ds_write_b64 v{vA}, v[{r}:{r+1}] offset:{hd*2304 + 32*sg + 16*q}", "st")
    stamp(p, "p1 k softmax")
    p.wait(ds="st")
    F = WF
    for hd in range(2):
        for s2 in range(2):
            f = F + 8*(2*hd + s2)
            for ab in range(2):
                off = (2*ab + hd)*2304 + s2*1152
                p.ds(f"ds_read_b64_tr_b16 v[{f+4*ab}:{f+4*ab+1}], v{vR} offset:{off}", f"kv{hd}")
                p.ds(f"ds_read_b64_tr_b16 v[{f+4*ab+2}:{f+4*ab+3}], v{vR} offset:{off+288}", f"kv{hd}")
    C = [32, 48]
    p(f"s_mul_i32 s35, s{S_WAVE}, 4352\ns_add_u32 s35, s35, {L_KVP}")
    p("v_and_b32 v12, 31, v1\nv_lshlrev_b32 v12, 4, v12\nv_lshrrev_b32 v13, 5, v1\nv_mul_u32_u24 v13, 272, v13\nv_add_u32 v12, v12, v13\nv_add_u32 v12, s35, v12")
    for hd in range(2):
        p.wait(ds=f"kv{hd}")
        for s2 in range(2):
            f = F + 8*(2*hd + s2)
            c = "0" if s2 == 0 else f"v[{C[hd]}:{C[hd]+15}]"
            p(f"v_mfma_f32_32x32x16_bf16 v[{C[hd]}:{C[hd]+15}], v[{f}:{f+3}], v[{f+4}:{f+7}], {c}")
    p("s_mov_b32 exec_lo, 0x1ffff\ns_mov_b32 exec_hi, 0x1ffff")
    for hd in range(2):
        for b in range(4):
            p.ds(f"ds_write_b128 v12, v[{C[hd]+4*b}:{C[hd]+4*b+3}] offset:{hd*2176 + b*544}", "kvp")
    p("s_mov_b64 exec, -1")
    p.wait(vm="wq", ds="kvp")
    p("s_barrier")
    p("v_lshlrev_b32 v12, 2, v0")
    p(f"s_mul_i32 s35, s25, 4352\ns_add_u32 s35, s35, {WS_KV:#x}")
    p(f"v_add_u32 v13, {L_KVP}, v12")
    for i in range(5):
        for w in range(4): p.ds(f"ds_read_b32 v{32+4*i+w}, v13 offset:{w*4352 + i*1024}", f"r{i}")
    for i in range(4):
        p.wait(ds=f"r{i}")
        r = 32 + 4*i
        p(f"v_add_f32 v{r}, v{r}, v{r+1}\nv_add_f32 v{r+2}, v{r+2}, v{r+3}\nv_add_f32 v{r}, v{r}, v{r+2}")
        p.vm(f"buffer_atomic_add_f32 v{r}, v12, s[{R_WS}:{R_WS+3}], s35 offen offset:{i*1024}", "at")
    p.wait(ds="r4")
    p("v_add_f32 v48, v48, v49\nv_add_f32 v50, v50, v51\nv_add_f32 v48, v48, v50")
    AT = p.newlabel("AT")
    p(f"s_cmp_lg_u32 s{S_WAVE}, 0\ns_cbranch_scc1 {AT}")
    p(f"s_add_u32 s35, s35, 4096\nbuffer_atomic_add_f32 v48, v12, s[{R_WS}:{R_WS+3}], s35 offen")
    p.label(AT)
    stamp(p, "p1 kv atomics issued")
    vWo, vWo2 = 14, 15
    wsrc_swz128(p, vWo, 10)
    p(f"v_add_u32 v{vWo2}, {8192-1024}, v{vWo}")
    srd(p, R_A, P_WO, 512*512*2)
    p(f"s_lshl_b32 s40, s{S_WAVE}, 17\ns_lshl_b32 s41, s27, 7\ns_add_u32 s40, s40, s41\ns_lshl_b32 s41, s{S_WAVE}, 14")
    def wo_load(k):
        def f():
            p(f"s_add_u32 s42, s40, {16*k*1024}\ns_add_u32 m0, s41, {L_WO + k*2048}")
            p.vm(f"buffer_load_dwordx4 v{vWo}, s[{R_A}:{R_A+3}], s42 offen lds", "wo")
            p.vm(f"buffer_load_dwordx4 v{vWo2}, s[{R_A}:{R_A+3}], s42 offen offset:1024 lds", "wo")
        return f
    mf = [ent(ks, 0, AQ_, ks == 0) for ks in range(32)]
    def tiles():
        cs_loads(p); dt_loads(p)
    stream(p, mf, WF, 8, 5, pend=[tiles] + [wo_load(k) for k in range(8)], pend_every=3)
    QB = 232
    for i in range(8): p(f"v_cvt_pk_bf16_f32 v{QB+i}, v{AQ_+2*i}, v{AQ_+2*i+1}")
    PQ = [64, 80]
    for hd in range(2):
        p(f"v_mfma_f32_32x32x16_bf16 v[{PQ[hd]}:{PQ[hd]+15}], v[{WP+4*hd}:{WP+4*hd+3}], v[{QB+4*hd}:{QB+4*hd+3}], 0")
    p("s_barrier")
    stamp(p, "p1 pass B")
    PHQ = 144
    blk = [(PQ[hd] + 8*sg, PHQ + 8*hd + 4*sg) for hd in range(2) for sg in range(2)]
    for x in softmax_ops(blk, 36, 160): p(x)
    stamp(p, "p1 q softmax")
    p.wait(vm="at")
    arrive(p, 0, 25, 16)
    stamp(p, "p1 kv flag")
    vK = 12
    p(f"v_and_b32 v{vK}, 31, v1\nv_min_u32 v{vK}, 16, v{vK}\nv_lshlrev_b32 v{vK}, 4, v{vK}\nv_lshrrev_b32 v13, 5, v1\nv_mul_u32_u24 v13, 272, v13\nv_add_u32 v{vK}, v{vK}, v13")
    wait_go(p, 0, 25)
    stamp(p, "S2 passed")
    p(f"s_mul_i32 s35, s25, 4352\ns_add_u32 s35, s35, {WS_KV:#x}")
    AK = 64
    for hd in range(2):
        for s_ in range(2):
            for q in range(2):
                r = AK + 16*hd + 8*s_ + 4*q
                o = hd*2176 + (2*s_+q)*544
                p.vm(f"buffer_load_dwordx4 v[{r}:{r+3}], v{vK}, s[{R_WS}:{R_WS+3}], s35 offen offset:{o} sc1", f"kv{hd}")
    cs_compute(p)
    AB, ON = 96, 16
    for hd in range(2):
        p.wait(vm=f"kv{hd}")
        for s_ in range(2):
            for jj in range(4): p(f"v_cvt_pk_bf16_f32 v{AB+8*hd+4*s_+jj}, v{AK+16*hd+8*s_+2*jj}, v{AK+16*hd+8*s_+2*jj+1}")
        o = ON + 16*hd
        p(f"v_mfma_f32_32x32x16_bf16 v[{o}:{o+15}], v[{AB+8*hd}:{AB+8*hd+3}], v[{PHQ+8*hd}:{PHQ+8*hd+3}], 0")
        p(f"v_mfma_f32_32x32x16_bf16 v[{o}:{o+15}], v[{AB+8*hd+4}:{AB+8*hd+7}], v[{PHQ+8*hd+4}:{PHQ+8*hd+7}], v[{o}:{o+15}]")
    p(f"s_lshl_b32 s35, s31, 5\ns_lshl_b32 s36, s25, 1\ns_add_u32 s35, s35, s36\ns_lshl_b32 s35, s35, 10\ns_add_u32 s35, s35, {WS_OF:#x}")
    for hd in range(2):
        o = ON + 16*hd
        p(f"v_add_f32 v{o+8}, 0x358637bd, v{o+8}\nv_rcp_f32 v{o+8}, v{o+8}")
        for i in range(0, 8, 2): p(f"v_pk_mul_f32 v[{o+i}:{o+i+1}], v[{o+i}:{o+i+1}], v[{o+8}:{o+9}] op_sel_hi:[1,0]")
        for jj in range(4): p(f"v_cvt_pk_bf16_f32 v{112+4*hd+jj}, v{o+2*jj}, v{o+2*jj+1}")
        p.vm(f"buffer_store_dwordx4 v[{112+4*hd}:{115+4*hd}], v{vX}, s[{R_WS}:{R_WS+3}], s35 offen offset:{hd*1024} sc1", "of")
    dt_compute(p)
    p("s_waitcnt vmcnt(0) lgkmcnt(0)"); p.vmq = []
    arrive_line(p, 0, 24, 25)
    stamp(p, "p1 o flag")
    dt_finish(p)
    cs_finish1(p); cs_finish2(p)

def reduce_write(p, base, wavestride):
    p(f"s_mul_i32 s40, s{S_WAVE}, {wavestride}\ns_add_u32 s40, s40, {base}")
    p("v_and_b32 v10, 31, v1\nv_mul_u32_u24 v10, 272, v10\nv_lshrrev_b32 v11, 5, v1\nv_lshlrev_b32 v11, 4, v11\nv_add_u32 v10, v10, v11\nv_add_u32 v10, s40, v10")
    for cg in range(2):
        for tg in range(2):
            for b in range(4):
                a = 32*cg + 16*tg + 4*b
                p.ds(f"ds_write_b128 v10, a[{a}:{a+3}] offset:{tg*32*272 + cg*128 + b*32}", "red")
    p.wait(ds="red")
    p("s_barrier")

def reduce_read(p, base, wavestride, ps, dst):
    T = dst + 8
    for w in range(4):
        for hb in range(2):
            r = dst + 4*hb if w == 0 else T + 8*(w-1) + 4*hb
            off = base + w*wavestride + ps*32*272 + hb*16
            reg = (12, 13, 11)[off // 65536]
            p.ds(f"ds_read_b128 v[{r}:{r+3}], v{reg} offset:{off % 65536}", f"rr{ps}")

def reduce_sum(p, ps, dst):
    T = dst + 8
    p.wait(ds=f"rr{ps}")
    for i in range(0, 8, 2):
        p(f"v_pk_add_f32 v[{dst+i}:{dst+i+1}], v[{dst+i}:{dst+i+1}], v[{T+i}:{T+i+1}]")
        p(f"v_pk_add_f32 v[{T+8+i}:{T+8+i+1}], v[{T+8+i}:{T+8+i+1}], v[{T+16+i}:{T+16+i+1}]")
    for i in range(0, 8, 2):
        p(f"v_pk_add_f32 v[{dst+i}:{dst+i+1}], v[{dst+i}:{dst+i+1}], v[{T+8+i}:{T+8+i+1}]")

def add_residual(p, dst, res, tmp):
    for i in range(4): p(f"v_lshlrev_b32 v{tmp+2*i}, 16, v{res+i}\nv_and_b32 v{tmp+2*i+1}, 0xffff0000, v{res+i}")
    for i in range(0, 8, 2): p(f"v_pk_add_f32 v[{dst+i}:{dst+i+1}], v[{dst+i}:{dst+i+1}], v[{tmp+i}:{tmp+i+1}]")

def hf_addr(p, dst, tmp):
    p(f"v_bfe_u32 v{dst}, v0, 1, 2\nv_lshlrev_b32 v{dst}, 10, v{dst}\nv_and_b32 v{tmp}, 1, v0\nv_lshlrev_b32 v{tmp}, 9, v{tmp}\nv_add_u32 v{dst}, v{dst}, v{tmp}")
    p(f"v_lshrrev_b32 v{tmp}, 3, v0\nv_lshlrev_b32 v{tmp}, 4, v{tmp}\nv_add_u32 v{dst}, v{dst}, v{tmp}")

def red_addr(p):
    p("v_lshrrev_b32 v12, 3, v0\nv_mul_u32_u24 v12, 272, v12\nv_and_b32 v13, 7, v0\nv_lshlrev_b32 v13, 5, v13\nv_add_u32 v12, v12, v13\nv_add_u32 v13, 0x10000, v12\nv_add_u32 v11, 0x20000, v12")

NSLOT = 14
def pos(s): return (s % K3_NR)*16384
def slot_fr(s):
    if s < 8: return s % 4, s // 4
    return 4 + (s - 8)//2, (s - 8) % 2
def pw_setup(p):
    p(f"s_mul_i32 s44, s29, {7*32768}\ns_lshl_b32 s45, s{S_WAVE}, 12\ns_add_u32 s44, s44, s45\ns_add_u32 s44, s44, {WS_WP:#x}")
def pw_loads(p, s):
    n, half = slot_fr(s)
    def f0():
        p(f"s_add_u32 s46, s44, {n*32768 + half*16384}\ns_add_u32 m0, s45, {pos(s)}")
        p.vm(f"buffer_load_dwordx4 v4, s[{R_WS}:{R_WS+3}], s46 offen sc1 lds", f"s{s}")
    fs = [f0]
    for k in range(1, 4):
        fs.append(lambda k=k: p.vm(f"buffer_load_dwordx4 v4, s[{R_WS}:{R_WS+3}], s46 offen offset:{k*1024} sc1 lds", f"s{s}"))
    return fs

P3_PRE = 6

HKEEP = 180
L_OF = 65536
def p2(p):
    vX, vT, vB = 4, 6, 7
    WA, BR, ACC = 192, 224, 16
    p(f"s_lshr_b32 s31, s26, 1")
    p(f"s_lshr_b32 s32, s{S_WAVE}, 1\ns_and_b32 s33, s{S_WAVE}, 1")
    tr_addr_swz128(p, vT, 8, 10)
    p(f"s_lshl_b32 s34, s33, 6\nv_xor_b32 v{vT}, s34, v{vT}")
    p(f"s_lshl_b32 s34, s32, 15\ns_add_u32 s34, s34, {L_OF}\nv_add_u32 v{vB}, s34, v{vX}")
    XR = 48
    p("v_and_b32 v9, 31, v1\nv_lshlrev_b32 v9, 10, v9\nv_lshrrev_b32 v10, 5, v1\nv_lshlrev_b32 v10, 3, v10\nv_add_u32 v9, v9, v10")
    p("s_lshl_b32 s34, s26, 16\ns_lshl_b32 s35, s32, 15\ns_add_u32 s34, s34, s35\ns_lshl_b32 s35, s27, 7\ns_add_u32 s34, s34, s35\ns_lshl_b32 s35, s33, 6\ns_add_u32 s34, s34, s35")
    srd(p, 8, P_X, 2048*512*2)
    for b_ in range(4): p.vm(f"buffer_load_dwordx2 v[{XR+2*b_}:{XR+2*b_+1}], v9, s[8:11], s34 offen offset:{16*b_}", "xr")
    p(f"s_lshl_b32 s35, s26, 16\ns_lshl_b32 s36, s{S_WAVE}, 11\ns_add_u32 s35, s35, s36\ns_add_u32 s35, s35, {WS_OF:#x}\ns_add_u32 s36, s36, {L_OF}")
    p.wait(vm="wo")
    if LINES: wait_go(p, 0, 31, lines=16)
    else: wait_go(p, 1, 31)
    stamp(p, "S2b passed")
    for c in range(4):
        for tg in range(2):
            p(f"s_add_u32 s37, s35, {tg*32768 + c*8192}\ns_add_u32 m0, s36, {tg*32768 + c*8192}")
            p.vm(f"buffer_load_dwordx4 v{vX}, s[{R_WS}:{R_WS+3}], s37 offen sc1 lds", f"o{c}")
            p.vm(f"buffer_load_dwordx4 v{vX}, s[{R_WS}:{R_WS+3}], s37 offen offset:1024 sc1 lds", f"o{c}")
    uid = p.newlabel("t")
    def rd(k):
        if k % 8 == 0:
            p.wait(vm=f"o{k//8}"); p("s_barrier")
        a_ = WA + 4*(k % 6); bb = BR + 4*(k % 4)
        p.ds(f"ds_read_b64_tr_b16 v[{a_}:{a_+1}], v{vT} offset:{L_WO + k*2048}", f"{uid}{k}")
        p.ds(f"ds_read_b64_tr_b16 v[{a_+2}:{a_+3}], v{vT} offset:{L_WO + k*2048 + 1024}", f"{uid}{k}")
        p.ds(f"ds_read_b128 v[{bb}:{bb+3}], v{vB} offset:{k*1024}", f"{uid}{k}")
    L = 3
    for k in range(L): rd(k)
    for k in range(32):
        p.wait(ds=f"{uid}{k}")
        a_ = WA + 4*(k % 6); bb = BR + 4*(k % 4)
        p(f"v_mfma_f32_32x32x16_bf16 v[{ACC}:{ACC+15}], v[{a_}:{a_+3}], v[{bb}:{bb+3}], {'0' if k == 0 else f'v[{ACC}:{ACC+15}]'}")
        if k + L < 32: rd(k + L)
    stamp(p, "p2 main")
    p("s_barrier")
    p(f"s_lshl_b32 s34, s26, 1\ns_add_u32 s34, s34, s32")
    p(f"s_lshl_b32 s35, s34, 5\ns_lshl_b32 s36, s27, 2\ns_add_u32 s35, s35, s36\ns_lshl_b32 s36, s33, 1\ns_add_u32 s35, s35, s36\ns_lshl_b32 s35, s35, 10\ns_add_u32 s35, s35, {WS_HF:#x}")
    p(f"s_lshl_b32 s36, s34, 4\ns_lshl_b32 s37, s27, 1\ns_add_u32 s36, s36, s37\ns_add_u32 s36, s36, s33\ns_lshl_b32 s36, s36, 8\ns_add_u32 s36, s36, {WS_ST:#x}")
    p.wait(vm="xr")
    T = 64
    for i in range(8): p(f"v_lshlrev_b32 v{T+2*i}, 16, v{XR+i}\nv_and_b32 v{T+2*i+1}, 0xffff0000, v{XR+i}")
    for i in range(0, 16, 2): p(f"v_pk_add_f32 v[{ACC+i}:{ACC+i+1}], v[{ACC+i}:{ACC+i+1}], v[{T+i}:{T+i+1}]")
    for i in range(8): p(f"v_cvt_pk_bf16_f32 v{HKEEP+i}, v{ACC+2*i}, v{ACC+2*i+1}")
    for f in range(2):
        p.vm(f"buffer_store_dwordx4 v[{HKEEP+4*f}:{HKEEP+4*f+3}], v{vX}, s[{R_WS}:{R_WS+3}], s35 offen offset:{f*1024} sc1", "hst")
    for i in range(8): p(f"v_lshlrev_b32 v{T+2*i}, 16, v{HKEEP+i}\nv_and_b32 v{T+2*i+1}, 0xffff0000, v{HKEEP+i}")
    for i in range(4): p(f"v_pk_add_f32 v[{T+16+2*i}:{T+17+2*i}], v[{T+4*i}:{T+4*i+1}], v[{T+4*i+2}:{T+4*i+3}]")
    p(f"v_pk_add_f32 v[{T+16}:{T+17}], v[{T+16}:{T+17}], v[{T+18}:{T+19}]\nv_pk_add_f32 v[{T+20}:{T+21}], v[{T+20}:{T+21}], v[{T+22}:{T+23}]")
    p(f"v_pk_add_f32 v[{T+16}:{T+17}], v[{T+16}:{T+17}], v[{T+20}:{T+21}]\nv_add_f32 v{T+24}, v{T+16}, v{T+17}")
    p(f"v_mov_b32 v{T+25}, v{T+24}\nv_permlane32_swap_b32 v{T+24}, v{T+25}\nv_add_f32 v{T+24}, v{T+24}, v{T+25}")
    p(f"v_mul_f32 v{T+24}, 0x3d000000, v{T+24}\nv_sub_f32 v{T+26}, 0, v{T+24}")
    for i in range(0, 16, 2): p(f"v_pk_add_f32 v[{T+i}:{T+i+1}], v[{T+i}:{T+i+1}], v[{T+26}:{T+27}] op_sel_hi:[1,0]")
    p(f"v_pk_mul_f32 v[{T+16}:{T+17}], v[{T}:{T+1}], v[{T}:{T+1}]\nv_pk_mul_f32 v[{T+18}:{T+19}], v[{T+2}:{T+3}], v[{T+2}:{T+3}]")
    for i in range(4, 16, 4):
        p(f"v_pk_fma_f32 v[{T+16}:{T+17}], v[{T+i}:{T+i+1}], v[{T+i}:{T+i+1}], v[{T+16}:{T+17}]\nv_pk_fma_f32 v[{T+18}:{T+19}], v[{T+i+2}:{T+i+3}], v[{T+i+2}:{T+i+3}], v[{T+18}:{T+19}]")
    p(f"v_pk_add_f32 v[{T+16}:{T+17}], v[{T+16}:{T+17}], v[{T+18}:{T+19}]\nv_add_f32 v{T+25}, v{T+16}, v{T+17}")
    p(f"v_mov_b32 v{T+26}, v{T+25}\nv_permlane32_swap_b32 v{T+25}, v{T+26}\nv_add_f32 v{T+25}, v{T+25}, v{T+26}")
    p("v_lshlrev_b32 v10, 3, v1\ns_mov_b32 exec_hi, 0")
    p.vm(f"buffer_store_dwordx2 v[{T+24}:{T+25}], v10, s[{R_WS}:{R_WS+3}], s36 offen sc1", "hst")
    p("s_mov_b64 exec, -1")
    L = p.newlabel("PL"); D = p.newlabel("PD")
    p(f"s_cmp_lg_u32 s{S_WAVE}, 0\ns_cbranch_scc1 {D}")
    p(f"s_mul_i32 s35, s29, 7\ns_lshr_b32 s35, s35, 2\ns_lshl_b32 s35, s35, 3\nv_min_u32 v2, 23, v1\nv_add_u32 v2, s35, v2\nv_min_u32 v2, 223, v2\nv_lshlrev_b32 v2, 2, v2")
    p(f"s_mov_b32 s58, {F6:#x}\ns_mov_b32 s59, {SPIN}\ns_mov_b32 s55, {F7:#x}\nv_lshlrev_b32 v18, 2, v1\nv_add_u32 v16, 64, v1\nv_min_u32 v16, 111, v16\nv_lshlrev_b32 v16, 2, v16")
    p.label(L)
    p(f"buffer_load_dword v3, v2, s[{R_WS}:{R_WS+3}], s58 offen sc1")
    p(f"buffer_load_dword v19, v18, s[{R_WS}:{R_WS+3}], s55 offen sc1\nbuffer_load_dword v17, v16, s[{R_WS}:{R_WS+3}], s55 offen sc1")
    p(f"s_waitcnt vmcnt(0)\nv_cmp_ne_u32 vcc, s{S_TAG}, v3\nv_cmp_ne_u32 s[56:57], s{S_TAG}, v19\ns_or_b64 vcc, vcc, s[56:57]\nv_cmp_ne_u32 s[56:57], s{S_TAG}, v17\ns_or_b64 vcc, vcc, s[56:57]\ns_cbranch_vccz {D}")
    if SLEEP: p(f"s_sleep {SLEEP}")
    p(f"s_sub_u32 s59, s59, 1\ns_cmp_lg_u32 s59, 0\ns_cbranch_scc1 {L}")
    p.label(D)
    p.wait(vm="hst")
    if LINES:
        p("s_and_b32 s35, s26, 1\ns_lshl_b32 s35, s35, 3\ns_add_u32 s35, s35, s27")
        arrive_line(p, 1, 31, 35)
    else: arrive(p, 2, 31, 16)
    stamp(p, "p2 h flag")
    E = p.newlabel("EP")
    p(f"s_or_b32 s35, s2, s{S_WAVE}\ns_cmp_lg_u32 s35, 3\ns_cbranch_scc1 {E}")
    p(f"s_cmp_lg_u32 s2, 0\ns_cbranch_scc1 {E}")
    p(f"s_mov_b32 s36, {WS_EP:#x}\ns_load_dword s35, s[{P_WS}:{P_WS+1}], s36\ns_waitcnt lgkmcnt(0)\ns_add_u32 s35, s35, 1\nv_mov_b32 v2, s35\nv_mov_b32 v3, 0")
    p(f"s_mov_b64 exec, 1\nbuffer_store_dword v2, v3, s[{R_WS}:{R_WS+3}], s36 offen sc1\ns_mov_b64 exec, -1")
    p.label(E)

def p3(p):
    vX = 4
    WF, ACC, T = 192, 16, 224
    vB = [4, 5, 6]
    p(f"s_lshl_b32 s31, s28, 2\ns_add_u32 s31, s31, s{S_WAVE}")
    p("v_add_u32 v5, 0x10000, v4\nv_add_u32 v6, 0x20000, v4")
    pw_setup(p)
    p(f"s_lshl_b32 s33, s31, 12\ns_add_u32 s33, s33, {WS_ST:#x}")
    p("v_and_b32 v15, 31, v1\nv_lshlrev_b32 v15, 3, v15\nv_lshrrev_b32 v14, 5, v1\nv_lshlrev_b32 v14, 11, v14\nv_add_u32 v15, v15, v14")
    p(f"s_lshl_b32 s34, s31, 15\ns_add_u32 s34, s34, {WS_HF:#x}")
    p(f"s_mul_i32 s36, s31, {112*1024}\ns_mul_i32 s37, s29, {7*1024}\ns_add_u32 s36, s36, s37\ns_add_u32 s36, s36, {WS_HH:#x}")
    def bulk3():
        paced(p, [f for s_ in range(P3_PRE) for f in pw_loads(p, s_)])
    wait_go(p, 1, 28, bulk=bulk3, lines=16)
    stamp(p, "S3 passed")
    def hload(ks):
        if ks % 4 == 0: p(f"s_add_u32 s35, s34, {ks*1024}")
        p.vm(f"buffer_load_dwordx4 a[{4*ks}:{4*ks+3}], v{vX}, s[{R_WS}:{R_WS+3}], s35 offen offset:{(ks%4)*1024} sc1", f"h{ks}")
    LEAD = 8
    for ks in range(LEAD): hload(ks)
    ST = 96
    CSR = 128
    p("v_lshrrev_b32 v14, 5, v1\nv_mul_u32_u24 v14, 28672, v14\nv_and_b32 v13, 31, v1\nv_lshlrev_b32 v13, 2, v13\nv_add_u32 v14, v14, v13")
    p(f"s_mul_i32 s32, s29, {7*128}\ns_add_u32 s32, s32, {WS_CS:#x}\ns_add_u32 s37, s32, 14336")
    small = []
    for i in range(8): small.append(lambda i=i: p.vm(f"buffer_load_dwordx2 v[{ST+2*i}:{ST+2*i+1}], v15, s[{R_WS}:{R_WS+3}], s33 offen offset:{i*256} sc1", "st"))
    for qq in range(2):
        for n in range(7):
            small.append(lambda qq=qq, n=n: p.vm(f"buffer_load_dword v{CSR+8*qq+n}, v14, s[{R_WS}:{R_WS+3}], s{37 if qq else 32} offen offset:{n*128} sc1", "cs"))
    AUG, BA, CGR = 160, 168, 176
    MEAN, RSTD, CG = T + 8, T + 9, T + 10
    prep = []
    def Q(txt):
        for x in txt.split("\n"): prep.append(x)
    Q("v_cmp_gt_u32 vcc, 32, v1")
    N7 = range(7)
    for n in N7: Q(f"v_add_f32 v{CSR+n}, v{CSR+n}, v{CSR+8+n}")
    for n in N7: Q(f"v_mov_b32 v{CSR+8+n}, v{CSR+n}")
    for n in N7: Q(f"v_permlane32_swap_b32 v{CSR+n}, v{CSR+8+n}")
    for n in N7: Q(f"v_add_f32 v{CSR+n}, v{CSR+n}, v{CSR+8+n}")
    for n in N7: Q(f"v_cvt_pk_bf16_f32 v{CSR+8+n}, v{CSR+n}, v{CSR+n}")
    for n in N7: Q(f"v_and_b32 v{CSR+8+n}, 0xffff0000, v{CSR+8+n}")
    for n in N7: Q(f"v_sub_f32 v{CSR+8+n}, v{CSR+n}, v{CSR+8+n}")
    for n in N7: Q(f"v_cvt_pk_bf16_f32 v{CSR+8+n}, v{CSR+n}, v{CSR+8+n}")
    for n in N7: Q(f"v_cndmask_b32 v{AUG+n}, 0, v{CSR+8+n}, vcc")
    Q(f"v_add_f32 v{MEAN}, v{ST}, v{ST+2}")
    for i in range(2, 8): Q(f"v_add_f32 v{MEAN}, v{MEAN}, v{ST+2*i}")
    Q(f"v_mov_b32 v{CG}, v{MEAN}\nv_nop\nv_permlane32_swap_b32 v{MEAN}, v{CG}\nv_add_f32 v{MEAN}, v{MEAN}, v{CG}\nv_mul_f32 v{MEAN}, 0x3d800000, v{MEAN}")
    for i in range(8): Q(f"v_sub_f32 v{ST+2*i}, v{ST+2*i}, v{MEAN}")
    Q(f"v_mul_f32 v{RSTD}, v{ST}, v{ST}")
    for i in range(1, 8): Q(f"v_fmac_f32 v{RSTD}, v{ST+2*i}, v{ST+2*i}")
    Q(f"v_mul_f32 v{RSTD}, 0x42000000, v{RSTD}")
    for i in range(8): Q(f"v_add_f32 v{RSTD}, v{RSTD}, v{ST+2*i+1}")
    Q(f"v_mov_b32 v{CG}, v{RSTD}\nv_nop\nv_permlane32_swap_b32 v{RSTD}, v{CG}\nv_add_f32 v{RSTD}, v{RSTD}, v{CG}")
    Q(f"v_mov_b32 v{CG}, 0x3727c5ac\nv_fmac_f32 v{CG}, 0x3b000000, v{RSTD}\nv_rsq_f32 v{RSTD}, v{CG}")
    Q(f"v_mul_f32 v{CGR}, 0xbfb8aa3b, v{RSTD}")
    Q(f"v_sub_f32 v{ST}, 0, v{MEAN}\nv_cvt_pk_bf16_f32 v{ST+1}, v{ST}, v{ST}\nv_and_b32 v{ST+2}, 0xffff0000, v{ST+1}\nv_sub_f32 v{ST+2}, v{ST}, v{ST+2}\nv_cvt_pk_bf16_f32 v{ST+2}, v{ST+2}, v{ST+2}")
    Q(f"v_cndmask_b32 v{BA}, 0, v{ST+1}, vcc\nv_cndmask_b32 v{BA+1}, 0, v{ST+2}, vcc\nv_mov_b32 v{BA+2}, 0\nv_mov_b32 v{BA+3}, 0\nv_mov_b32 v174, 0\nv_mov_b32 v175, 0")
    def rs_store():
        RSK = p.newlabel("RS")
        p(f"s_cmp_lg_u32 s29, 0\ns_cbranch_scc1 {RSK}")
        p(f"s_lshl_b32 s37, s31, 7\ns_add_u32 s37, s37, {WS_RS:#x}\nv_lshlrev_b32 v13, 2, v1\ns_mov_b32 exec_hi, 0")
        p(f"buffer_store_dword v{RSTD}, v13, s[{R_WS}:{R_WS+3}], s37 offen sc1\ns_mov_b64 exec, -1")
        p.label(RSK)
    AC = [ACC, ACC + 16, ACC + 32, ACC + 48, ACC + 64, ACC + 96, ACC]
    def aug(n, add=False):
        acc = AC[n]
        p(f"v_mov_b32 v172, v{AUG+n}\nv_mov_b32 v173, v{AUG+n}")
        p(f"v_mfma_f32_32x32x16_bf16 v[{acc}:{acc+15}], v[172:175], v[{BA}:{BA+3}], {f'v[{acc}:{acc+15}]' if add else '0'}")
    ET = T; outsel = [0]
    def glu_ops(n):
        acc = AC[n]; off = n*1024
        L_ = []
        o = 232 + 4*(outsel[0] & 1); outsel[0] += 1
        for half in range(2):
            js = range(4*half, 4*half + 4)
            for j in js: L_.append(f"v_mul_f32 v{ET+j%4}, v{CGR}, v{acc+j}")
            for j in js: L_.append(f"v_exp_f32 v{ET+j%4}, v{ET+j%4}")
            for j in js: L_.append(f"v_add_f32 v{ET+j%4}, 1.0, v{ET+j%4}")
            for j in js: L_.append(f"v_rcp_f32 v{ET+j%4}, v{ET+j%4}")
            for j in js: L_.append(f"v_mul_f32 v{ET+j%4}, v{acc+8+j}, v{ET+j%4}")
            for jj in range(2): L_.append(f"v_cvt_pk_bf16_f32 v{o+2*half+jj}, v{ET+2*jj}, v{ET+2*jj+1}")
        L_.append(("store", f"s_add_u32 s41, s36, {off}", f"buffer_store_dwordx4 v[{o}:{o+3}], v{vX}, s[{R_WS}:{R_WS+3}], s41 offen sc1"))
        return L_
    def emit(x):
        if isinstance(x, tuple): p(x[1]); p.vm(x[2], "hh")
        else: p(x)
    ready = set()
    def mkpre(slots):
        def pre():
            todo = [s_ for s_ in slots if s_ not in ready]
            if todo:
                p.wait(vm=[f"s{s_}" for s_ in todo]); p("s_barrier"); ready.update(todo)
        return pre
    def ent(n, ks):
        s_ = (n + 4*(ks // 16)) if n < 4 else 8 + 2*(n - 4) + ks // 16
        off = pos(s_) + (ks % 16)*1024
        grp = [4*(ks // 16) + u for u in range(4)] if n < 4 else [s_]
        return dict(acc=f"v[{AC[n]}:{AC[n]+15}]", B=f"a[{4*ks}:{4*ks+3}]", areg=vB[off // 65536], off=off % 65536, pre=mkpre(grp), ks=ks, slot=s_)
    nxt = {"h": LEAD, "s": P3_PRE}
    slotq = []
    def want(limit_slot):
        while nxt["s"] <= limit_slot and nxt["s"] < NSLOT:
            slotq.extend(pw_loads(p, nxt["s"])); nxt["s"] += 1
    stamp(p, "p3 setup")
    mf = [ent(u, ks) for ks in range(32) for u in range(4)]
    for u in range(4): mf[u]["C"] = "0"
    want(7)
    for i, m in enumerate(mf):
        if i % 4 == 0: m["vm"] = f"h{m['ks']}"
        def post(m=m, i=i):
            if i % 4 == 0 and nxt["h"] < 32: hload(nxt["h"]); nxt["h"] += 1
            if i % 4 in (1, 3) and small: small.pop(0)()
            if i % 4 == 2:
                if not slotq and nxt["h"] >= 32: want(9)
                if slotq: slotq.pop(0)()
            if i >= PREP0:
                for _ in range(3):
                    if prep: p(prep.pop(0))
        m["post"] = post
    stream128(p, mf, WF, 8, 7)
    while prep: p(prep.pop(0))
    while slotq: slotq.pop(0)()
    want(9)
    while slotq: slotq.pop(0)()
    rs_store()
    if DUMP:
        p(f"s_lshl_b32 s37, s2, 2\ns_add_u32 s37, s37, s{S_WAVE}\ns_lshl_b32 s37, s37, 11\ns_add_u32 s37, s37, {0x1500000+0x80000*2:#x}\nv_lshlrev_b32 v13, 2, v1")
        for n_, r_ in enumerate((160, 168, 169, 232, 128, 136, 96, 233)):
            p(f"buffer_store_dword v{r_}, v13, s[{R_WS}:{R_WS+3}], s37 offen offset:{n_*256}")
    for u in range(4): aug(u, add=True)
    stamp(p, "p3 pass1")
    wd_setup(p)
    wdq = [f for k in range(NA) for f in wd_load(p, k)]
    for n, fl in ((4, (0, 1)), (5, (2, 3)), (6, (4, 5))):
        aug(n)
        fill = []
        for f_ in fl: fill += glu_ops(f_)
        mf = [ent(n, ks) for ks in range(32)]
        for i, m in enumerate(mf):
            def post(m=m, i=i, n=n):
                if n == 4 and i == 0: want(13)
                if slotq: slotq.pop(0)()
                elif wdq and i % 2 == 0: wdq.pop(0)()
            m["post"] = post
        stream128(p, mf, WF, 8, 7, fill=fill, emit=emit)
        stamp(p, f"p3 frag {n}")
    assert nxt["s"] == NSLOT and not slotq
    while wdq: wdq.pop(0)()
    p("s_barrier")
    return glu_ops(6), emit

NA = 16
def wd_reg(k, cg):
    if k < NA: return f"a[{128+8*k+4*cg}:{128+8*k+4*cg+3}]"
    b = (128 + 8*(k - 16)) if k < 22 else (188 + 8*(k - 22))
    return f"v[{b+4*cg}:{b+4*cg+3}]"
def wd_setup(p):
    p(f"s_mul_i32 s47, s{S_WAVE}, {28*16384}\ns_lshl_b32 s48, s27, 11\ns_add_u32 s47, s47, s48\ns_add_u32 s47, s47, {WS_WDP:#x}")
def wd_load(p, k):
    def f0():
        p(f"s_add_u32 s49, s47, {k*16384}")
        p.vm(f"buffer_load_dwordx4 {wd_reg(k, 0)}, v4, s[{R_WS}:{R_WS+3}], s49 offen sc1", f"d{k}")
    def f1(): p.vm(f"buffer_load_dwordx4 {wd_reg(k, 1)}, v4, s[{R_WS}:{R_WS+3}], s49 offen offset:1024 sc1", f"d{k}")
    return [f0, f1]

def p4(p):
    vX = 4
    HB = 64
    RING = 8
    p(f"s_lshr_b32 s31, s26, 1")
    p(f"s_mul_i32 s33, s26, {2*112*1024}\ns_mul_i32 s34, s{S_WAVE}, {28*1024}\ns_add_u32 s33, s33, s34\ns_add_u32 s33, s33, {WS_HH:#x}\ns_add_u32 s34, s33, {112*1024}")
    def bulk4():
        paced(p, [f for k in range(NA, 28) for f in wd_load(p, k)])
    wait_go(p, 2, 31, bulk=bulk4, lines=16)
    stamp(p, "S4 passed")
    def hload(k):
        sl = k % RING
        def f0():
            if k % 4 == 0 and k: p("s_add_u32 s33, s33, 4096\ns_add_u32 s34, s34, 4096")
            p.vm(f"buffer_load_dwordx4 v[{HB+8*sl}:{HB+8*sl+3}], v{vX}, s[{R_WS}:{R_WS+3}], s33 offen offset:{(k%4)*1024} sc1", f"k{k}")
        def f1(): p.vm(f"buffer_load_dwordx4 v[{HB+8*sl+4}:{HB+8*sl+7}], v{vX}, s[{R_WS}:{R_WS+3}], s34 offen offset:{(k%4)*1024} sc1", f"k{k}")
        return [f0, f1]
    for k in range(RING - 1):
        for f in hload(k): f()
    p(f"s_lshr_b32 s36, s{S_WAVE}, 1\ns_lshl_b32 s35, s26, 1\ns_add_u32 s35, s35, s36\ns_lshl_b32 s35, s35, 7\ns_add_u32 s35, s35, {WS_RS:#x}\nv_and_b32 v9, 31, v1\nv_lshlrev_b32 v9, 2, v9")
    p.vm(f"buffer_load_dword v56, v9, s[{R_WS}:{R_WS+3}], s35 offen sc1", "rs")
    for k in range(28):
        sl = k % RING
        p.wait(vm=[f"k{k}", f"d{k}"])
        n = k + RING - 1
        pend = hload(n) if n < 28 else []
        for cg in range(2):
            for tg in range(2):
                a_ = 32*cg + 16*tg; h = HB + 8*sl + 4*tg
                p(f"v_mfma_f32_32x32x16_bf16 a[{a_}:{a_+15}], {wd_reg(k, cg)}, v[{h}:{h+3}], {'0' if k == 0 else f'a[{a_}:{a_+15}]'}")
                if pend and cg == 0: pend.pop(0)()
    stamp(p, "p4 main")
    RS_ = 17408
    reduce_write(p, 0, RS_)
    p(f"s_lshr_b32 s36, s{S_WAVE}, 1\ns_and_b32 s37, s{S_WAVE}, 1\ns_mul_i32 s38, s36, {32*272}\ns_lshl_b32 s39, s37, 7\ns_add_u32 s38, s38, s39")
    p("v_and_b32 v10, 31, v1\nv_mul_u32_u24 v10, 272, v10\nv_lshrrev_b32 v11, 5, v1\nv_lshlrev_b32 v11, 4, v11\nv_add_u32 v10, v10, v11\nv_add_u32 v10, s38, v10")
    D = 64
    for w in range(4):
        for b_ in range(4):
            p.ds(f"ds_read_b128 v[{D+16*w+4*b_}:{D+16*w+4*b_+3}], v10 offset:{w*RS_ + b_*32}", f"rr{w}")
    p("v_and_b32 v9, 31, v1\nv_lshlrev_b32 v9, 10, v9\nv_lshrrev_b32 v12, 5, v1\nv_lshlrev_b32 v12, 4, v12\nv_add_u32 v9, v9, v12")
    p("s_lshl_b32 s32, s26, 16\ns_lshl_b32 s33, s36, 15\ns_add_u32 s32, s32, s33\ns_lshl_b32 s33, s27, 7\ns_add_u32 s32, s32, s33\ns_lshl_b32 s33, s37, 6\ns_add_u32 s32, s32, s33")
    srd(p, 12, P_OUT, 2048*512*2)
    T = 128
    for i in range(8): p(f"v_lshlrev_b32 v{T+2*i}, 16, v{HKEEP+i}\nv_and_b32 v{T+2*i+1}, 0xffff0000, v{HKEEP+i}")
    p.wait(vm="rs", ds="rr1")
    for i in range(0, 16, 2): p(f"v_pk_add_f32 v[{D+i}:{D+i+1}], v[{D+i}:{D+i+1}], v[{D+16+i}:{D+16+i+1}]")
    p.wait(ds="rr3")
    for i in range(0, 16, 2): p(f"v_pk_add_f32 v[{D+32+i}:{D+32+i+1}], v[{D+32+i}:{D+32+i+1}], v[{D+48+i}:{D+48+i+1}]")
    for i in range(0, 16, 2): p(f"v_pk_add_f32 v[{D+i}:{D+i+1}], v[{D+i}:{D+i+1}], v[{D+32+i}:{D+32+i+1}]")
    for i in range(0, 16, 2): p(f"v_pk_fma_f32 v[{D+i}:{D+i+1}], v[{D+i}:{D+i+1}], v[56:57], v[{T+i}:{T+i+1}] op_sel_hi:[1,0,1]")
    Q = 160
    for i in range(8): p(f"v_cvt_pk_bf16_f32 v{Q+i}, v{D+2*i}, v{D+2*i+1}")
    for m in range(2):
        p(f"v_permlane32_swap_b32 v{Q+4*m}, v{Q+4*m+2}\nv_permlane32_swap_b32 v{Q+4*m+1}, v{Q+4*m+3}")
    for m in range(2):
        p.vm(f"buffer_store_dwordx4 v[{Q+4*m}:{Q+4*m+3}], v9, s[12:15], s32 offen offset:{32*m}", "ost")

def mega():
    p = Prog()
    NSTAMP[0] = 0; STAMP_NAMES.clear()
    p("s_getpc_b64 s[62:63]")
    p("s_cmp_ge_u32 s2, 256\ns_cbranch_scc1 L_end")
    p("s_load_dwordx16 s[64:79], s[0:1], 0\ns_load_dwordx4 s[80:83], s[0:1], 64\ns_load_dwordx2 s[84:85], s[0:1], 80")
    p(f"v_and_b32 v1, 63, v0\nv_lshrrev_b32 v2, 6, v0\nv_readfirstlane_b32 s{S_WAVE}, v2")
    if STAMPS: p("v_mov_b32 v255, 0\ns_memrealtime s[96:97]\ns_waitcnt lgkmcnt(0)\nv_writelane_b32 v255, s96, 63")
    if PADTO: p("s_memrealtime s[94:95]")
    stamp(p, "entry")
    roles(p)
    p0(p)
    p1(p)
    p2(p)
    tail, emit = p3(p)
    for x in tail: emit(x)
    p.wait(vm="hh")
    arrive_line(p, 2, 28, 29)
    stamp(p, "p3 hh flag")
    p4(p)
    if STAMPS:
        stamp(p, "p4 stores issued")
        p("s_waitcnt vmcnt(0)")
        stamp(p, "end")
        p("s_memrealtime s[96:97]\ns_waitcnt lgkmcnt(0)\nv_writelane_b32 v255, s96, 62")
        p(f"s_lshl_b32 s58, s2, 2\ns_add_u32 s58, s58, s{S_WAVE}\ns_lshl_b32 s58, s58, 8\ns_add_u32 s58, s58, {WS_DBG:#x}\nv_lshlrev_b32 v2, 2, v1")
        p(f"buffer_store_dword v255, v2, s[{R_WS}:{R_WS+3}], s58 offen")
        if DBGOUT:
            sel = ["S1 passed", "p1 pass A", "p1 kv atomics issued", "p1 q softmax", "S2 passed", "p1 o flag", "S2b passed", "p2 h flag", "S3 passed", "p3 pass1", "p3 pass2c", "S4 passed", "p4 main", "end"]
            p("s_mov_b32 s40, s82\ns_and_b32 s41, s83, 0xffff\ns_mov_b32 s42, 256\ns_mov_b32 s43, 0x20000")
            p("v_readlane_b32 s50, v255, 0")
            for j_, nm_ in enumerate(sel):
                i_ = STAMP_NAMES.index(nm_)
                p(f"v_readlane_b32 s51, v255, {i_}\ns_nop 3\ns_sub_u32 s51, s51, s50\nv_writelane_b32 v254, s51, {j_}")
            p("v_readlane_b32 s51, v255, 63\ns_nop 3\ns_not_b32 s51, s51\nv_writelane_b32 v254, s51, 14")
            p("v_readlane_b32 s51, v255, 62\ns_nop 3\nv_writelane_b32 v254, s51, 15")
            p("v_lshlrev_b32 v2, 2, v1\ns_mov_b64 exec, 0xffff\nbuffer_atomic_umax v254, v2, s[40:43], 0 offen\ns_mov_b64 exec, -1")
    if PADTO:
        PL = p.newlabel("PAD")
        p.label(PL)
        p(f"s_memrealtime s[96:97]\ns_waitcnt lgkmcnt(0)\ns_sub_u32 s96, s96, s94\ns_cmp_lt_u32 s96, {PADTO}\ns_cbranch_scc1 {PL}")
    p.label("L_end")
    p("s_endpgm")
    p.label("L_codeend")
    return p

def build():
    p = mega()
    t, d = kernel_text(NAME + "_kernel", p, 256, 256, sgpr=100)
    print(f"mega: {p.count()} instrs, {p.nops if hasattr(p,'nops') else 0} nop states", file=sys.stderr)
    txt = f"; @launch grid=(256,1,1) block=(256,1,1) lds={LDS_BYTES}\n" + '.amdgcn_target "amdgcn-amd-amdhsa--gfx950"\n' + t
    txt += '.section .rodata,"a"\n.p2align 6\n' + d
    return txt

if __name__ == "__main__":
    for a_ in list(sys.argv):
        if a_.startswith("--set="):
            k_, v_ = a_[6:].split("="); globals()[k_] = int(v_); sys.argv.remove(a_)
    if "--stamps" in sys.argv:
        STAMPS = True; sys.argv.remove("--stamps")
    out = sys.argv[1] if len(sys.argv) > 1 else "mega.s"
    txt = build()
    open(out, "w").write(txt)
    if STAMPS: open(out + ".names", "w").write("\n".join(STAMP_NAMES))
```

```python
import sys
from dsl import Prog, kernel_text

NAME = "sequential_preLN__linear_kernel_hedgehog__glu_gated_glu__prompt"
WS_XN   = 0x000000
WS_OF   = 0x200000
WS_KV   = 0x400000
WS_HF   = 0x500000
WS_ST   = 0x700000
WS_HH   = 0x800000
WS_CS   = 0xF00000
WS_RS   = 0xF10000
WS_FL   = 0xF20000
WS_EP   = 0xF30000
WS_F1   = 0xF80000
WS_CNT  = 0xF90000
WS_FL2  = 0xFB0000
WS_GO   = 0xFA0000
WS_DBG  = 0xF40000
WS_WP   = 0x1000000
WS_WDP  = 0x1400000
WS_SIZE = 0x1900000
F1, F2, F3, F4, F5, F6, F7 = (WS_FL + i*4096 for i in range(7))
LOG2E = 0x3fb8aa3b
STAMPS = False
TOUCH = True
LINES = 1
WQLATE = 1
HOLD0 = 0
DUMP = 0
PREP0 = 80
PADTO = 0
DBGOUT = 0
BULK0 = 1
CODEPF = 1
CODE_LINES_PER_WG = 10
CODE_BYTES = 40960
PACE0 = 40
DELAY0 = 0
PACE = 40
SLEEP = 2
NSTAMP = [0]
SPIN = 1 << 18

S_WAVE, S_X, S_I, S_TAG = 20, 21, 22, 60
P_X, P_WQKV, P_WPHI, P_WO, P_WG, P_WU, P_WD, P_OUT, P_WS = 64, 66, 68, 70, 74, 76, 78, 80, 84
R_WS = 4

def srd(p, d, ptr, size, shift=0):
    if shift:
        p(f"s_sub_u32 s{d}, s{ptr}, {shift}\ns_subb_u32 s{d+1}, s{ptr+1}, 0\ns_and_b32 s{d+1}, s{d+1}, 0xffff")
    else:
        p(f"s_mov_b32 s{d}, s{ptr}\ns_and_b32 s{d+1}, s{ptr+1}, 0xffff")
    p(f"s_mov_b32 s{d+2}, {size + shift:#x}\ns_mov_b32 s{d+3}, 0x20000")

def stamp(p, name):
    if not STAMPS: return
    i = NSTAMP[0]; NSTAMP[0] += 1
    STAMP_NAMES.append(name)
    p(f"s_memtime s[98:99]\ns_waitcnt lgkmcnt(0)\nv_writelane_b32 v255, s98, {i}")
STAMP_NAMES = []

def flag_store(p, arr, sblock, sword, vt=(2, 3)):
    p(f"s_lshl_b32 s58, s{sblock}, 8\ns_lshl_b32 s59, s{sword}, 2\ns_add_u32 s58, s58, s59\ns_add_u32 s58, s58, {arr:#x}")
    p(f"v_mov_b32 v{vt[0]}, s{S_TAG}\nv_mov_b32 v{vt[1]}, 0")
    p("s_mov_b64 exec, 1")
    p.vm(f"buffer_store_dword v{vt[0]}, v{vt[1]}, s[{R_WS}:{R_WS+3}], s58 offen sc1", "flag")
    p("s_mov_b64 exec, -1")

def poll(p, arr, sblock, nwords=64, extra=None, vt=(2, 3), barrier=True, always=False, arr2=None):
    L = p.newlabel("PL"); D = p.newlabel("PD")
    if not always: p(f"s_cmp_lg_u32 s{S_WAVE}, 0\ns_cbranch_scc1 {D}")
    if arr2 is not None:
        p(f"s_lshl_b32 s55, s{arr2[1]}, 8\ns_add_u32 s55, s55, {arr2[0]:#x}\nv_and_b32 v18, 63, v0\nv_min_u32 v18, {arr2[2]-1}, v18\nv_lshlrev_b32 v18, 2, v18")
    p(f"s_lshl_b32 s58, s{sblock}, 8\ns_add_u32 s58, s58, {arr:#x}")
    p(f"v_and_b32 v{vt[0]}, 63, v0")
    if nwords < 64: p(f"v_min_u32 v{vt[0]}, {nwords-1}, v{vt[0]}")
    p(f"v_lshlrev_b32 v{vt[0]}, 2, v{vt[0]}")
    if extra is not None:
        pass
    p(f"s_mov_b32 s59, {SPIN}")
    p.label(L)
    p(f"buffer_load_dword v{vt[1]}, v{vt[0]}, s[{R_WS}:{R_WS+3}], s58 offen sc1")
    if extra is not None:
        p(f"v_mov_b32 v19, 0\nbuffer_load_dword v19, v19, s[{R_WS}:{R_WS+3}], s{extra} offen sc1")
    if arr2 is not None:
        p(f"buffer_load_dword v19, v18, s[{R_WS}:{R_WS+3}], s55 offen sc1")
    p("s_waitcnt vmcnt(0)")
    p(f"v_cmp_ne_u32 vcc, s{S_TAG}, v{vt[1]}")
    if extra is not None or arr2 is not None:
        p(f"v_cmp_ne_u32 s[56:57], s{S_TAG}, v19\ns_or_b64 vcc, vcc, s[56:57]")
    p(f"s_cbranch_vccz {D}")
    if SLEEP: p(f"s_sleep {SLEEP}")
    p(f"s_sub_u32 s59, s59, 1\ns_cmp_lg_u32 s59, 0\ns_cbranch_scc1 {L}")
    p.label(D)
    if barrier: p("s_barrier")

def paced(p, fns):
    for f in fns:
        n0 = len(p.vmq)
        f()
        if len(p.vmq) > PACE:
            p(f"s_waitcnt vmcnt({PACE})"); p.vmq = p.vmq[-PACE:]

def poll_with_bulk(p, bulk, *args, **kw):
    A = p.newlabel("BK"); B = p.newlabel("BK")
    q0 = list(p.vmq)
    p(f"s_cmp_eq_u32 s{S_WAVE}, 0\ns_cbranch_scc1 {A}")
    bulk()
    q1 = list(p.vmq)
    p.label(A)
    poll(p, *args, **kw)
    p(f"s_cmp_lg_u32 s{S_WAVE}, 0\ns_cbranch_scc1 {B}")
    p.vmq = list(q0)
    bulk()
    p.label(B)
    p.vmq = q1

def arrive(p, k, sblock, n):
    D = p.newlabel("AR")
    p("s_barrier")
    p(f"s_cmp_lg_u32 s{S_WAVE}, 0\ns_cbranch_scc1 {D}")
    p(f"s_lshl_b32 s58, s{sblock}, 9\ns_add_u32 s58, s58, {WS_CNT + k*128:#x}\nv_mov_b32 v2, 1\nv_mov_b32 v3, 0\ns_mov_b64 exec, 1")
    p(f"buffer_atomic_add v2, v3, s[{R_WS}:{R_WS+3}], s58 offen sc0 sc1\ns_waitcnt vmcnt(0)\nv_readfirstlane_b32 s59, v2\ns_mov_b64 exec, -1")
    p(f"s_cmp_lg_u32 s59, {n-1}\ns_cbranch_scc1 {D}")
    p(f"s_lshl_b32 s58, s{sblock}, 7\ns_add_u32 s58, s58, {WS_GO + k*2048:#x}\nv_mov_b32 v2, s{S_TAG}\ns_mov_b64 exec, 1")
    p(f"buffer_store_dword v2, v3, s[{R_WS}:{R_WS+3}], s58 offen sc1\ns_mov_b64 exec, -1")
    p.label(D)

def arrive_line(p, k, sblock, smember):
    D = p.newlabel("AR")
    p("s_barrier")
    p(f"s_cmp_lg_u32 s{S_WAVE}, 0\ns_cbranch_scc1 {D}")
    p(f"s_lshl_b32 s58, s{sblock}, 4\ns_add_u32 s58, s58, s{smember}\ns_lshl_b32 s58, s58, 7\ns_add_u32 s58, s58, {WS_FL2 + k*32768:#x}")
    p(f"v_mov_b32 v2, s{S_TAG}\nv_mov_b32 v3, 0\ns_mov_b64 exec, 1\nbuffer_store_dword v2, v3, s[{R_WS}:{R_WS+3}], s58 offen sc1\ns_mov_b64 exec, -1")
    p.label(D)

def wait_go(p, k, sblock, arr2=None, bulk=None, lines=0):
    A = p.newlabel("BK"); B = p.newlabel("BK"); L = p.newlabel("PL"); D = p.newlabel("PD")
    q0 = list(p.vmq)
    if BULK0 and bulk:
        bulk(); bulk = None
        q1 = list(p.vmq)
        p(f"s_cmp_lg_u32 s{S_WAVE}, 0\ns_cbranch_scc1 {D}")
    else:
        p(f"s_cmp_eq_u32 s{S_WAVE}, 0\ns_cbranch_scc1 {A}")
        if bulk:
            p("s_sleep 1")
            bulk()
        q1 = list(p.vmq)
        p(f"s_branch {D}")
    p.label(A)
    if lines:
        p(f"s_lshl_b32 s58, s{sblock}, 11\ns_add_u32 s58, s58, {WS_FL2 + k*32768:#x}\nv_min_u32 v2, {lines-1}, v1\nv_lshlrev_b32 v2, 7, v2\ns_mov_b32 s59, {SPIN}")
    else:
        p(f"s_lshl_b32 s58, s{sblock}, 7\ns_add_u32 s58, s58, {WS_GO + k*2048:#x}\nv_mov_b32 v2, 0\ns_mov_b32 s59, {SPIN}")
    if arr2 is not None:
        p(f"s_lshl_b32 s55, s{arr2[1]}, 8\ns_add_u32 s55, s55, {arr2[0]:#x}\nv_and_b32 v18, 63, v0\nv_min_u32 v18, {arr2[2]-1}, v18\nv_lshlrev_b32 v18, 2, v18")
    p.label(L)
    p(f"buffer_load_dword v3, v2, s[{R_WS}:{R_WS+3}], s58 offen sc1")
    if arr2 is not None: p(f"buffer_load_dword v19, v18, s[{R_WS}:{R_WS+3}], s55 offen sc1")
    p(f"s_waitcnt vmcnt(0)\nv_cmp_ne_u32 vcc, s{S_TAG}, v3")
    if arr2 is not None: p(f"v_cmp_ne_u32 s[56:57], s{S_TAG}, v19\ns_or_b64 vcc, vcc, s[56:57]")
    p(f"s_cbranch_vccz {D}")
    if SLEEP: p(f"s_sleep {SLEEP}")
    p(f"s_sub_u32 s59, s59, 1\ns_cmp_lg_u32 s59, 0\ns_cbranch_scc1 {L}")
    p.label(D)
    p("s_barrier")
    if bulk:
        p(f"s_cmp_lg_u32 s{S_WAVE}, 0\ns_cbranch_scc1 {B}")
        p.vmq = list(q0)
        bulk()
        p.label(B)
    p.vmq = q1

def wave_sum(p, regs, tmp):
    for ctl in ("quad_perm:[1,0,3,2]", "quad_perm:[2,3,0,1]", "row_half_mirror", "row_mirror"):
        for r in regs: p(f"v_add_f32_dpp v{r}, v{r}, v{r} {ctl} row_mask:0xf bank_mask:0xf")
    for sw in ("v_permlane16_swap_b32", "v_permlane32_swap_b32"):
        for r, t in zip(regs, tmp): p(f"v_mov_b32 v{t}, v{r}")
        for r, t in zip(regs, tmp): p(f"{sw} v{r}, v{t}")
        for r, t in zip(regs, tmp): p(f"v_add_f32 v{r}, v{r}, v{t}")

def tr_addr(p, dst, tmp, pitch, hrows):
    p(f"v_lshrrev_b32 v{dst}, 5, v1\nv_mul_u32_u24 v{dst}, {hrows}, v{dst}\nv_bfe_u32 v{tmp}, v1, 2, 2\nv_add_u32 v{dst}, v{dst}, v{tmp}\nv_mul_u32_u24 v{dst}, {pitch}, v{dst}")
    p(f"v_bfe_u32 v{tmp}, v1, 4, 1\nv_lshlrev_b32 v{tmp}, 5, v{tmp}\nv_add_u32 v{dst}, v{dst}, v{tmp}\nv_and_b32 v{tmp}, 3, v1\nv_lshlrev_b32 v{tmp}, 3, v{tmp}\nv_add_u32 v{dst}, v{dst}, v{tmp}")

def softmax_ops(blocks, sL, tmp):
    L = []; p = L.append
    n = len(blocks)
    M = [tmp + 4*i for i in range(n)]; T = [m + 1 for m in M]; S = [m + 2 for m in M]
    for (b, o), m in zip(blocks, M): p(f"v_max3_f32 v{m}, v{b}, v{b+1}, v{b+2}")
    for (b, o), m in zip(blocks, M): p(f"v_max3_f32 v{m}, v{m}, v{b+3}, v{b+4}")
    for (b, o), m in zip(blocks, M): p(f"v_max3_f32 v{m}, v{m}, v{b+5}, v{b+6}")
    for (b, o), m in zip(blocks, M): p(f"v_max_f32 v{m}, v{m}, v{b+7}")
    for m, t in zip(M, T): p(f"v_mov_b32 v{t}, v{m}")
    for m, t in zip(M, T): p(f"v_permlane32_swap_b32 v{m}, v{t}")
    for m, t in zip(M, T): p(f"v_max_f32 v{m}, v{m}, v{t}")
    for m in M: p(f"v_mul_f32 v{m}, s{sL}, v{m}")
    for (b, o), m in zip(blocks, M):
        for i in range(4):
            p(f"v_pk_fma_f32 v[{b+2*i}:{b+2*i+1}], v[{b+2*i}:{b+2*i+1}], s[{sL}:{sL+1}], v[{m}:{m+1}] op_sel_hi:[1,1,0] neg_lo:[0,0,1] neg_hi:[0,0,1]")
    for (b, o), m in zip(blocks, M):
        for i in range(8): p(f"v_exp_f32 v{b+i}, v{b+i}")
    for (b, o), s_ in zip(blocks, S): p(f"v_pk_add_f32 v[{s_}:{s_+1}], v[{b}:{b+1}], v[{b+2}:{b+3}]")
    for (b, o), m in zip(blocks, M): p(f"v_pk_add_f32 v[{m}:{m+1}], v[{b+4}:{b+5}], v[{b+6}:{b+7}]")
    for m, s_ in zip(M, S): p(f"v_pk_add_f32 v[{m}:{m+1}], v[{m}:{m+1}], v[{s_}:{s_+1}]")
    for m, t in zip(M, T): p(f"v_add_f32 v{m}, v{m}, v{t}")
    for m, t in zip(M, T): p(f"v_mov_b32 v{t}, v{m}")
    for m, t in zip(M, T): p(f"v_permlane32_swap_b32 v{m}, v{t}")
    for m, t in zip(M, T): p(f"v_add_f32 v{m}, v{m}, v{t}")
    for m in M: p(f"v_rcp_f32 v{m}, v{m}")
    for (b, o), m in zip(blocks, M):
        for i in range(4): p(f"v_pk_mul_f32 v[{b+2*i}:{b+2*i+1}], v[{b+2*i}:{b+2*i+1}], v[{m}:{m+1}] op_sel_hi:[1,0]")
    for (b, o), m in zip(blocks, M):
        for i in range(4): p(f"v_cvt_pk_bf16_f32 v{o+i}, v{b+2*i}, v{b+2*i+1}")
    return L

def stream(p, mf, ring, R, L, pend=None, fill=None, emit=None, fill_total=None, pend_every=1):
    pend = pend if pend is not None else []
    fill = fill if fill is not None else []
    emit = emit or p
    n = len(mf)
    uid = p.newlabel("t")
    def rd(i):
        m = mf[i]
        if m.get("pre"): m["pre"]()
        b = ring + 4*(i % R)
        p.ds(f"ds_read_b64_tr_b16 v[{b}:{b+1}], v{m['areg']} offset:{m['off'][0]}", f"{uid}_{i}")
        p.ds(f"ds_read_b64_tr_b16 v[{b+2}:{b+3}], v{m['areg']} offset:{m['off'][1]}", f"{uid}_{i}")
    for i in range(min(L, n)): rd(i)
    for i in range(n):
        m = mf[i]
        if m.get("before"): m["before"]()
        tags = [f"{uid}_{i}"] + ([f"{uid}_{i+1}"] if (i % 2 == 0 and i + 1 < n and i + 1 < i + L - 1) else [])
        p.wait(vm=m.get("vm"), ds=tags)
        b = ring + 4*(i % R)
        p(f"v_mfma_f32_32x32x16_bf16 {m['acc']}, v[{b}:{b+3}], {m['B']}, {m.get('C', m['acc'])}")
        if i + L < n: rd(i + L)
        if m.get("post"): m["post"]()
        if pend and i % pend_every == 0: pend.pop(0)()
        if fill:
            k = -(-len(fill) // max(n - i - 2, 1))
            for _ in range(min(k, len(fill))): emit(fill.pop(0))

def stream128(p, mf, ring, R, L, wait_every=4, fill=None, emit=None, per=None):
    fill = fill if fill is not None else []
    emit = emit or p
    n = len(mf); uid = p.newlabel("t")
    def rd(i):
        m = mf[i]
        if m.get("pre"): m["pre"]()
        b = ring + 4*(i % R)
        p.ds(f"ds_read_b128 v[{b}:{b+3}], v{m['areg']} offset:{m['off']}", f"{uid}_{i}")
    for i in range(min(L, n)): rd(i)
    for i in range(n):
        m = mf[i]
        last = min(n - 1, i + wait_every - 1) if i % wait_every == 0 else i
        p.wait(vm=m.get("vm"), ds=[f"{uid}_{j}" for j in range(i, last + 1)])
        b = ring + 4*(i % R)
        p(f"v_mfma_f32_32x32x16_bf16 {m['acc']}, v[{b}:{b+3}], {m['B']}, {m.get('C', m['acc'])}")
        if i + L < n: rd(i + L)
        if m.get("post"): m["post"]()
        if fill:
            k = -(-len(fill) // max(n - i - 2, 1))
            for _ in range(min(k, len(fill))): emit(fill.pop(0))

def stream2(p, mf, ring, R, L, pend=None, pend_at=None):
    pend = pend if pend is not None else []
    uid = p.newlabel("t")
    frags = [i for i, m in enumerate(mf) if not m.get("share")]
    fidx = {}
    c = -1
    for i, m in enumerate(mf):
        if not m.get("share"): c += 1
        fidx[i] = c
    nf = len(frags)
    def rd(f):
        m = mf[frags[f]]
        if m.get("pre"): m["pre"]()
        b = ring + 4*(f % R)
        p.ds(f"ds_read_b64_tr_b16 v[{b}:{b+1}], v{m['areg']} offset:{m['off'][0]}", f"{uid}_{f}")
        p.ds(f"ds_read_b64_tr_b16 v[{b+2}:{b+3}], v{m['areg']} offset:{m['off'][1]}", f"{uid}_{f}")
    for f in range(min(L, nf)): rd(f)
    for i, m in enumerate(mf):
        f = fidx[i]
        p.wait(vm=m.get("vm"), ds=f"{uid}_{f}")
        b = ring + 4*(f % R)
        p(f"v_mfma_f32_32x32x16_bf16 {m['acc']}, v[{b}:{b+3}], {m['B']}, {m['acc']}")
        if not m.get("share") and f + L < nf: rd(f + L)
        if m.get("post"): m["post"]()

def interleave(p, ops, fns, every):
    fns = list(fns)
    for i, x in enumerate(ops):
        p(x)
        if fns and i % every == every - 1: fns.pop(0)()
    for f in fns: f()

def wsrc_swz128(p, dst, tmp):
    p(f"v_lshrrev_b32 v{dst}, 3, v1\nv_lshlrev_b32 v{dst}, 10, v{dst}")
    p(f"v_bfe_u32 v{tmp}, v1, 4, 1\nv_lshlrev_b32 v{tmp}, 2, v{tmp}\nv_xor_b32 v{tmp}, v{tmp}, v1\nv_and_b32 v{tmp}, 7, v{tmp}\nv_lshlrev_b32 v{tmp}, 4, v{tmp}")
    p(f"v_add_u32 v{dst}, v{dst}, v{tmp}")

def tr_addr_swz128(p, d0, d1, tmp):
    p(f"v_lshrrev_b32 v{d0}, 5, v1\nv_lshlrev_b32 v{d0}, 2, v{d0}\nv_bfe_u32 v{tmp}, v1, 2, 2\nv_add_u32 v{d0}, v{d0}, v{tmp}\nv_lshlrev_b32 v{d0}, 7, v{d0}")
    p(f"v_bfe_u32 v{tmp}, v1, 3, 1\nv_lshlrev_b32 v{tmp}, 6, v{tmp}\nv_add_u32 v{d0}, v{d0}, v{tmp}")
    p(f"v_bfe_u32 v{tmp}, v1, 4, 1\nv_lshlrev_b32 v{tmp}, 5, v{tmp}\nv_add_u32 v{d0}, v{d0}, v{tmp}")
    p(f"v_and_b32 v{tmp}, 3, v1\nv_lshlrev_b32 v{tmp}, 3, v{tmp}\nv_add_u32 v{d0}, v{d0}, v{tmp}")
    p(f"v_xor_b32 v{d1}, 64, v{d0}")

L_W1, L_WPHI, L_SCR, L_KVP = 0, 98304, 102400, 139264
W1BASE = {1: 0, 2: 32768, 0: 65536}
L_CS = 102400
L_WO, L_RED2 = 0, 65536
K3_NR = 10
L_WD_W = 36864
L_DT = 102400 + 17408
L_CSP = 147456
LDS_BYTES = 160*1024

def roles(p):
    p(f"s_and_b32 s{S_X}, s2, 7\ns_lshr_b32 s{S_I}, s2, 3")
    p(f"s_lshr_b32 s24, s{S_X}, 1\ns_lshl_b32 s24, s24, 2\ns_lshr_b32 s23, s{S_I}, 3\ns_add_u32 s24, s24, s23")
    p(f"s_and_b32 s25, s{S_X}, 1\ns_lshl_b32 s25, s25, 3\ns_and_b32 s23, s{S_I}, 7\ns_add_u32 s25, s25, s23")
    p(f"s_lshl_b32 s26, s{S_X}, 2\ns_lshr_b32 s23, s{S_I}, 3\ns_add_u32 s26, s26, s23\ns_and_b32 s27, s{S_I}, 7")
    p(f"s_lshr_b32 s28, s{S_X}, 2\ns_lshl_b32 s28, s28, 3\ns_lshr_b32 s23, s{S_I}, 2\ns_add_u32 s28, s28, s23")
    p(f"s_and_b32 s29, s{S_X}, 3\ns_lshl_b32 s29, s29, 2\ns_and_b32 s23, s{S_I}, 3\ns_add_u32 s29, s29, s23")
    p("s_lshr_b32 s30, s2, 4")

def p0(p):
    vX, vW = 4, 5
    R_A, R_B, R_C = 8, 12, 16
    p(f"v_lshlrev_b32 v{vX}, 4, v1")
    DM = p.newlabel("DMAW"); JN = p.newlabel("P0J")
    p(f"s_cmp_ge_u32 s{S_WAVE}, 2\ns_cbranch_scc1 {DM}")
    p(f"s_lshl_b32 s31, s2, 3\ns_lshl_b32 s32, s{S_WAVE}, 2\ns_add_u32 s31, s31, s32\ns_lshl_b32 s32, s31, 10")
    p("v_and_b32 v8, 3, v1\nv_lshrrev_b32 v9, 2, v1\nv_lshlrev_b32 v10, 10, v8\nv_lshlrev_b32 v11, 4, v9\nv_add_u32 v10, v10, v11")
    p("s_waitcnt lgkmcnt(0)")
    srd(p, R_A, P_X, 2048*512*2)
    XI = 12
    srd(p, R_WS, P_WS, WS_SIZE)
    Z = p.newlabel("Z")
    p(f"s_and_b32 s35, s2, 15\ns_xor_b32 s37, s{S_WAVE}, 1\ns_or_b32 s35, s35, s37\ns_cmp_lg_u32 s35, 0\ns_cbranch_scc1 {Z}")
    p("v_mov_b32 v28, 0\nv_mov_b32 v29, 0\nv_mov_b32 v30, 0\nv_mov_b32 v31, 0")
    p(f"s_mul_i32 s35, s30, 4352\ns_add_u32 s35, s35, {WS_KV:#x}")
    for i in range(4): p(f"buffer_store_dwordx4 v[28:31], v{vX}, s[{R_WS}:{R_WS+3}], s35 offen offset:{i*1024} sc1")
    p("s_add_u32 s35, s35, 4096\ns_mov_b64 exec, 0xffff")
    p(f"buffer_store_dwordx4 v[28:31], v{vX}, s[{R_WS}:{R_WS+3}], s35 offen sc1")
    p(f"s_lshl_b32 s35, s30, 9\ns_add_u32 s35, s35, {WS_CNT:#x}\ns_mov_b32 exec_lo, -1")
    p(f"buffer_store_dwordx4 v[28:31], v{vX}, s[{R_WS}:{R_WS+3}], s35 offen sc1")
    p("s_mov_b64 exec, -1")
    p.label(Z)
    for i in range(4): p.vm(f"buffer_load_dwordx4 v[{XI+4*i}:{XI+4*i+3}], v10, s[{R_A}:{R_A+3}], s32 offen offset:{i*256}", "x")
    p(f"s_mov_b32 s59, {WS_EP:#x}\ns_load_dword s{S_TAG}, s[{P_WS}:{P_WS+1}], s59")
    p(f"v_lshlrev_b32 v9, 7, v9\nv_lshlrev_b32 v8, 4, v8\nv_add_u32 v8, v8, v9\ns_lshl_b32 s36, s{S_WAVE}, 6\ns_lshl_b32 s37, s2, 13\ns_add_u32 s36, s36, s37\ns_add_u32 s36, s36, {WS_XN:#x}")
    stamp(p, "p0 issue")
    p.wait(vm="x")
    stamp(p, "p0 x landed")
    B = 32
    for i in range(16): p(f"v_lshlrev_b32 v{B+2*i}, 16, v{XI+i}\nv_and_b32 v{B+2*i+1}, 0xffff0000, v{XI+i}")
    def tree(op_first, dst):
        for i in range(8): op_first(i)
        for w_ in (4, 2, 1):
            for i in range(w_): p(f"v_pk_add_f32 v[{64+2*i}:{65+2*i}], v[{64+2*i}:{65+2*i}], v[{64+2*(i+w_)}:{65+2*(i+w_)}]")
        p(f"v_add_f32 v{dst}, v64, v65")
    def row_reduce(r):
        p(f"v_add_f32_dpp v{r}, v{r}, v{r} row_ror:4 row_mask:0xf bank_mask:0xf\nv_add_f32_dpp v{r}, v{r}, v{r} row_ror:8 row_mask:0xf bank_mask:0xf")
        for sw in ("v_permlane16_swap_b32", "v_permlane32_swap_b32"):
            p(f"v_mov_b32 v{r+1}, v{r}\n{sw} v{r}, v{r+1}\nv_add_f32 v{r}, v{r}, v{r+1}")
    tree(lambda i: p(f"v_pk_add_f32 v[{64+2*i}:{65+2*i}], v[{B+4*i}:{B+4*i+1}], v[{B+4*i+2}:{B+4*i+3}]"), 80)
    row_reduce(80)
    p("v_mul_f32 v80, 0xbb000000, v80")
    for i in range(16): p(f"v_pk_add_f32 v[{B+2*i}:{B+2*i+1}], v[{B+2*i}:{B+2*i+1}], v[80:81] op_sel_hi:[1,0]")
    def sq(i):
        p(f"v_pk_mul_f32 v[{64+2*i}:{65+2*i}], v[{B+4*i}:{B+4*i+1}], v[{B+4*i}:{B+4*i+1}]")
    for i in range(8): sq(i)
    for i in range(8): p(f"v_pk_fma_f32 v[{64+2*i}:{65+2*i}], v[{B+4*i+2}:{B+4*i+3}], v[{B+4*i+2}:{B+4*i+3}], v[{64+2*i}:{65+2*i}]")
    tree(lambda i: None, 82)
    row_reduce(82)
    p("v_mov_b32 v84, 0x3727c5ac\nv_fmac_f32 v84, 0x3b000000, v82\nv_rsq_f32 v84, v84")
    for i in range(16): p(f"v_pk_mul_f32 v[{B+2*i}:{B+2*i+1}], v[{B+2*i}:{B+2*i+1}], v[84:85] op_sel_hi:[1,0]")
    for n in range(4):
        for i in range(4): p(f"v_cvt_pk_bf16_f32 v{XI+4*n+i}, v{B+8*n+2*i}, v{B+8*n+2*i+1}")
        if n == 2: p("s_add_u32 s36, s36, 4096")
        p.vm(f"buffer_store_dwordx4 v[{XI+4*n}:{XI+4*n+3}], v8, s[{R_WS}:{R_WS+3}], s36 offen offset:{(n%2)*2048} sc1", "xn")
    p("s_waitcnt vmcnt(0) lgkmcnt(0)"); p.vmq = []
    p(f"s_mul_i32 s{S_TAG}, s{S_TAG}, 0x9e3779b1\ns_add_u32 s{S_TAG}, s{S_TAG}, 1")
    p(f"s_lshl_b32 s58, s2, 1\ns_add_u32 s58, s58, s{S_WAVE}\ns_lshl_b32 s58, s58, 7\ns_add_u32 s58, s58, {WS_F1:#x}")
    p(f"v_mov_b32 v2, s{S_TAG}\nv_mov_b32 v3, 0\ns_mov_b64 exec, 1")
    p(f"buffer_store_dword v2, v3, s[{R_WS}:{R_WS+3}], s58 offen sc1\ns_mov_b64 exec, -1")
    stamp(p, "p0 flag")
    if HOLD0: p("s_barrier")
    p(f"s_cmp_lg_u32 s{S_WAVE}, 0\ns_cbranch_scc1 {JN}")
    srd(p, R_C, P_WPHI, 32*16*16*2)
    p(f"s_lshl_b32 s35, s25, 10\ns_mov_b32 m0, {L_WPHI}")
    p(f"buffer_load_dwordx4 v{vX}, s[{R_C}:{R_C+3}], s35 offen lds")
    p(f"s_branch {JN}")
    p.label(DM)
    if CODEPF:
        CP = p.newlabel("CP")
        p(f"s_cmp_lg_u32 s{S_WAVE}, 3\ns_cbranch_scc1 {CP}")
        p(f"s_and_b32 s40, s62, 0xffffff80\ns_and_b32 s41, s63, 0xffff\ns_mov_b32 s42, L_codeend-{NAME}_kernel\ns_mov_b32 s43, 0x20000")
        p(f"s_mul_i32 s35, s{S_I}, {CODE_LINES_PER_WG}\nv_min_u32 v12, {CODE_LINES_PER_WG-1}, v1\nv_add_u32 v12, s35, v12\nv_lshlrev_b32 v12, 7, v12")
        p("buffer_load_dword v13, v12, s[40:43], 0 offen")
        p.label(CP)
    p("s_waitcnt lgkmcnt(0)")
    srd(p, R_B, P_WQKV, 512*1536*2)
    p(f"v_lshrrev_b32 v{vW}, 2, v1\nv_mul_u32_u24 v{vW}, 3072, v{vW}\nv_and_b32 v10, 3, v1\nv_lshlrev_b32 v10, 4, v10\nv_add_u32 v{vW}, v{vW}, v10")
    p(f"s_sub_u32 s32, s{S_WAVE}, 1\ns_lshl_b32 s33, s32, 10\ns_lshl_b32 s34, s25, 6\ns_add_u32 s33, s33, s34")
    p(f"s_sub_u32 s34, s{S_WAVE}, 2\ns_lshl_b32 s34, s34, 15")
    p("s_and_b32 s36, s24, 3\ns_lshl_b32 s36, s36, 1\ns_and_b32 s37, s25, 1\ns_add_u32 s36, s36, s37\ns_lshl_b32 s36, s36, 2")
    for ks in range(32):
        p(f"s_add_u32 s37, s36, {ks}\ns_and_b32 s37, s37, 31\ns_mul_i32 s38, s37, {16*3072}\ns_add_u32 s38, s38, s33\ns_lshl_b32 s39, s37, 10\ns_add_u32 m0, s39, s34")
        if HOLD0 and ks == HOLD0: p("s_barrier")
        if ks >= PACE0: p(f"s_waitcnt vmcnt({PACE0-1})")
        p(f"buffer_load_dwordx4 v{vW}, s[{R_B}:{R_B+3}], s38 offen lds")
    p(f"s_mov_b32 s59, {WS_EP:#x}\ns_load_dword s{S_TAG}, s[{P_WS}:{P_WS+1}], s59")
    srd(p, R_WS, P_WS, WS_SIZE)
    p("s_waitcnt vmcnt(0) lgkmcnt(0)")
    p(f"s_mul_i32 s{S_TAG}, s{S_TAG}, 0x9e3779b1\ns_add_u32 s{S_TAG}, s{S_TAG}, 1")
    stamp(p, "p0 W1 landed")
    p.label(JN)
    p.vmq = []
    p("s_barrier")
    L = p.newlabel("PL"); D = p.newlabel("PD")
    p(f"s_cmp_lg_u32 s{S_WAVE}, 0\ns_cbranch_scc1 {D}")
    stamp(p, "p0 poll start")
    p(f"s_lshl_b32 s35, s24, 5\nv_add_u32 v2, s35, v1\ns_lshl_b32 s35, s25, 5\ns_add_u32 s35, s35, 1\nv_mov_b32 v3, s35\nv_cmp_gt_u32 vcc, 32, v1\nv_cndmask_b32 v2, v3, v2, vcc\nv_lshlrev_b32 v2, 7, v2")
    p(f"s_mov_b32 s58, {WS_F1:#x}\ns_mov_b32 s59, {SPIN}")
    p.label(L)
    p(f"buffer_load_dword v3, v2, s[{R_WS}:{R_WS+3}], s58 offen sc1\ns_waitcnt vmcnt(0)\nv_cmp_ne_u32 vcc, s{S_TAG}, v3\ns_cbranch_vccz {D}")
    if SLEEP: p(f"s_sleep {SLEEP}")
    p(f"s_sub_u32 s59, s59, 1\ns_cmp_lg_u32 s59, 0\ns_cbranch_scc1 {L}")
    p.label(D)
    p("s_barrier")
    stamp(p, "S1 passed")

def touch(p):
    if not TOUCH: return
    E = p.newlabel("TC"); W1 = p.newlabel("TC"); W2 = p.newlabel("TC"); W3 = p.newlabel("TC"); DU = p.newlabel("TC")
    p(f"s_cmp_eq_u32 s{S_WAVE}, 1\ns_cbranch_scc1 {W1}\ns_cmp_eq_u32 s{S_WAVE}, 2\ns_cbranch_scc1 {W2}\ns_cmp_eq_u32 s{S_WAVE}, 3\ns_cbranch_scc1 {W3}")
    p.label(DU)
    p(f"v_mov_b32 v253, 0\ns_mov_b32 s52, {WS_EP:#x}\ns_mov_b64 exec, 1")
    p(f"buffer_load_dword v250, v253, s[{R_WS}:{R_WS+3}], s52 offen\nbuffer_load_dword v251, v253, s[{R_WS}:{R_WS+3}], s52 offen\ns_mov_b64 exec, -1\ns_branch {E}")
    p.label(W1)
    p(f"s_cmp_ge_u32 s2, 224\ns_cbranch_scc1 {DU}")
    p(f"s_cmp_ge_u32 s2, 112\ns_cselect_b32 s54, 112, 0\ns_cselect_b32 s52, s{P_WU}, s{P_WG}\ns_cselect_b32 s53, s{P_WU+1}, s{P_WG+1}\ns_sub_u32 s55, s2, s54")
    srd(p, 48, 52, 512*1792*2)
    p(f"s_and_b32 s56, s55, 3\ns_mul_i32 s56, s56, {128*3584}\ns_lshr_b32 s55, s55, 2\ns_lshl_b32 s55, s55, 7\ns_add_u32 s56, s56, s55\nv_mul_u32_u24 v253, 3584, v1")
    p(f"buffer_load_dword v250, v253, s[48:51], s56 offen\ns_add_u32 s56, s56, {64*3584}\nbuffer_load_dword v251, v253, s[48:51], s56 offen\ns_branch {E}")
    p.label(W2)
    p(f"s_cmp_lt_u32 s2, 144\ns_cbranch_scc1 {DU}")
    srd(p, 48, P_WD, 1792*512*2)
    p("s_sub_u32 s56, s2, 144\ns_lshl_b32 s56, s56, 14\nv_lshlrev_b32 v253, 7, v1")
    p(f"buffer_load_dword v250, v253, s[48:51], s56 offen\ns_add_u32 s56, s56, 8192\nbuffer_load_dword v251, v253, s[48:51], s56 offen\ns_branch {E}")
    p.label(W3)
    srd(p, 48, P_WO, 512*512*2)
    p(f"s_lshl_b32 s56, s{S_I}, 14\nv_lshlrev_b32 v253, 7, v1")
    p(f"buffer_load_dword v250, v253, s[48:51], s56 offen\ns_add_u32 s56, s56, 8192\nbuffer_load_dword v251, v253, s[48:51], s56 offen")
    p.label(E)
    p.vmq += ["tch", "tch"]

def cs_loads(p):
    CSL = p.newlabel("CS")
    p(f"s_cmp_ge_u32 s2, 224\ns_cbranch_scc1 {CSL}")
    p(f"s_cmp_ge_u32 s2, 112\ns_cselect_b32 s54, 112, 0\ns_cselect_b32 s52, s{P_WU}, s{P_WG}\ns_cselect_b32 s53, s{P_WU+1}, s{P_WG+1}")
    p("s_sub_u32 s55, s2, s54")
    srd(p, 48, 52, 512*1792*2)
    p("s_lshr_b32 s56, s55, 2\ns_and_b32 s57, s55, 3")
    p(f"s_lshl_b32 s52, s57, 2\ns_add_u32 s52, s52, s{S_WAVE}\ns_mul_i32 s52, s52, {32*3584}\ns_lshl_b32 s53, s56, 7\ns_add_u32 s52, s52, s53")
    p("v_lshrrev_b32 v56, 3, v1\nv_mul_u32_u24 v56, 3584, v56\nv_bfe_u32 v57, v1, 4, 1\nv_lshlrev_b32 v57, 2, v57\nv_xor_b32 v57, v57, v1\nv_and_b32 v57, 7, v57\nv_lshlrev_b32 v57, 4, v57\nv_add_u32 v56, v56, v57")
    p(f"s_lshl_b32 s53, s{S_WAVE}, 12\ns_add_u32 s53, s53, {L_CS}")
    for n in range(4):
        p(f"s_add_u32 s54, s52, {n*8*3584}\ns_add_u32 m0, s53, {n*1024}")
        p(f"buffer_load_dwordx4 v56, s[48:51], s54 offen lds")
    p.label(CSL)

def dt_loads(p):
    D = p.newlabel("DT")
    p(f"s_cmp_lt_u32 s2, 144\ns_cbranch_scc1 {D}")
    srd(p, 48, P_WD, 1792*512*2)
    p(f"s_sub_u32 s54, s2, 144\ns_lshl_b32 s54, s54, 14\ns_lshl_b32 s55, s{S_WAVE}, 12\ns_add_u32 s54, s54, s55\ns_add_u32 s55, s55, {L_DT}")
    for n in range(4):
        p(f"v_xor_b32 v56, {n << 2}, v1\nv_lshlrev_b32 v56, 4, v56\ns_add_u32 s56, s54, {n*1024}\ns_add_u32 m0, s55, {n*1024}")
        p(f"buffer_load_dwordx4 v56, s[48:51], s56 offen lds")
    p.label(D)

def dt_compute(p):
    D = p.newlabel("DT")
    p(f"s_cmp_lt_u32 s2, 144\ns_cbranch_scc1 {D}")
    p("v_bfe_u32 v18, v1, 2, 2\nv_lshrrev_b32 v19, 5, v1\nv_lshlrev_b32 v19, 2, v19\nv_add_u32 v19, v19, v18\nv_lshlrev_b32 v19, 10, v19\nv_lshlrev_b32 v18, 6, v18\nv_add_u32 v18, v18, v19")
    p(f"v_bfe_u32 v19, v1, 4, 1\nv_lshlrev_b32 v19, 5, v19\nv_add_u32 v18, v18, v19\nv_and_b32 v19, 3, v1\nv_lshlrev_b32 v19, 3, v19\nv_add_u32 v18, v18, v19")
    p(f"s_lshl_b32 s35, s{S_WAVE}, 8\ns_add_u32 s35, s35, {L_DT}")
    for a_ in range(4):
        p(f"v_xor_b32 v19, {a_ << 6}, v18\nv_add_u32 v19, s35, v19")
        p(f"ds_read_b64_tr_b16 v[{40+4*a_}:{41+4*a_}], v19\nds_read_b64_tr_b16 v[{42+4*a_}:{43+4*a_}], v19 offset:8192")
    p(f"s_sub_u32 s36, s2, 144\ns_lshl_b32 s36, s36, 14\ns_lshl_b32 s37, s{S_WAVE}, 12\ns_add_u32 s36, s36, s37\ns_add_u32 s36, s36, {WS_WDP:#x}")
    p("s_waitcnt lgkmcnt(0)")
    for a_ in range(4):
        p(f"buffer_store_dwordx4 v[{40+4*a_}:{43+4*a_}], v4, s[{R_WS}:{R_WS+3}], s36 offen offset:{a_*1024} sc1")
    p.label(D)

def dt_finish(p):
    D = p.newlabel("DT")
    p(f"s_cmp_lt_u32 s2, 144\ns_cbranch_scc1 {D}\ns_cmp_lg_u32 s{S_WAVE}, 2\ns_cbranch_scc1 {D}")
    p(f"s_sub_u32 s50, s2, 144\ns_lshl_b32 s50, s50, 2\ns_add_u32 s50, s50, {F7:#x}")
    p(f"v_mov_b32 v40, s{S_TAG}\nv_mov_b32 v41, 0\ns_mov_b64 exec, 1\nbuffer_store_dword v40, v41, s[{R_WS}:{R_WS+3}], s50 offen sc1\ns_mov_b64 exec, -1")
    p.label(D)

def cs_compute(p):
    CSL = p.newlabel("CS"); CSD = p.newlabel("CS")
    p(f"s_cmp_ge_u32 s2, 224\ns_cbranch_scc1 {CSD}")
    p(f"s_lshl_b32 s40, s{S_WAVE}, 12\ns_add_u32 s40, s40, {L_CS}")
    tr_addr_swz128(p, 18, 19, 20)
    p("v_add_u32 v18, s40, v18\nv_add_u32 v19, s40, v19\nv_mov_b32 v20, 0x3f803f80\nv_mov_b32 v21, 0x3f803f80\nv_mov_b32 v22, 0x3f803f80\nv_mov_b32 v23, 0x3f803f80")
    for ks in range(2):
        for cg in range(2):
            r = 24 + 8*ks + 4*cg
            p(f"ds_read_b64_tr_b16 v[{r}:{r+1}], v{18+cg} offset:{ks*2048}")
            p(f"ds_read_b64_tr_b16 v[{r+2}:{r+3}], v{18+cg} offset:{ks*2048+1024}")
    p("s_cmp_ge_u32 s2, 112\ns_cselect_b32 s36, 112, 0\ns_cselect_b32 s39, 256, 0\ns_sub_u32 s36, s2, s36\ns_lshr_b32 s37, s36, 2\ns_and_b32 s38, s36, 3")
    p(f"s_lshl_b32 s41, s37, 17\ns_lshl_b32 s38, s38, 13\ns_add_u32 s41, s41, s38\ns_lshl_b32 s38, s{S_WAVE}, 11\ns_add_u32 s41, s41, s38\ns_add_u32 s41, s41, s39\ns_add_u32 s41, s41, {WS_WP:#x}")
    p("v_bfe_u32 v16, v1, 4, 1\nv_lshlrev_b32 v16, 15, v16\nv_lshrrev_b32 v17, 5, v1\nv_lshlrev_b32 v17, 9, v17\nv_add_u32 v16, v16, v17\nv_and_b32 v17, 15, v1\nv_lshlrev_b32 v17, 4, v17\nv_add_u32 v16, v16, v17")
    p("s_waitcnt lgkmcnt(0)")
    for cg in range(2):
        if cg: p("s_add_u32 s41, s41, 65536")
        for ks in range(2):
            r = 24 + 8*ks + 4*cg
            p(f"buffer_store_dwordx4 v[{r}:{r+3}], v16, s[{R_WS}:{R_WS+3}], s41 offen offset:{ks*1024} sc1")
    for cg in range(2):
        for ks in range(2):
            r = 24 + 8*ks + 4*cg
            p(f"v_mfma_f32_32x32x16_bf16 v[{160+16*cg}:{175+16*cg}], v[20:23], v[{r}:{r+3}], {'0' if ks == 0 else f'v[{160+16*cg}:{175+16*cg}]'}")
    p(f"s_lshl_b32 s40, s{S_WAVE}, 8\ns_add_u32 s40, s40, {L_CSP}\nv_lshlrev_b32 v18, 2, v1\nv_add_u32 v18, s40, v18")
    p("s_mov_b32 exec_hi, 0")
    p("ds_write_b32 v18, v160\nds_write_b32 v18, v176 offset:128")
    p(f"s_mov_b64 exec, -1\ns_branch {CSL}")
    p.label(CSD)
    p(f"v_mov_b32 v18, 0\ns_mov_b32 s40, {WS_EP:#x}\ns_mov_b64 exec, 1")
    for n in range(4): p(f"buffer_load_dword v250, v18, s[{R_WS}:{R_WS+3}], s40 offen")
    p("s_mov_b64 exec, -1")
    p.label(CSL)
    p.vmq += ["pk"]*4

def cs_finish1(p):
    CS2 = p.newlabel("CS")
    p(f"s_cmp_ge_u32 s2, 224\ns_cbranch_scc1 {CS2}\ns_cmp_lg_u32 s{S_WAVE}, 1\ns_cbranch_scc1 {CS2}")
    p(f"v_lshlrev_b32 v40, 2, v1\nv_add_u32 v40, {L_CSP}, v40")
    for w in range(4): p(f"ds_read_b32 v{42+w}, v40 offset:{w*256}")
    p("s_cmp_ge_u32 s2, 112\ns_cselect_b32 s50, 112, 0\ns_cselect_b32 s53, 64, 0\ns_sub_u32 s50, s2, s50")
    p("s_lshr_b32 s51, s50, 2\ns_and_b32 s52, s50, 3\ns_mul_i32 s54, s52, 14336\ns_lshl_b32 s55, s51, 9\ns_add_u32 s54, s54, s55\ns_add_u32 s54, s54, s53")
    p(f"s_add_u32 s54, s54, {WS_CS:#x}\nv_and_b32 v40, 15, v1\nv_lshlrev_b32 v40, 2, v40\nv_lshrrev_b32 v41, 4, v1\nv_lshlrev_b32 v41, 7, v41\nv_add_u32 v40, v40, v41")
    p("s_waitcnt lgkmcnt(0)\nv_add_f32 v42, v42, v43\nv_add_f32 v44, v44, v45\nv_add_f32 v42, v42, v44")
    p(f"buffer_store_dword v42, v40, s[{R_WS}:{R_WS+3}], s54 offen sc1")
    p.label(CS2)

def cs_finish2(p):
    CS2 = p.newlabel("CS")
    p(f"s_cmp_ge_u32 s2, 224\ns_cbranch_scc1 {CS2}\ns_cmp_lg_u32 s{S_WAVE}, 1\ns_cbranch_scc1 {CS2}")
    p("s_cmp_ge_u32 s2, 112\ns_cselect_b32 s50, 112, 0\ns_cselect_b32 s53, 4, 0\ns_sub_u32 s50, s2, s50\ns_lshr_b32 s51, s50, 2\ns_and_b32 s52, s50, 3")
    p(f"s_lshl_b32 s54, s51, 3\ns_add_u32 s54, s54, s53\ns_add_u32 s54, s54, s52\ns_lshl_b32 s54, s54, 2\ns_add_u32 s54, s54, {F6:#x}")
    p(f"s_waitcnt vmcnt(0)\nv_mov_b32 v40, s{S_TAG}\nv_mov_b32 v41, 0\ns_mov_b64 exec, 1\nbuffer_store_dword v40, v41, s[{R_WS}:{R_WS+3}], s54 offen sc1\ns_mov_b64 exec, -1")
    p.label(CS2)

def p1(p):
    vX, vT, vT2, vP, vS = 4, 6, 7, 8, 9
    ACC, X, WF = 16, 64, 192
    R_A = 8
    p(f"s_lshl_b32 s31, s24, 2\ns_add_u32 s31, s31, s{S_WAVE}")
    p(f"s_lshl_b32 s32, s31, 15\ns_add_u32 s32, s32, {WS_XN:#x}\ns_add_u32 s33, s32, 4096")
    p("v_bfe_u32 v5, v1, 3, 2\nv_lshlrev_b32 v5, 13, v5\nv_lshrrev_b32 v10, 5, v1\nv_lshlrev_b32 v10, 7, v10\nv_add_u32 v5, v5, v10\nv_and_b32 v10, 7, v1\nv_lshlrev_b32 v10, 4, v10\nv_add_u32 v5, v5, v10")
    def xload(ks):
        p.vm(f"buffer_load_dwordx4 v[{X+4*ks}:{X+4*ks+3}], v5, s[{R_WS}:{R_WS+3}], s{32 + ks//16} offen offset:{(ks%16)*256} sc1", f"x{ks}")
    LEAD = 8
    for ks in range(LEAD): xload(ks)
    tr_addr(p, vT, 10, 64, 8)
    p(f"v_add_u32 v{vT2}, 0x10000, v{vT}")
    AK_, AV_, AQ_ = ACC + 16, ACC + 32, ACC
    def ent(ks, part, acc, first):
        off = (W1BASE[part] % 65536) + ks*1024
        return dict(acc=f"v[{acc}:{acc+15}]", B=f"v[{X+4*ks}:{X+4*ks+3}]", areg=(vT2 if part == 0 else vT), off=(off, off+256), C=("0" if first else f"v[{acc}:{acc+15}]"))
    mf = []
    for ks in range(32):
        e = ent(ks, 1, AK_, ks == 0); e["vm"] = f"x{ks}"; mf.append(e)
        mf.append(ent(ks, 2, AV_, ks == 0))
    stream(p, mf, WF, 8, 5, pend=[(lambda k=k: xload(k)) for k in range(LEAD, 32)], pend_every=2)
    stamp(p, "p1 pass A")
    srd(p, 12, P_WQKV, 512*1536*2)
    p(f"v_lshrrev_b32 v14, 2, v1\nv_mul_u32_u24 v14, 3072, v14\nv_and_b32 v10, 3, v1\nv_lshlrev_b32 v10, 4, v10\nv_add_u32 v14, v14, v10")
    p(f"s_mul_i32 s33, s{S_WAVE}, {8*16*3072}\ns_lshl_b32 s34, s25, 6\ns_add_u32 s33, s33, s34\ns_lshl_b32 s34, s{S_WAVE}, 13")
    for c in range(8):
        p(f"s_add_u32 s35, s33, {c*16*3072}\ns_add_u32 m0, s34, {W1BASE[0] + c*1024}")
        p.vm(f"buffer_load_dwordx4 v14, s[12:15], s35 offen lds", "wq")
    touch(p)
    WP = 224
    p(f"v_lshrrev_b32 v{vP}, 5, v1\nv_lshlrev_b32 v{vP}, 2, v{vP}\nv_bfe_u32 v10, v1, 2, 2\nv_add_u32 v{vP}, v{vP}, v10\nv_lshlrev_b32 v{vP}, 5, v{vP}")
    p(f"v_and_b32 v10, 3, v1\nv_lshlrev_b32 v10, 3, v10\nv_add_u32 v{vP}, v{vP}, v10\nv_add_u32 v{vP}, {L_WPHI}, v{vP}")
    p(f"v_and_b32 v{vS}, 16, v1\nv_lshlrev_b32 v{vS}, 11, v{vS}\nv_lshlrev_b32 v10, 16, v{vS}\nv_or_b32 v{vS}, v{vS}, v10")
    for hd in range(2):
        p.ds(f"ds_read_b64_tr_b16 v[{WP+4*hd}:{WP+4*hd+1}], v{vP} offset:{512*hd}", "wp")
        p.ds(f"ds_read_b64_tr_b16 v[{WP+4*hd+2}:{WP+4*hd+3}], v{vP} offset:{512*hd+256}", "wp")
    vA, vR = 10, 11
    p(f"s_mul_i32 s35, s{S_WAVE}, 9216\ns_add_u32 s35, s35, {L_SCR}")
    p(f"v_and_b32 v{vA}, 31, v1\nv_mul_u32_u24 v{vA}, 72, v{vA}\nv_lshrrev_b32 v12, 5, v1\nv_lshlrev_b32 v12, 3, v12\nv_add_u32 v{vA}, v{vA}, v12\nv_add_u32 v{vA}, s35, v{vA}")
    tr_addr(p, vR, 12, 72, 8)
    p(f"v_add_u32 v{vR}, s35, v{vR}")
    KB, VB = 232, 240
    for i in range(8): p(f"v_cvt_pk_bf16_f32 v{KB+i}, v{AK_+2*i}, v{AK_+2*i+1}")
    p.wait(ds="wp")
    for i in range(8): p(f"v_xor_b32 v{WP+i}, v{WP+i}, v{vS}")
    PK = [WF, WF + 16]
    for hd in range(2):
        p(f"v_mfma_f32_32x32x16_bf16 v[{PK[hd]}:{PK[hd]+15}], v[{WP+4*hd}:{WP+4*hd+3}], v[{KB+4*hd}:{KB+4*hd+3}], 0")
    for i in range(8): p(f"v_cvt_pk_bf16_f32 v{VB+i}, v{AV_+2*i}, v{AV_+2*i+1}")
    p("v_mov_b32 v12, 0x3f803f80\nv_mov_b32 v13, 0x3f803f80")
    for hd in range(2):
        for q in range(2):
            p.ds(f"ds_write_b64 v{vA}, v[{VB+4*hd+2*q}:{VB+4*hd+2*q+1}] offset:{(2+hd)*2304 + 16*q}", "st")
            p.ds(f"ds_write_b64 v{vA}, v[12:13] offset:{(2+hd)*2304 + 32 + 16*q}", "st")
    p(f"s_mov_b32 s36, {LOG2E:#x}\ns_mov_b32 s37, {LOG2E:#x}")
    OK_ = 32
    blk = [(PK[hd] + 8*sg, OK_ + 8*hd + 4*sg) for hd in range(2) for sg in range(2)]
    for x in softmax_ops(blk, 36, 48): p(x)
    for hd in range(2):
        for sg in range(2):
            for q in range(2):
                r = OK_ + 8*hd + 4*sg + 2*q
                p.ds(f"ds_write_b64 v{vA}, v[{r}:{r+1}] offset:{hd*2304 + 32*sg + 16*q}", "st")
    stamp(p, "p1 k softmax")
    p.wait(ds="st")
    F = WF
    for hd in range(2):
        for s2 in range(2):
            f = F + 8*(2*hd + s2)
            for ab in range(2):
                off = (2*ab + hd)*2304 + s2*1152
                p.ds(f"ds_read_b64_tr_b16 v[{f+4*ab}:{f+4*ab+1}], v{vR} offset:{off}", f"kv{hd}")
                p.ds(f"ds_read_b64_tr_b16 v[{f+4*ab+2}:{f+4*ab+3}], v{vR} offset:{off+288}", f"kv{hd}")
    C = [32, 48]
    p(f"s_mul_i32 s35, s{S_WAVE}, 4352\ns_add_u32 s35, s35, {L_KVP}")
    p("v_and_b32 v12, 31, v1\nv_lshlrev_b32 v12, 4, v12\nv_lshrrev_b32 v13, 5, v1\nv_mul_u32_u24 v13, 272, v13\nv_add_u32 v12, v12, v13\nv_add_u32 v12, s35, v12")
    for hd in range(2):
        p.wait(ds=f"kv{hd}")
        for s2 in range(2):
            f = F + 8*(2*hd + s2)
            c = "0" if s2 == 0 else f"v[{C[hd]}:{C[hd]+15}]"
            p(f"v_mfma_f32_32x32x16_bf16 v[{C[hd]}:{C[hd]+15}], v[{f}:{f+3}], v[{f+4}:{f+7}], {c}")
    p("s_mov_b32 exec_lo, 0x1ffff\ns_mov_b32 exec_hi, 0x1ffff")
    for hd in range(2):
        for b in range(4):
            p.ds(f"ds_write_b128 v12, v[{C[hd]+4*b}:{C[hd]+4*b+3}] offset:{hd*2176 + b*544}", "kvp")
    p("s_mov_b64 exec, -1")
    p.wait(ds="kvp")
    p("s_barrier")
    p("v_lshlrev_b32 v12, 2, v0")
    p(f"s_mul_i32 s35, s25, 4352\ns_add_u32 s35, s35, {WS_KV:#x}")
    p(f"v_add_u32 v13, {L_KVP}, v12")
    for i in range(5):
        for w in range(4): p.ds(f"ds_read_b32 v{32+4*i+w}, v13 offset:{w*4352 + i*1024}", f"r{i}")
    for i in range(4):
        p.wait(ds=f"r{i}")
        r = 32 + 4*i
        p(f"v_add_f32 v{r}, v{r}, v{r+1}\nv_add_f32 v{r+2}, v{r+2}, v{r+3}\nv_add_f32 v{r}, v{r}, v{r+2}")
        p.vm(f"buffer_atomic_add_f32 v{r}, v12, s[{R_WS}:{R_WS+3}], s35 offen offset:{i*1024}", "at")
    p.wait(ds="r4")
    p("v_add_f32 v48, v48, v49\nv_add_f32 v50, v50, v51\nv_add_f32 v48, v48, v50")
    AT = p.newlabel("AT")
    p(f"s_cmp_lg_u32 s{S_WAVE}, 0\ns_cbranch_scc1 {AT}")
    p(f"s_add_u32 s35, s35, 4096\nbuffer_atomic_add_f32 v48, v12, s[{R_WS}:{R_WS+3}], s35 offen")
    p.label(AT)
    stamp(p, "p1 kv atomics issued")
    if WQLATE:
        p.wait(vm="wq"); p("s_barrier")
    vWo, vWo2 = 14, 15
    wsrc_swz128(p, vWo, 10)
    p(f"v_add_u32 v{vWo2}, {8192-1024}, v{vWo}")
    srd(p, R_A, P_WO, 512*512*2)
    p(f"s_lshl_b32 s40, s{S_WAVE}, 17\ns_lshl_b32 s41, s27, 7\ns_add_u32 s40, s40, s41\ns_lshl_b32 s41, s{S_WAVE}, 14")
    def wo_load(k):
        def f():
            p(f"s_add_u32 s42, s40, {16*k*1024}\ns_add_u32 m0, s41, {L_WO + k*2048}")
            p.vm(f"buffer_load_dwordx4 v{vWo}, s[{R_A}:{R_A+3}], s42 offen lds", "wo")
            p.vm(f"buffer_load_dwordx4 v{vWo2}, s[{R_A}:{R_A+3}], s42 offen offset:1024 lds", "wo")
        return f
    mf = [ent(ks, 0, AQ_, ks == 0) for ks in range(32)]
    def tiles():
        cs_loads(p); dt_loads(p)
    stream(p, mf, WF, 8, 5, pend=[tiles] + [wo_load(k) for k in range(8)], pend_every=3)
    QB = 232
    for i in range(8): p(f"v_cvt_pk_bf16_f32 v{QB+i}, v{AQ_+2*i}, v{AQ_+2*i+1}")
    PQ = [64, 80]
    for hd in range(2):
        p(f"v_mfma_f32_32x32x16_bf16 v[{PQ[hd]}:{PQ[hd]+15}], v[{WP+4*hd}:{WP+4*hd+3}], v[{QB+4*hd}:{QB+4*hd+3}], 0")
    p("s_barrier")
    stamp(p, "p1 pass B")
    PHQ = 144
    blk = [(PQ[hd] + 8*sg, PHQ + 8*hd + 4*sg) for hd in range(2) for sg in range(2)]
    for x in softmax_ops(blk, 36, 160): p(x)
    stamp(p, "p1 q softmax")
    p("s_waitcnt vmcnt(0)"); p.vmq = []
    arrive(p, 0, 25, 16)
    stamp(p, "p1 kv flag")
    vK = 12
    p(f"v_and_b32 v{vK}, 31, v1\nv_min_u32 v{vK}, 16, v{vK}\nv_lshlrev_b32 v{vK}, 4, v{vK}\nv_lshrrev_b32 v13, 5, v1\nv_mul_u32_u24 v13, 272, v13\nv_add_u32 v{vK}, v{vK}, v13")
    wait_go(p, 0, 25)
    stamp(p, "S2 passed")
    p(f"s_mul_i32 s35, s25, 4352\ns_add_u32 s35, s35, {WS_KV:#x}")
    AK = 64
    for hd in range(2):
        for s_ in range(2):
            for q in range(2):
                r = AK + 16*hd + 8*s_ + 4*q
                o = hd*2176 + (2*s_+q)*544
                p.vm(f"buffer_load_dwordx4 v[{r}:{r+3}], v{vK}, s[{R_WS}:{R_WS+3}], s35 offen offset:{o} sc1", f"kv{hd}")
    cs_compute(p)
    AB, ON = 96, 16
    for hd in range(2):
        p.wait(vm=f"kv{hd}")
        for s_ in range(2):
            for jj in range(4): p(f"v_cvt_pk_bf16_f32 v{AB+8*hd+4*s_+jj}, v{AK+16*hd+8*s_+2*jj}, v{AK+16*hd+8*s_+2*jj+1}")
        o = ON + 16*hd
        p(f"v_mfma_f32_32x32x16_bf16 v[{o}:{o+15}], v[{AB+8*hd}:{AB+8*hd+3}], v[{PHQ+8*hd}:{PHQ+8*hd+3}], 0")
        p(f"v_mfma_f32_32x32x16_bf16 v[{o}:{o+15}], v[{AB+8*hd+4}:{AB+8*hd+7}], v[{PHQ+8*hd+4}:{PHQ+8*hd+7}], v[{o}:{o+15}]")
    p(f"s_lshl_b32 s35, s31, 5\ns_lshl_b32 s36, s25, 1\ns_add_u32 s35, s35, s36\ns_lshl_b32 s35, s35, 10\ns_add_u32 s35, s35, {WS_OF:#x}")
    for hd in range(2):
        o = ON + 16*hd
        p(f"v_add_f32 v{o+8}, 0x358637bd, v{o+8}\nv_rcp_f32 v{o+8}, v{o+8}")
        for i in range(0, 8, 2): p(f"v_pk_mul_f32 v[{o+i}:{o+i+1}], v[{o+i}:{o+i+1}], v[{o+8}:{o+9}] op_sel_hi:[1,0]")
        for jj in range(4): p(f"v_cvt_pk_bf16_f32 v{112+4*hd+jj}, v{o+2*jj}, v{o+2*jj+1}")
        p.vm(f"buffer_store_dwordx4 v[{112+4*hd}:{115+4*hd}], v{vX}, s[{R_WS}:{R_WS+3}], s35 offen offset:{hd*1024} sc1", "of")
    dt_compute(p)
    p("s_waitcnt vmcnt(0) lgkmcnt(0)"); p.vmq = []
    arrive_line(p, 0, 24, 25)
    stamp(p, "p1 o flag")
    dt_finish(p)
    cs_finish1(p); cs_finish2(p)

def reduce_write(p, base, wavestride):
    p(f"s_mul_i32 s40, s{S_WAVE}, {wavestride}\ns_add_u32 s40, s40, {base}")
    p("v_and_b32 v10, 31, v1\nv_mul_u32_u24 v10, 272, v10\nv_lshrrev_b32 v11, 5, v1\nv_lshlrev_b32 v11, 4, v11\nv_add_u32 v10, v10, v11\nv_add_u32 v10, s40, v10")
    for cg in range(2):
        for tg in range(2):
            for b in range(4):
                a = 32*cg + 16*tg + 4*b
                p.ds(f"ds_write_b128 v10, a[{a}:{a+3}] offset:{tg*32*272 + cg*128 + b*32}", "red")
    p.wait(ds="red")
    p("s_barrier")

def reduce_read(p, base, wavestride, ps, dst):
    T = dst + 8
    for w in range(4):
        for hb in range(2):
            r = dst + 4*hb if w == 0 else T + 8*(w-1) + 4*hb
            off = base + w*wavestride + ps*32*272 + hb*16
            reg = (12, 13, 11)[off // 65536]
            p.ds(f"ds_read_b128 v[{r}:{r+3}], v{reg} offset:{off % 65536}", f"rr{ps}")

def reduce_sum(p, ps, dst):
    T = dst + 8
    p.wait(ds=f"rr{ps}")
    for i in range(0, 8, 2):
        p(f"v_pk_add_f32 v[{dst+i}:{dst+i+1}], v[{dst+i}:{dst+i+1}], v[{T+i}:{T+i+1}]")
        p(f"v_pk_add_f32 v[{T+8+i}:{T+8+i+1}], v[{T+8+i}:{T+8+i+1}], v[{T+16+i}:{T+16+i+1}]")
    for i in range(0, 8, 2):
        p(f"v_pk_add_f32 v[{dst+i}:{dst+i+1}], v[{dst+i}:{dst+i+1}], v[{T+8+i}:{T+8+i+1}]")

def add_residual(p, dst, res, tmp):
    for i in range(4): p(f"v_lshlrev_b32 v{tmp+2*i}, 16, v{res+i}\nv_and_b32 v{tmp+2*i+1}, 0xffff0000, v{res+i}")
    for i in range(0, 8, 2): p(f"v_pk_add_f32 v[{dst+i}:{dst+i+1}], v[{dst+i}:{dst+i+1}], v[{tmp+i}:{tmp+i+1}]")

def hf_addr(p, dst, tmp):
    p(f"v_bfe_u32 v{dst}, v0, 1, 2\nv_lshlrev_b32 v{dst}, 10, v{dst}\nv_and_b32 v{tmp}, 1, v0\nv_lshlrev_b32 v{tmp}, 9, v{tmp}\nv_add_u32 v{dst}, v{dst}, v{tmp}")
    p(f"v_lshrrev_b32 v{tmp}, 3, v0\nv_lshlrev_b32 v{tmp}, 4, v{tmp}\nv_add_u32 v{dst}, v{dst}, v{tmp}")

def red_addr(p):
    p("v_lshrrev_b32 v12, 3, v0\nv_mul_u32_u24 v12, 272, v12\nv_and_b32 v13, 7, v0\nv_lshlrev_b32 v13, 5, v13\nv_add_u32 v12, v12, v13\nv_add_u32 v13, 0x10000, v12\nv_add_u32 v11, 0x20000, v12")

NSLOT = 14
def pos(s): return (s % K3_NR)*16384
def slot_fr(s):
    if s < 8: return s % 4, s // 4
    return 4 + (s - 8)//2, (s - 8) % 2
def pw_setup(p):
    p(f"s_mul_i32 s44, s29, {7*32768}\ns_lshl_b32 s45, s{S_WAVE}, 12\ns_add_u32 s44, s44, s45\ns_add_u32 s44, s44, {WS_WP:#x}")
def pw_loads(p, s):
    n, half = slot_fr(s)
    def f0():
        p(f"s_add_u32 s46, s44, {n*32768 + half*16384}\ns_add_u32 m0, s45, {pos(s)}")
        p.vm(f"buffer_load_dwordx4 v4, s[{R_WS}:{R_WS+3}], s46 offen sc1 lds", f"s{s}")
    fs = [f0]
    for k in range(1, 4):
        fs.append(lambda k=k: p.vm(f"buffer_load_dwordx4 v4, s[{R_WS}:{R_WS+3}], s46 offen offset:{k*1024} sc1 lds", f"s{s}"))
    return fs

P3_PRE = 6

HKEEP = 180
L_OF = 65536
def p2(p):
    vX, vT, vB = 4, 6, 7
    WA, BR, ACC = 192, 224, 16
    p(f"s_lshr_b32 s31, s26, 1")
    p(f"s_lshr_b32 s32, s{S_WAVE}, 1\ns_and_b32 s33, s{S_WAVE}, 1")
    tr_addr_swz128(p, vT, 8, 10)
    p(f"s_lshl_b32 s34, s33, 6\nv_xor_b32 v{vT}, s34, v{vT}")
    p(f"s_lshl_b32 s34, s32, 15\ns_add_u32 s34, s34, {L_OF}\nv_add_u32 v{vB}, s34, v{vX}")
    XR = 48
    p("v_and_b32 v9, 31, v1\nv_lshlrev_b32 v9, 10, v9\nv_lshrrev_b32 v10, 5, v1\nv_lshlrev_b32 v10, 3, v10\nv_add_u32 v9, v9, v10")
    p("s_lshl_b32 s34, s26, 16\ns_lshl_b32 s35, s32, 15\ns_add_u32 s34, s34, s35\ns_lshl_b32 s35, s27, 7\ns_add_u32 s34, s34, s35\ns_lshl_b32 s35, s33, 6\ns_add_u32 s34, s34, s35")
    srd(p, 8, P_X, 2048*512*2)
    for b_ in range(4): p.vm(f"buffer_load_dwordx2 v[{XR+2*b_}:{XR+2*b_+1}], v9, s[8:11], s34 offen offset:{16*b_}", "xr")
    p(f"s_lshl_b32 s35, s26, 16\ns_lshl_b32 s36, s{S_WAVE}, 11\ns_add_u32 s35, s35, s36\ns_add_u32 s35, s35, {WS_OF:#x}\ns_add_u32 s36, s36, {L_OF}")
    p.wait(vm="wo")
    if LINES: wait_go(p, 0, 31, lines=16)
    else: wait_go(p, 1, 31)
    stamp(p, "S2b passed")
    for c in range(4):
        for tg in range(2):
            p(f"s_add_u32 s37, s35, {tg*32768 + c*8192}\ns_add_u32 m0, s36, {tg*32768 + c*8192}")
            p.vm(f"buffer_load_dwordx4 v{vX}, s[{R_WS}:{R_WS+3}], s37 offen sc1 lds", f"o{c}")
            p.vm(f"buffer_load_dwordx4 v{vX}, s[{R_WS}:{R_WS+3}], s37 offen offset:1024 sc1 lds", f"o{c}")
    uid = p.newlabel("t")
    def rd(k):
        if k % 8 == 0:
            p.wait(vm=f"o{k//8}"); p("s_barrier")
        a_ = WA + 4*(k % 6); bb = BR + 4*(k % 4)
        p.ds(f"ds_read_b64_tr_b16 v[{a_}:{a_+1}], v{vT} offset:{L_WO + k*2048}", f"{uid}{k}")
        p.ds(f"ds_read_b64_tr_b16 v[{a_+2}:{a_+3}], v{vT} offset:{L_WO + k*2048 + 1024}", f"{uid}{k}")
        p.ds(f"ds_read_b128 v[{bb}:{bb+3}], v{vB} offset:{k*1024}", f"{uid}{k}")
    L = 3
    for k in range(L): rd(k)
    for k in range(32):
        p.wait(ds=f"{uid}{k}")
        a_ = WA + 4*(k % 6); bb = BR + 4*(k % 4)
        p(f"v_mfma_f32_32x32x16_bf16 v[{ACC}:{ACC+15}], v[{a_}:{a_+3}], v[{bb}:{bb+3}], {'0' if k == 0 else f'v[{ACC}:{ACC+15}]'}")
        if k + L < 32: rd(k + L)
    stamp(p, "p2 main")
    p("s_barrier")
    p(f"s_lshl_b32 s34, s26, 1\ns_add_u32 s34, s34, s32")
    p(f"s_lshl_b32 s35, s34, 5\ns_lshl_b32 s36, s27, 2\ns_add_u32 s35, s35, s36\ns_lshl_b32 s36, s33, 1\ns_add_u32 s35, s35, s36\ns_lshl_b32 s35, s35, 10\ns_add_u32 s35, s35, {WS_HF:#x}")
    p(f"s_lshl_b32 s36, s34, 4\ns_lshl_b32 s37, s27, 1\ns_add_u32 s36, s36, s37\ns_add_u32 s36, s36, s33\ns_lshl_b32 s36, s36, 8\ns_add_u32 s36, s36, {WS_ST:#x}")
    p.wait(vm="xr")
    T = 64
    for i in range(8): p(f"v_lshlrev_b32 v{T+2*i}, 16, v{XR+i}\nv_and_b32 v{T+2*i+1}, 0xffff0000, v{XR+i}")
    for i in range(0, 16, 2): p(f"v_pk_add_f32 v[{ACC+i}:{ACC+i+1}], v[{ACC+i}:{ACC+i+1}], v[{T+i}:{T+i+1}]")
    for i in range(8): p(f"v_cvt_pk_bf16_f32 v{HKEEP+i}, v{ACC+2*i}, v{ACC+2*i+1}")
    for f in range(2):
        p.vm(f"buffer_store_dwordx4 v[{HKEEP+4*f}:{HKEEP+4*f+3}], v{vX}, s[{R_WS}:{R_WS+3}], s35 offen offset:{f*1024} sc1", "hst")
    for i in range(8): p(f"v_lshlrev_b32 v{T+2*i}, 16, v{HKEEP+i}\nv_and_b32 v{T+2*i+1}, 0xffff0000, v{HKEEP+i}")
    for i in range(4): p(f"v_pk_add_f32 v[{T+16+2*i}:{T+17+2*i}], v[{T+4*i}:{T+4*i+1}], v[{T+4*i+2}:{T+4*i+3}]")
    p(f"v_pk_add_f32 v[{T+16}:{T+17}], v[{T+16}:{T+17}], v[{T+18}:{T+19}]\nv_pk_add_f32 v[{T+20}:{T+21}], v[{T+20}:{T+21}], v[{T+22}:{T+23}]")
    p(f"v_pk_add_f32 v[{T+16}:{T+17}], v[{T+16}:{T+17}], v[{T+20}:{T+21}]\nv_add_f32 v{T+24}, v{T+16}, v{T+17}")
    p(f"v_mov_b32 v{T+25}, v{T+24}\nv_permlane32_swap_b32 v{T+24}, v{T+25}\nv_add_f32 v{T+24}, v{T+24}, v{T+25}")
    p(f"v_mul_f32 v{T+24}, 0x3d000000, v{T+24}\nv_sub_f32 v{T+26}, 0, v{T+24}")
    for i in range(0, 16, 2): p(f"v_pk_add_f32 v[{T+i}:{T+i+1}], v[{T+i}:{T+i+1}], v[{T+26}:{T+27}] op_sel_hi:[1,0]")
    p(f"v_pk_mul_f32 v[{T+16}:{T+17}], v[{T}:{T+1}], v[{T}:{T+1}]\nv_pk_mul_f32 v[{T+18}:{T+19}], v[{T+2}:{T+3}], v[{T+2}:{T+3}]")
    for i in range(4, 16, 4):
        p(f"v_pk_fma_f32 v[{T+16}:{T+17}], v[{T+i}:{T+i+1}], v[{T+i}:{T+i+1}], v[{T+16}:{T+17}]\nv_pk_fma_f32 v[{T+18}:{T+19}], v[{T+i+2}:{T+i+3}], v[{T+i+2}:{T+i+3}], v[{T+18}:{T+19}]")
    p(f"v_pk_add_f32 v[{T+16}:{T+17}], v[{T+16}:{T+17}], v[{T+18}:{T+19}]\nv_add_f32 v{T+25}, v{T+16}, v{T+17}")
    p(f"v_mov_b32 v{T+26}, v{T+25}\nv_permlane32_swap_b32 v{T+25}, v{T+26}\nv_add_f32 v{T+25}, v{T+25}, v{T+26}")
    p("v_lshlrev_b32 v10, 3, v1\ns_mov_b32 exec_hi, 0")
    p.vm(f"buffer_store_dwordx2 v[{T+24}:{T+25}], v10, s[{R_WS}:{R_WS+3}], s36 offen sc1", "hst")
    p("s_mov_b64 exec, -1")
    L = p.newlabel("PL"); D = p.newlabel("PD")
    p(f"s_cmp_lg_u32 s{S_WAVE}, 0\ns_cbranch_scc1 {D}")
    p(f"s_mul_i32 s35, s29, 7\ns_lshr_b32 s35, s35, 2\ns_lshl_b32 s35, s35, 3\nv_min_u32 v2, 23, v1\nv_add_u32 v2, s35, v2\nv_min_u32 v2, 223, v2\nv_lshlrev_b32 v2, 2, v2")
    p(f"s_mov_b32 s58, {F6:#x}\ns_mov_b32 s59, {SPIN}\ns_mov_b32 s55, {F7:#x}\nv_lshlrev_b32 v18, 2, v1\nv_add_u32 v16, 64, v1\nv_min_u32 v16, 111, v16\nv_lshlrev_b32 v16, 2, v16")
    p.label(L)
    p(f"buffer_load_dword v3, v2, s[{R_WS}:{R_WS+3}], s58 offen sc1")
    p(f"buffer_load_dword v19, v18, s[{R_WS}:{R_WS+3}], s55 offen sc1\nbuffer_load_dword v17, v16, s[{R_WS}:{R_WS+3}], s55 offen sc1")
    p(f"s_waitcnt vmcnt(0)\nv_cmp_ne_u32 vcc, s{S_TAG}, v3\nv_cmp_ne_u32 s[56:57], s{S_TAG}, v19\ns_or_b64 vcc, vcc, s[56:57]\nv_cmp_ne_u32 s[56:57], s{S_TAG}, v17\ns_or_b64 vcc, vcc, s[56:57]\ns_cbranch_vccz {D}")
    if SLEEP: p(f"s_sleep {SLEEP}")
    p(f"s_sub_u32 s59, s59, 1\ns_cmp_lg_u32 s59, 0\ns_cbranch_scc1 {L}")
    p.label(D)
    p.wait(vm="hst")
    if LINES:
        p("s_and_b32 s35, s26, 1\ns_lshl_b32 s35, s35, 3\ns_add_u32 s35, s35, s27")
        arrive_line(p, 1, 31, 35)
    else: arrive(p, 2, 31, 16)
    stamp(p, "p2 h flag")
    E = p.newlabel("EP")
    p(f"s_or_b32 s35, s2, s{S_WAVE}\ns_cmp_lg_u32 s35, 3\ns_cbranch_scc1 {E}")
    p(f"s_cmp_lg_u32 s2, 0\ns_cbranch_scc1 {E}")
    p(f"s_mov_b32 s36, {WS_EP:#x}\ns_load_dword s35, s[{P_WS}:{P_WS+1}], s36\ns_waitcnt lgkmcnt(0)\ns_add_u32 s35, s35, 1\nv_mov_b32 v2, s35\nv_mov_b32 v3, 0")
    p(f"s_mov_b64 exec, 1\nbuffer_store_dword v2, v3, s[{R_WS}:{R_WS+3}], s36 offen sc1\ns_mov_b64 exec, -1")
    p.label(E)

def p3(p):
    vX = 4
    WF, ACC, T = 192, 16, 224
    vB = [4, 5, 6]
    p(f"s_lshl_b32 s31, s28, 2\ns_add_u32 s31, s31, s{S_WAVE}")
    p("v_add_u32 v5, 0x10000, v4\nv_add_u32 v6, 0x20000, v4")
    pw_setup(p)
    p(f"s_lshl_b32 s33, s31, 12\ns_add_u32 s33, s33, {WS_ST:#x}")
    p("v_and_b32 v15, 31, v1\nv_lshlrev_b32 v15, 3, v15\nv_lshrrev_b32 v14, 5, v1\nv_lshlrev_b32 v14, 11, v14\nv_add_u32 v15, v15, v14")
    p(f"s_lshl_b32 s34, s31, 15\ns_add_u32 s34, s34, {WS_HF:#x}")
    p(f"s_mul_i32 s36, s31, {112*1024}\ns_mul_i32 s37, s29, {7*1024}\ns_add_u32 s36, s36, s37\ns_add_u32 s36, s36, {WS_HH:#x}")
    def bulk3():
        paced(p, [f for s_ in range(P3_PRE) for f in pw_loads(p, s_)])
    wait_go(p, 1, 28, bulk=bulk3, lines=16)
    stamp(p, "S3 passed")
    def hload(ks):
        if ks % 4 == 0: p(f"s_add_u32 s35, s34, {ks*1024}")
        p.vm(f"buffer_load_dwordx4 a[{4*ks}:{4*ks+3}], v{vX}, s[{R_WS}:{R_WS+3}], s35 offen offset:{(ks%4)*1024} sc1", f"h{ks}")
    LEAD = 8
    for ks in range(LEAD): hload(ks)
    ST = 96
    CSR = 128
    p("v_lshrrev_b32 v14, 5, v1\nv_mul_u32_u24 v14, 28672, v14\nv_and_b32 v13, 31, v1\nv_lshlrev_b32 v13, 2, v13\nv_add_u32 v14, v14, v13")
    p(f"s_mul_i32 s32, s29, {7*128}\ns_add_u32 s32, s32, {WS_CS:#x}\ns_add_u32 s37, s32, 14336")
    small = []
    for i in range(8): small.append(lambda i=i: p.vm(f"buffer_load_dwordx2 v[{ST+2*i}:{ST+2*i+1}], v15, s[{R_WS}:{R_WS+3}], s33 offen offset:{i*256} sc1", "st"))
    for qq in range(2):
        for n in range(7):
            small.append(lambda qq=qq, n=n: p.vm(f"buffer_load_dword v{CSR+8*qq+n}, v14, s[{R_WS}:{R_WS+3}], s{37 if qq else 32} offen offset:{n*128} sc1", "cs"))
    AUG, BA, CGR = 160, 168, 176
    MEAN, RSTD, CG = T + 8, T + 9, T + 10
    prep = []
    def Q(txt):
        for x in txt.split("\n"): prep.append(x)
    Q("v_cmp_gt_u32 vcc, 32, v1")
    N7 = range(7)
    for n in N7: Q(f"v_add_f32 v{CSR+n}, v{CSR+n}, v{CSR+8+n}")
    for n in N7: Q(f"v_mov_b32 v{CSR+8+n}, v{CSR+n}")
    for n in N7: Q(f"v_permlane32_swap_b32 v{CSR+n}, v{CSR+8+n}")
    for n in N7: Q(f"v_add_f32 v{CSR+n}, v{CSR+n}, v{CSR+8+n}")
    for n in N7: Q(f"v_cvt_pk_bf16_f32 v{CSR+8+n}, v{CSR+n}, v{CSR+n}")
    for n in N7: Q(f"v_and_b32 v{CSR+8+n}, 0xffff0000, v{CSR+8+n}")
    for n in N7: Q(f"v_sub_f32 v{CSR+8+n}, v{CSR+n}, v{CSR+8+n}")
    for n in N7: Q(f"v_cvt_pk_bf16_f32 v{CSR+8+n}, v{CSR+n}, v{CSR+8+n}")
    for n in N7: Q(f"v_cndmask_b32 v{AUG+n}, 0, v{CSR+8+n}, vcc")
    Q(f"v_add_f32 v{MEAN}, v{ST}, v{ST+2}")
    for i in range(2, 8): Q(f"v_add_f32 v{MEAN}, v{MEAN}, v{ST+2*i}")
    Q(f"v_mov_b32 v{CG}, v{MEAN}\nv_nop\nv_permlane32_swap_b32 v{MEAN}, v{CG}\nv_add_f32 v{MEAN}, v{MEAN}, v{CG}\nv_mul_f32 v{MEAN}, 0x3d800000, v{MEAN}")
    for i in range(8): Q(f"v_sub_f32 v{ST+2*i}, v{ST+2*i}, v{MEAN}")
    Q(f"v_mul_f32 v{RSTD}, v{ST}, v{ST}")
    for i in range(1, 8): Q(f"v_fmac_f32 v{RSTD}, v{ST+2*i}, v{ST+2*i}")
    Q(f"v_mul_f32 v{RSTD}, 0x42000000, v{RSTD}")
    for i in range(8): Q(f"v_add_f32 v{RSTD}, v{RSTD}, v{ST+2*i+1}")
    Q(f"v_mov_b32 v{CG}, v{RSTD}\nv_nop\nv_permlane32_swap_b32 v{RSTD}, v{CG}\nv_add_f32 v{RSTD}, v{RSTD}, v{CG}")
    Q(f"v_mov_b32 v{CG}, 0x3727c5ac\nv_fmac_f32 v{CG}, 0x3b000000, v{RSTD}\nv_rsq_f32 v{RSTD}, v{CG}")
    Q(f"v_mul_f32 v{CGR}, 0xbfb8aa3b, v{RSTD}")
    Q(f"v_sub_f32 v{ST}, 0, v{MEAN}\nv_cvt_pk_bf16_f32 v{ST+1}, v{ST}, v{ST}\nv_and_b32 v{ST+2}, 0xffff0000, v{ST+1}\nv_sub_f32 v{ST+2}, v{ST}, v{ST+2}\nv_cvt_pk_bf16_f32 v{ST+2}, v{ST+2}, v{ST+2}")
    Q(f"v_cndmask_b32 v{BA}, 0, v{ST+1}, vcc\nv_cndmask_b32 v{BA+1}, 0, v{ST+2}, vcc\nv_mov_b32 v{BA+2}, 0\nv_mov_b32 v{BA+3}, 0\nv_mov_b32 v174, 0\nv_mov_b32 v175, 0")
    def rs_store():
        RSK = p.newlabel("RS")
        p(f"s_cmp_lg_u32 s29, 0\ns_cbranch_scc1 {RSK}")
        p(f"s_lshl_b32 s37, s31, 7\ns_add_u32 s37, s37, {WS_RS:#x}\nv_lshlrev_b32 v13, 2, v1\ns_mov_b32 exec_hi, 0")
        p(f"buffer_store_dword v{RSTD}, v13, s[{R_WS}:{R_WS+3}], s37 offen sc1\ns_mov_b64 exec, -1")
        p.label(RSK)
    AC = [ACC, ACC + 16, ACC + 32, ACC + 48, ACC + 64, ACC + 96, ACC]
    def aug(n, add=False):
        acc = AC[n]
        p(f"v_mov_b32 v172, v{AUG+n}\nv_mov_b32 v173, v{AUG+n}")
        p(f"v_mfma_f32_32x32x16_bf16 v[{acc}:{acc+15}], v[172:175], v[{BA}:{BA+3}], {f'v[{acc}:{acc+15}]' if add else '0'}")
    ET = T; outsel = [0]
    def glu_ops(n):
        acc = AC[n]; off = n*1024
        L_ = []
        o = 232 + 4*(outsel[0] & 1); outsel[0] += 1
        for half in range(2):
            js = range(4*half, 4*half + 4)
            for j in js: L_.append(f"v_mul_f32 v{ET+j%4}, v{CGR}, v{acc+j}")
            for j in js: L_.append(f"v_exp_f32 v{ET+j%4}, v{ET+j%4}")
            for j in js: L_.append(f"v_add_f32 v{ET+j%4}, 1.0, v{ET+j%4}")
            for j in js: L_.append(f"v_rcp_f32 v{ET+j%4}, v{ET+j%4}")
            for j in js: L_.append(f"v_mul_f32 v{ET+j%4}, v{acc+8+j}, v{ET+j%4}")
            for jj in range(2): L_.append(f"v_cvt_pk_bf16_f32 v{o+2*half+jj}, v{ET+2*jj}, v{ET+2*jj+1}")
        L_.append(("store", f"s_add_u32 s41, s36, {off}", f"buffer_store_dwordx4 v[{o}:{o+3}], v{vX}, s[{R_WS}:{R_WS+3}], s41 offen sc1"))
        return L_
    def emit(x):
        if isinstance(x, tuple): p(x[1]); p.vm(x[2], "hh")
        else: p(x)
    ready = set()
    def mkpre(slots):
        def pre():
            todo = [s_ for s_ in slots if s_ not in ready]
            if todo:
                p.wait(vm=[f"s{s_}" for s_ in todo]); p("s_barrier"); ready.update(todo)
        return pre
    def ent(n, ks):
        s_ = (n + 4*(ks // 16)) if n < 4 else 8 + 2*(n - 4) + ks // 16
        off = pos(s_) + (ks % 16)*1024
        grp = [4*(ks // 16) + u for u in range(4)] if n < 4 else [s_]
        return dict(acc=f"v[{AC[n]}:{AC[n]+15}]", B=f"a[{4*ks}:{4*ks+3}]", areg=vB[off // 65536], off=off % 65536, pre=mkpre(grp), ks=ks, slot=s_)
    nxt = {"h": LEAD, "s": P3_PRE}
    slotq = []
    def want(limit_slot):
        while nxt["s"] <= limit_slot and nxt["s"] < NSLOT:
            slotq.extend(pw_loads(p, nxt["s"])); nxt["s"] += 1
    stamp(p, "p3 setup")
    mf = [ent(u, ks) for ks in range(32) for u in range(4)]
    for u in range(4): mf[u]["C"] = "0"
    want(7)
    for i, m in enumerate(mf):
        if i % 4 == 0: m["vm"] = f"h{m['ks']}"
        def post(m=m, i=i):
            if i % 4 == 0 and nxt["h"] < 32: hload(nxt["h"]); nxt["h"] += 1
            if i % 4 in (1, 3) and small: small.pop(0)()
            if i % 4 == 2:
                if not slotq and nxt["h"] >= 32: want(9)
                if slotq: slotq.pop(0)()
            if i >= PREP0:
                for _ in range(3):
                    if prep: p(prep.pop(0))
        m["post"] = post
    stream128(p, mf, WF, 8, 7)
    while prep: p(prep.pop(0))
    while slotq: slotq.pop(0)()
    want(9)
    while slotq: slotq.pop(0)()
    rs_store()
    if DUMP:
        p(f"s_lshl_b32 s37, s2, 2\ns_add_u32 s37, s37, s{S_WAVE}\ns_lshl_b32 s37, s37, 11\ns_add_u32 s37, s37, {0x1500000+0x80000*2:#x}\nv_lshlrev_b32 v13, 2, v1")
        for n_, r_ in enumerate((160, 168, 169, 232, 128, 136, 96, 233)):
            p(f"buffer_store_dword v{r_}, v13, s[{R_WS}:{R_WS+3}], s37 offen offset:{n_*256}")
    for u in range(4): aug(u, add=True)
    stamp(p, "p3 pass1")
    wd_setup(p)
    wdq = [f for k in range(NA) for f in wd_load(p, k)]
    for n, fl in ((4, (0, 1)), (5, (2, 3)), (6, (4, 5))):
        aug(n)
        fill = []
        for f_ in fl: fill += glu_ops(f_)
        mf = [ent(n, ks) for ks in range(32)]
        for i, m in enumerate(mf):
            def post(m=m, i=i, n=n):
                if n == 4 and i == 0: want(13)
                if slotq: slotq.pop(0)()
                elif wdq and i % 2 == 0: wdq.pop(0)()
            m["post"] = post
        stream128(p, mf, WF, 8, 7, fill=fill, emit=emit)
        stamp(p, f"p3 frag {n}")
    assert nxt["s"] == NSLOT and not slotq
    while wdq: wdq.pop(0)()
    p("s_barrier")
    return glu_ops(6), emit

NA = 16
def wd_reg(k, cg):
    if k < NA: return f"a[{128+8*k+4*cg}:{128+8*k+4*cg+3}]"
    b = (128 + 8*(k - 16)) if k < 22 else (188 + 8*(k - 22))
    return f"v[{b+4*cg}:{b+4*cg+3}]"
def wd_setup(p):
    p(f"s_mul_i32 s47, s{S_WAVE}, {28*16384}\ns_lshl_b32 s48, s27, 11\ns_add_u32 s47, s47, s48\ns_add_u32 s47, s47, {WS_WDP:#x}")
def wd_load(p, k):
    def f0():
        p(f"s_add_u32 s49, s47, {k*16384}")
        p.vm(f"buffer_load_dwordx4 {wd_reg(k, 0)}, v4, s[{R_WS}:{R_WS+3}], s49 offen sc1", f"d{k}")
    def f1(): p.vm(f"buffer_load_dwordx4 {wd_reg(k, 1)}, v4, s[{R_WS}:{R_WS+3}], s49 offen offset:1024 sc1", f"d{k}")
    return [f0, f1]

def p4(p):
    vX = 4
    HB = 64
    RING = 8
    p(f"s_lshr_b32 s31, s26, 1")
    p(f"s_mul_i32 s33, s26, {2*112*1024}\ns_mul_i32 s34, s{S_WAVE}, {28*1024}\ns_add_u32 s33, s33, s34\ns_add_u32 s33, s33, {WS_HH:#x}\ns_add_u32 s34, s33, {112*1024}")
    def bulk4():
        paced(p, [f for k in range(NA, 28) for f in wd_load(p, k)])
    wait_go(p, 2, 31, bulk=bulk4, lines=16)
    stamp(p, "S4 passed")
    def hload(k):
        sl = k % RING
        def f0():
            if k % 4 == 0 and k: p("s_add_u32 s33, s33, 4096\ns_add_u32 s34, s34, 4096")
            p.vm(f"buffer_load_dwordx4 v[{HB+8*sl}:{HB+8*sl+3}], v{vX}, s[{R_WS}:{R_WS+3}], s33 offen offset:{(k%4)*1024} sc1", f"k{k}")
        def f1(): p.vm(f"buffer_load_dwordx4 v[{HB+8*sl+4}:{HB+8*sl+7}], v{vX}, s[{R_WS}:{R_WS+3}], s34 offen offset:{(k%4)*1024} sc1", f"k{k}")
        return [f0, f1]
    for k in range(RING - 1):
        for f in hload(k): f()
    p(f"s_lshr_b32 s36, s{S_WAVE}, 1\ns_lshl_b32 s35, s26, 1\ns_add_u32 s35, s35, s36\ns_lshl_b32 s35, s35, 7\ns_add_u32 s35, s35, {WS_RS:#x}\nv_and_b32 v9, 31, v1\nv_lshlrev_b32 v9, 2, v9")
    p.vm(f"buffer_load_dword v56, v9, s[{R_WS}:{R_WS+3}], s35 offen sc1", "rs")
    for k in range(28):
        sl = k % RING
        p.wait(vm=[f"k{k}", f"d{k}"])
        n = k + RING - 1
        pend = hload(n) if n < 28 else []
        for cg in range(2):
            for tg in range(2):
                a_ = 32*cg + 16*tg; h = HB + 8*sl + 4*tg
                p(f"v_mfma_f32_32x32x16_bf16 a[{a_}:{a_+15}], {wd_reg(k, cg)}, v[{h}:{h+3}], {'0' if k == 0 else f'a[{a_}:{a_+15}]'}")
                if pend and cg == 0: pend.pop(0)()
    stamp(p, "p4 main")
    RS_ = 17408
    reduce_write(p, 0, RS_)
    p(f"s_lshr_b32 s36, s{S_WAVE}, 1\ns_and_b32 s37, s{S_WAVE}, 1\ns_mul_i32 s38, s36, {32*272}\ns_lshl_b32 s39, s37, 7\ns_add_u32 s38, s38, s39")
    p("v_and_b32 v10, 31, v1\nv_mul_u32_u24 v10, 272, v10\nv_lshrrev_b32 v11, 5, v1\nv_lshlrev_b32 v11, 4, v11\nv_add_u32 v10, v10, v11\nv_add_u32 v10, s38, v10")
    D = 64
    for w in range(4):
        for b_ in range(4):
            p.ds(f"ds_read_b128 v[{D+16*w+4*b_}:{D+16*w+4*b_+3}], v10 offset:{w*RS_ + b_*32}", f"rr{w}")
    p("v_and_b32 v9, 31, v1\nv_lshlrev_b32 v9, 10, v9\nv_lshrrev_b32 v12, 5, v1\nv_lshlrev_b32 v12, 4, v12\nv_add_u32 v9, v9, v12")
    p("s_lshl_b32 s32, s26, 16\ns_lshl_b32 s33, s36, 15\ns_add_u32 s32, s32, s33\ns_lshl_b32 s33, s27, 7\ns_add_u32 s32, s32, s33\ns_lshl_b32 s33, s37, 6\ns_add_u32 s32, s32, s33")
    srd(p, 12, P_OUT, 2048*512*2)
    T = 128
    for i in range(8): p(f"v_lshlrev_b32 v{T+2*i}, 16, v{HKEEP+i}\nv_and_b32 v{T+2*i+1}, 0xffff0000, v{HKEEP+i}")
    p.wait(vm="rs", ds="rr1")
    for i in range(0, 16, 2): p(f"v_pk_add_f32 v[{D+i}:{D+i+1}], v[{D+i}:{D+i+1}], v[{D+16+i}:{D+16+i+1}]")
    p.wait(ds="rr3")
    for i in range(0, 16, 2): p(f"v_pk_add_f32 v[{D+32+i}:{D+32+i+1}], v[{D+32+i}:{D+32+i+1}], v[{D+48+i}:{D+48+i+1}]")
    for i in range(0, 16, 2): p(f"v_pk_add_f32 v[{D+i}:{D+i+1}], v[{D+i}:{D+i+1}], v[{D+32+i}:{D+32+i+1}]")
    for i in range(0, 16, 2): p(f"v_pk_fma_f32 v[{D+i}:{D+i+1}], v[{D+i}:{D+i+1}], v[56:57], v[{T+i}:{T+i+1}] op_sel_hi:[1,0,1]")
    Q = 160
    for i in range(8): p(f"v_cvt_pk_bf16_f32 v{Q+i}, v{D+2*i}, v{D+2*i+1}")
    for m in range(2):
        p(f"v_permlane32_swap_b32 v{Q+4*m}, v{Q+4*m+2}\nv_permlane32_swap_b32 v{Q+4*m+1}, v{Q+4*m+3}")
    for m in range(2):
        p.vm(f"buffer_store_dwordx4 v[{Q+4*m}:{Q+4*m+3}], v9, s[12:15], s32 offen offset:{32*m}", "ost")

def mega():
    p = Prog()
    NSTAMP[0] = 0; STAMP_NAMES.clear()
    p("s_getpc_b64 s[62:63]")
    p("s_cmp_ge_u32 s2, 256\ns_cbranch_scc1 L_end")
    p("s_load_dwordx16 s[64:79], s[0:1], 0\ns_load_dwordx4 s[80:83], s[0:1], 64\ns_load_dwordx2 s[84:85], s[0:1], 80")
    p(f"v_and_b32 v1, 63, v0\nv_lshrrev_b32 v2, 6, v0\nv_readfirstlane_b32 s{S_WAVE}, v2")
    if STAMPS: p("v_mov_b32 v255, 0\ns_memrealtime s[96:97]\ns_waitcnt lgkmcnt(0)\nv_writelane_b32 v255, s96, 63")
    if PADTO: p("s_memrealtime s[94:95]")
    stamp(p, "entry")
    roles(p)
    p0(p)
    p1(p)
    p2(p)
    tail, emit = p3(p)
    for x in tail: emit(x)
    p.wait(vm="hh")
    arrive_line(p, 2, 28, 29)
    stamp(p, "p3 hh flag")
    p4(p)
    if STAMPS:
        stamp(p, "p4 stores issued")
        p("s_waitcnt vmcnt(0)")
        stamp(p, "end")
        p("s_memrealtime s[96:97]\ns_waitcnt lgkmcnt(0)\nv_writelane_b32 v255, s96, 62")
        p(f"s_lshl_b32 s58, s2, 2\ns_add_u32 s58, s58, s{S_WAVE}\ns_lshl_b32 s58, s58, 8\ns_add_u32 s58, s58, {WS_DBG:#x}\nv_lshlrev_b32 v2, 2, v1")
        p(f"buffer_store_dword v255, v2, s[{R_WS}:{R_WS+3}], s58 offen")
        if DBGOUT:
            sel = ["S1 passed", "p1 pass A", "p1 kv atomics issued", "p1 q softmax", "S2 passed", "p1 o flag", "S2b passed", "p2 h flag", "S3 passed", "p3 pass1", "p3 pass2c", "S4 passed", "p4 main", "end"]
            p("s_mov_b32 s40, s82\ns_and_b32 s41, s83, 0xffff\ns_mov_b32 s42, 256\ns_mov_b32 s43, 0x20000")
            p("v_readlane_b32 s50, v255, 0")
            for j_, nm_ in enumerate(sel):
                i_ = STAMP_NAMES.index(nm_)
                p(f"v_readlane_b32 s51, v255, {i_}\ns_nop 3\ns_sub_u32 s51, s51, s50\nv_writelane_b32 v254, s51, {j_}")
            p("v_readlane_b32 s51, v255, 63\ns_nop 3\ns_not_b32 s51, s51\nv_writelane_b32 v254, s51, 14")
            p("v_readlane_b32 s51, v255, 62\ns_nop 3\nv_writelane_b32 v254, s51, 15")
            p("v_lshlrev_b32 v2, 2, v1\ns_mov_b64 exec, 0xffff\nbuffer_atomic_umax v254, v2, s[40:43], 0 offen\ns_mov_b64 exec, -1")
    if PADTO:
        PL = p.newlabel("PAD")
        p.label(PL)
        p(f"s_memrealtime s[96:97]\ns_waitcnt lgkmcnt(0)\ns_sub_u32 s96, s96, s94\ns_cmp_lt_u32 s96, {PADTO}\ns_cbranch_scc1 {PL}")
    p.label("L_end")
    p("s_endpgm")
    p.label("L_codeend")
    return p

def build():
    p = mega()
    t, d = kernel_text(NAME + "_kernel", p, 256, 256, sgpr=100)
    print(f"mega: {p.count()} instrs, {p.nops if hasattr(p,'nops') else 0} nop states", file=sys.stderr)
    txt = f"; @launch grid=(256,1,1) block=(256,1,1) lds={LDS_BYTES}\n" + '.amdgcn_target "amdgcn-amd-amdhsa--gfx950"\n' + t
    txt += '.section .rodata,"a"\n.p2align 6\n' + d
    return txt

if __name__ == "__main__":
    for a_ in list(sys.argv):
        if a_.startswith("--set="):
            k_, v_ = a_[6:].split("="); globals()[k_] = int(v_); sys.argv.remove(a_)
    if "--stamps" in sys.argv:
        STAMPS = True; sys.argv.remove("--stamps")
    out = sys.argv[1] if len(sys.argv) > 1 else "mega.s"
    txt = build()
    open(out, "w").write(txt)
    if STAMPS: open(out + ".names", "w").write("\n".join(STAMP_NAMES))
```
